```python
import torch

def _softmax(x, axis=-1):
    return torch.softmax(x, dim=axis)
def _gelu(x):
    return torch.nn.functional.gelu(x, approximate="tanh")
def _silu(x):
    return torch.nn.functional.silu(x)
def _sigmoid(x):
    return torch.sigmoid(x)
def _layernorm(x, axis=-1, eps=1e-5):
    m = x.mean(dim=axis, keepdim=True)
    v = x.var(dim=axis, keepdim=True, unbiased=False)
    return (x - m) / torch.sqrt(v + eps)
def _scatter_add(tgt, idx, src, axis=0):
    return tgt.clone().index_add_(axis, idx, src)
def _segment_sum(src, seg, n):
    out = torch.zeros((n,) + src.shape[1:], dtype=src.dtype)
    return out.index_add_(0, seg, src)
def _pad(x, pw):
    flat = tuple(v for pair in reversed(pw) for v in pair)
    return torch.nn.functional.pad(x, flat)

kernel_name = 'concat_heads__mha_block_cached__gqa_block_cached__decode'

def setup_inputs():

    _w = (lambda a: (lambda t: t.to(torch.bfloat16) if t.is_floating_point() else t)(torch.as_tensor(a)))
    def _A_setup():
        B, Sq, D = 4, 1, 640
        H, Sk, Dh = 32, 4096, 128
        return {
            "x": _w((lambda *s: torch.randn(*s, dtype=torch.bfloat16) * 0.8)(B, Sq, D)),
            "k_cache": _w((lambda *s: torch.randn(*s, dtype=torch.bfloat16) * 0.8)(B, H, Sk, Dh)),
            "v_cache": _w((lambda *s: torch.randn(*s, dtype=torch.bfloat16) * 0.05)(B, H, Sk, Dh)),
            "wq": _w((lambda *s: torch.randn(*s, dtype=torch.bfloat16) * 0.8)(D, H * Dh) * (D ** -0.5)),
            "wo": _w((lambda *s: torch.randn(*s, dtype=torch.bfloat16) * 0.05)(H * Dh, D) * ((H * Dh) ** -0.5)),
        }
    _A_in = _A_setup()

    def _B_setup():
        B, Sq, D = 4, 1, 640
        Hq, Hkv, Sk, Dh = 32, 32, 4096, 128
        assert Hq % Hkv == 0, (Hq, Hkv)
        return {
            "x": _w((lambda *s: torch.randn(*s, dtype=torch.bfloat16) * 0.8)(B, Sq, D)),
            "k_cache": _w((lambda *s: torch.randn(*s, dtype=torch.bfloat16) * 0.8)(B, Hkv, Sk, Dh)),
            "v_cache": _w((lambda *s: torch.randn(*s, dtype=torch.bfloat16) * 0.05)(B, Hkv, Sk, Dh)),
            "wq": _w((lambda *s: torch.randn(*s, dtype=torch.bfloat16) * 0.8)(D, Hq * Dh) * (D ** -0.5)),
            "wo": _w((lambda *s: torch.randn(*s, dtype=torch.bfloat16) * 0.05)(Hq * Dh, D) * ((Hq * Dh) ** -0.5)),
        }
    _B_in = _B_setup()

    return {
        "A_x": _A_in["x"],
        "A_k_cache": _A_in["k_cache"],
        "A_v_cache": _A_in["v_cache"],
        "A_wq": _A_in["wq"],
        "A_wo": _A_in["wo"],
        "B_x": _B_in["x"],
        "B_k_cache": _B_in["k_cache"],
        "B_v_cache": _B_in["v_cache"],
        "B_wq": _B_in["wq"],
        "B_wo": _B_in["wo"],
    }

def reference(A_x, A_k_cache, A_v_cache, A_wq, A_wo, B_x, B_k_cache, B_v_cache, B_wq, B_wo):
    def _A_ref(x, k_cache, v_cache, wq, wo):
        B, Sq, D = x.shape
        H, Dh = 32, 128
        q = (lambda x, *d: x.permute(*d))((x @ wq).reshape(B, Sq, H, Dh), 0, 2, 1, 3)
        scores = torch.einsum("bhqd,bhkd->bhqk", q, k_cache) * (Dh ** -0.5)
        p = _softmax(scores, axis=-1)
        o = torch.einsum("bhqk,bhkd->bhqd", p, v_cache)
        return (lambda x, *d: x.permute(*d))(o, 0, 2, 1, 3).reshape(B, Sq, H * Dh) @ wo

    def _B_ref(x, k_cache, v_cache, wq, wo):
        B, Sq, D = x.shape
        Hq, Dh = 32, 128
        Hkv = k_cache.shape[1]
        rep = Hq // Hkv
        q = (lambda x, *d: x.permute(*d))((x @ wq).reshape(B, Sq, Hq, Dh), 0, 2, 1, 3)
        k = (lambda x, n, axis: torch.repeat_interleave(x, n, dim=axis))(k_cache, rep, axis=1)
        v = (lambda x, n, axis: torch.repeat_interleave(x, n, dim=axis))(v_cache, rep, axis=1)
        scores = torch.einsum("bhqd,bhkd->bhqk", q, k) * (Dh ** -0.5)
        p = _softmax(scores, axis=-1)
        o = torch.einsum("bhqk,bhkd->bhqd", p, v)
        return (lambda x, *d: x.permute(*d))(o, 0, 2, 1, 3).reshape(B, Sq, Hq * Dh) @ wo

    a = _A_ref(A_x, A_k_cache, A_v_cache, A_wq, A_wo)
    b = _B_ref(B_x, B_k_cache, B_v_cache, B_wq, B_wo)
    return torch.concatenate([a, b], axis=-1)
```

```python
import re

TRANS = ("v_exp_f32", "v_log_f32", "v_rcp_f32", "v_rsq_f32", "v_sqrt_f32", "v_sin_f32", "v_cos_f32")

def regs_of(tok):
    tok = tok.strip()
    neg = tok.lstrip("-")
    if neg.startswith("abs(") or neg.startswith("|"):
        neg = neg.replace("abs(", "").replace(")", "").replace("|", "")
    m = re.fullmatch(r"([vas])\[(\d+):(\d+)\]", neg)
    if m:
        return [(m.group(1), i) for i in range(int(m.group(2)), int(m.group(3)) + 1)]
    m = re.fullmatch(r"([vas])(\d+)", neg)
    if m:
        return [(m.group(1), int(m.group(2)))]
    if neg == "vcc":
        return [("s", "vcc")]
    if neg in ("exec", "exec_lo", "exec_hi"):
        return [("s", "exec")]
    if neg == "m0":
        return [("s", "m0")]
    return []

class Ins:
    def __init__(self, text):
        self.text = text
        t = text.split(";")[0].strip()
        self.label = t.endswith(":")
        self.directive = t.startswith(".") or t == ""
        if self.label or self.directive:
            self.op = ""; self.w = []; self.r = []; self.kind = "none"; return
        parts = t.split(None, 1)
        self.op = parts[0]
        rest = parts[1] if len(parts) > 1 else ""
        ops = [o.strip() for o in re.split(r",(?![^\[]*\])", rest)] if rest else []
        self.mods = ""
        if ops:
            last = ops[-1].split(None, 1)
            ops[-1] = last[0]
            self.mods = last[1] if len(last) > 1 else ""
        self.ops = ops
        op = self.op
        self.dpp = "_dpp" in op
        self.w = []; self.r = []
        R = lambda i: regs_of(ops[i]) if i < len(ops) else []
        allr = lambda a: [x for i in range(a, len(ops)) for x in R(i)]
        if op.startswith("v_mfma"):
            self.kind = "mfma"; self.w = R(0); self.a = R(1) + R(2); self.c = R(3); self.r = self.a + self.c
        elif op.startswith("v_dot2"):
            self.kind = "dot"; self.w = R(0); self.a = R(1) + R(2); self.c = R(3); self.r = self.a + self.c
        elif op.startswith("v_cmp"):
            self.kind = "valu"; self.w = R(0); self.r = allr(1)
        elif op.startswith("v_readlane") or op.startswith("v_readfirstlane"):
            self.kind = "valu"; self.w = R(0); self.r = allr(1)
        elif op.startswith("v_permlane"):
            self.kind = "valu"; self.w = R(0) + R(1); self.r = R(0) + R(1)
        elif op.startswith("v_"):
            self.kind = "valu"; self.w = R(0); self.r = allr(1)
            if self.dpp or op.startswith("v_fmac") or op.startswith("v_writelane"):
                self.r = self.r + R(0)
            if op.startswith("v_cndmask") and len(ops) == 3:
                self.r = self.r + [("s", "vcc")]
        elif op.startswith("buffer_load"):
            self.kind = "vmem"; self.w = R(0); self.r = allr(1)
        elif op.startswith("buffer_store") or op.startswith("buffer_atomic"):
            self.kind = "vmem"; self.r = allr(0); self.data = R(0)
            if "sc0" in self.mods and op.startswith("buffer_atomic"): self.w = R(0)
        elif op.startswith("ds_read"):
            self.kind = "ds"; self.w = R(0); self.r = allr(1)
        elif op.startswith("ds_write") or op.startswith("ds_add"):
            self.kind = "ds"; self.r = allr(0)
        elif op.startswith("s_"):
            self.kind = "salu"
            if op.startswith("s_cmp") or op.startswith("s_cbranch") or op in ("s_branch", "s_waitcnt", "s_nop", "s_barrier", "s_endpgm", "s_sleep", "s_setprio"):
                self.r = allr(0)
            else:
                self.w = R(0); self.r = allr(1)
        else:
            raise ValueError("unknown op " + text)
    def states(self):
        if self.kind == "none": return 0
        if self.op == "s_nop": return int(self.ops[0]) + 1
        return 1

def need(prod, cons):
    n = 0
    pw = set(prod.w); cr = set(cons.r); cw = set(cons.w)
    raw = pw & cr
    valu_p = prod.kind in ("valu", "dot")
    valu_c = cons.kind in ("valu", "dot")
    if valu_p:
        vraw = {x for x in raw if x[0] in "va"}
        sraw = {x for x in raw if x[0] == "s"}
        if vraw and valu_c and getattr(cons, "dpp", False): n = max(n, 2)
        if vraw and (cons.op.startswith("v_readlane") or cons.op.startswith("v_readfirstlane")): n = max(n, 1)
        if vraw and cons.op.startswith("v_permlane"): n = max(n, 2)
        if vraw and cons.kind == "mfma": n = max(n, 2)
        if sraw and valu_c: n = max(n, 2)
        if sraw and (cons.op.startswith("v_readlane") or cons.op.startswith("v_writelane")): n = max(n, 4)
        if sraw and cons.kind == "vmem": n = max(n, 5)
        if sraw and cons.kind == "salu": n = max(n, 1)
        if prod.op.replace("_e32", "") in TRANS and vraw and (valu_c or cons.kind == "mfma"): n = max(n, 1)
        if prod.op.replace("_e32", "") in TRANS and vraw and cons.kind in ("ds", "vmem"): n = max(n, 1)
    if prod.kind == "dot":
        if cons.kind == "dot" and cons.op == prod.op:
            if pw & set(cons.a): n = max(n, 3)
        elif (pw & (cr | cw)): n = max(n, 3)
    if prod.kind == "mfma":
        if cons.kind == "mfma":
            if pw & set(cons.a): n = max(n, 8)
            if pw & set(cons.c) and prod.w != cons.c: n = max(n, 6)
            if pw & cw and prod.w != cons.c: n = max(n, 8)
        elif pw & (cr | cw): n = max(n, 8)
        if valu_c and set(prod.c) & cw: n = max(n, 3)
    if prod.kind == "vmem" and ("x4" in prod.op or "x3" in prod.op) and prod.op.startswith("buffer_store"):
        if set(prod.data) & cw: n = max(n, 2)
    if prod.kind == "salu" and ("s", "m0") in pw and cons.kind != "salu" and ("s", "m0") in cr: n = max(n, 1)
    return n

class Asm:
    def __init__(self):
        self.ins = []
    def __call__(self, text):
        for line in text.split("\n"):
            self.ins.append(Ins(line))
    def finish(self):
        out = []
        for i in self.ins:
            if i.kind != "none":
                dist = 0; req = 0
                for p in reversed(out):
                    if dist >= 10: break
                    if p.kind == "none": continue
                    k = need(p, i)
                    if k > dist: req = max(req, k - dist)
                    dist += p.states()
                if req:
                    out.append(Ins(f"s_nop {req-1}"))
            out.append(i)
        self.out = out
        self.check_backedges()
        return "\n".join(("" if (x.label or x.directive) else "    ") + x.text for x in out) + "\n"
    def check_backedges(self):
        out = self.out
        labels = {x.text.split(":")[0].strip(): n for n, x in enumerate(out) if x.label}
        for n, x in enumerate(out):
            if x.op.startswith("s_cbranch") or x.op == "s_branch":
                tgt = labels[x.ops[0]]
                before = [p for p in out[max(0, n-14):n+1] if p.kind != "none"]
                after = [p for p in out[tgt:tgt+14] if p.kind != "none"]
                seq = before + after
                for ci in range(len(before), len(seq)):
                    dist = 0
                    for pi in range(ci-1, -1, -1):
                        if pi < len(before) and need(seq[pi], seq[ci]) > dist:
                            raise RuntimeError(f"hazard across branch: {seq[pi].text} -> {seq[ci].text} dist {dist}")
                        dist += seq[pi].states()
```

```python
import sys, struct
from asmlib import Asm

NAME = "concat_heads__mha_block_cached__gqa_block_cached__decode_kernel"
HEADER = open("concat_heads__mha_block_cached__gqa_block_cached__decode.s.ref").read().split("; Override launch")[0]

def f2u(x): return struct.unpack("<I", struct.pack("<f", x))[0]

def gen(W=5, W2=None, last=0, kvf="nt", wf="nt", diag=0, bump=30, sleep1=8, sleep2=1, name=NAME):
    TL = 8; P = 16; NT = 32
    A = Asm()
    sK, sV, sWQ, sWO, sX, sWS, sOUT, sDBG = 32, 36, 40, 44, 48, 52, 56, 60
    sB, sH, sBR, sOff, sIt, sTmp, sM, sBump, sGrp, sSpin = 64, 65, 66, 67, 68, 69, 70, 71, 72, 73
    sCC = 74
    sCnt = 76
    sWOoff = 78; sOne = 79
    sST = 80
    vLane, vKV0, vKV1, vWQo, vWOo, vXo, vPub, vCon, vOutO, vTmp, vTmp2, vC = range(1, 13)
    vMk = 16; vQ = 20; vA0 = 24; vA1 = 28; vAcc = 32; vTA = 36; vTB = 40
    vM, vL = 44, 45
    vS, vT, vAl, vE, vPk = 46, 47, 48, 49, 50
    vX = 52
    vLdsA, vLdsB, vStamp, vCnt = 56, 57, 58, 59
    vRing = 64
    vSc = 128
    QP, OP, ST, OUTP = 0, 2048, 4352, 4608
    nstamp = [0]
    def stamp():
        if diag:
            A(f"s_memrealtime s[{sST+2*nstamp[0]}:{sST+2*nstamp[0]+1}]")
            nstamp[0] += 1
    def srd(s, nbytes):
        A(f"s_mov_b32 s{s+2}, {nbytes}")
        A(f"s_mov_b32 s{s+3}, 0x20000")

    A(f"{name}:")
    stamp()
    A("s_cmp_ge_u32 s2, 256")
    A("s_cbranch_scc1 L_end")
    A("s_load_dwordx16 s[4:19], s[0:1], 0")
    A("s_load_dwordx8 s[20:27], s[0:1], 64")
    A("s_load_dwordx2 s[28:29], s[0:1], 96")
    A(f"v_lshrrev_b32 v{vTmp}, 6, v0")
    A(f"v_and_b32 v{vLane}, 63, v0")
    A(f"v_readfirstlane_b32 s3, v{vTmp}")
    A(f"s_lshr_b32 s{sB}, s2, 6")
    A(f"s_and_b32 s{sH}, s2, 31")
    A(f"s_bfe_u32 s{sBR}, s2, 0x10005")
    A(f"v_lshlrev_b32 v{vKV0}, 4, v{vLane}")
    A(f"v_add_u32 v{vKV1}, 0x1000, v{vKV0}")
    A(f"v_and_b32 v{vC}, 15, v0")
    A(f"v_lshrrev_b32 v{vTmp}, 4, v{vLane}")
    A(f"v_lshlrev_b32 v{vTmp2}, 4, v{vC}")
    A(f"v_lshl_add_u32 v{vWQo}, v{vTmp}, 13, v{vTmp2}")
    A(f"v_mul_u32_u24 v{vWOo}, 1280, v{vTmp}")
    A(f"v_add_u32 v{vWOo}, v{vWOo}, v{vTmp2}")
    A(f"v_lshl_add_u32 v{vXo}, v{vC}, 2, v{vTmp}")
    A(f"v_lshlrev_b32 v{vXo}, 1, v{vXo}")
    A(f"s_mul_i32 s{sTmp}, s3, 320")
    A(f"s_mul_i32 s{sOff}, s{sB}, 1280")
    A(f"s_add_u32 s{sTmp}, s{sTmp}, s{sOff}")
    A(f"v_add_u32 v{vXo}, s{sTmp}, v{vXo}")
    A(f"v_mul_u32_u24 v{vTmp}, 205, v0")
    A(f"v_lshrrev_b32 v{vTmp}, 10, v{vTmp}")
    A(f"v_lshlrev_b32 v{vPub}, 9, v0")
    A(f"s_lshl_b32 s{sTmp}, s{sH}, 4")
    A(f"v_add_u32 v{vPub}, s{sTmp}, v{vPub}")
    A(f"s_lshl_b32 s{sGrp}, s{sBR}, 2")
    A(f"s_add_u32 s{sGrp}, s{sGrp}, s{sB}")
    A(f"s_lshl_b32 s{sOff}, s{sB}, 5")
    A(f"s_add_u32 s{sOff}, s{sOff}, s{sH}")
    A(f"s_lshl_b32 s{sOff}, s{sOff}, 20")
    A(f"s_mul_i32 s{sTmp}, s{sGrp}, 81920")
    for k in range(4):
        A(f"v_mov_b32 v{vSc+k}, -1")
    for s, n in ((sK, 1 << 20), (sV, 1 << 20), (sWQ, 5242880), (sWO, 5242880), (sX, 5120), (sWS, 81920), (sOUT, 10240), (sDBG, 256)):
        srd(s, n)
    A(f"s_cmp_eq_u32 s{sBR}, 0")
    A("s_waitcnt lgkmcnt(0)")
    stamp()
    A(f"s_cselect_b64 s[{sX}:{sX+1}], s[4:5], s[14:15]")
    A(f"s_cselect_b64 s[{sK}:{sK+1}], s[6:7], s[16:17]")
    A(f"s_cselect_b64 s[{sV}:{sV+1}], s[8:9], s[18:19]")
    A(f"s_cselect_b64 s[{sWQ}:{sWQ+1}], s[10:11], s[20:21]")
    A(f"s_cselect_b64 s[{sWO}:{sWO+1}], s[12:13], s[22:23]")
    A(f"s_add_u32 s{sWS}, s28, s{sTmp}")
    A(f"s_addc_u32 s{sWS+1}, s29, 0")
    A(f"buffer_store_dwordx4 v[{vSc}:{vSc+3}], v{vPub}, s[{sWS}:{sWS+3}], 0 offen sc1")
    for i in range(3):
        A(f"buffer_load_ushort v{vX+i}, v{vXo}, s[{sX}:{sX+3}], 0 offen offset:{128*i}")
    A(f"s_mul_i32 s{sTmp}, s3, {160*8192}")
    A(f"s_lshl_b32 s{sIt}, s{sH}, 8")
    A(f"s_add_u32 s{sTmp}, s{sTmp}, s{sIt}")
    for t in range(40):
        A(f"buffer_load_dwordx4 a[{4*t}:{4*t+3}], v{vWQo}, s[{sWQ}:{sWQ+3}], s{sTmp} offen {wf}")
        if t < 39: A(f"s_add_u32 s{sTmp}, s{sTmp}, 0x8000")
    A(f"s_add_u32 s{sK}, s{sK}, s{sOff}")
    A(f"s_addc_u32 s{sK+1}, s{sK+1}, 0")
    A(f"s_add_u32 s{sV}, s{sV}, s{sOff}")
    A(f"s_addc_u32 s{sV+1}, s{sV+1}, 0")
    A(f"s_lshl_b32 s{sOff}, s3, 13")
    def kvload(n):
        j = n % TL; s = sK if n < TL else sV
        r = vRing + 4 * n
        A(f"buffer_load_dwordx4 v[{r}:{r+3}], v{vKV0 if j < 4 else vKV1}, s[{s}:{s+3}], s{sOff} offen offset:{(j%4)*1024} {kvf}")
    for n in range(P): kvload(n)
    stamp()
    A(f"s_add_u32 s{sOff}, s{sOff}, 0x8000")
    A(f"s_mov_b64 s[{sOUT}:{sOUT+1}], s[24:25]")
    A(f"s_mov_b64 s[{sDBG}:{sDBG+1}], s[26:27]")
    A(f"s_lshl_b32 s{sGrp}, s{sGrp}, 5")
    A(f"s_add_u32 s{sCnt}, s26, s{sGrp}")
    A(f"s_addc_u32 s{sCnt+1}, s27, 0")
    A(f"s_mov_b32 s{sCC}, 0xcccccccc")
    A(f"s_mov_b32 s{sCC+1}, 0xcccccccc")
    A(f"s_cmp_eq_u32 s3, 0")
    A(f"s_cselect_b32 s{sBump}, {bump}, -1")
    A(f"s_lshl_b32 s{sWOoff}, s{sH}, 2")
    A(f"s_add_u32 s{sWOoff}, s{sWOoff}, s3")
    A(f"s_mul_i32 s{sWOoff}, s{sWOoff}, {32*1280}")
    A(f"v_and_b32 v{vTmp}, 1, v{vC}")
    A(f"v_lshlrev_b32 v{vTmp}, 4, v{vTmp}")
    A(f"v_mov_b32 v{vTmp2}, 0xffff")
    A(f"v_lshlrev_b32 v{vTmp2}, v{vTmp}, v{vTmp2}")
    A(f"v_lshrrev_b32 v{vTmp}, 1, v{vC}")
    for k in range(4):
        A(f"v_cmp_eq_u32 vcc, {k}, v{vTmp}")
        A(f"v_cndmask_b32 v{vMk+k}, 0, v{vTmp2}, vcc")
    A(f"v_lshrrev_b32 v{vTmp}, 4, v{vLane}")
    A(f"v_lshlrev_b32 v{vLdsA}, 5, v{vC}")
    A(f"v_lshl_add_u32 v{vLdsA}, v{vTmp}, 4, v{vLdsA}")
    A(f"s_mul_i32 s{sTmp}, s{sH}, 2560")
    A(f"v_lshlrev_b32 v{vCon}, 4, v0")
    A(f"v_add_u32 v{vCon}, s{sTmp}, v{vCon}")
    A(f"v_cmp_gt_u32 vcc, 160, v0")
    A(f"v_mov_b32 v{vTmp2}, 0x7fffffff")
    A(f"v_cndmask_b32 v{vCon}, v{vTmp2}, v{vCon}, vcc")
    A(f"s_mul_i32 s{sTmp}, s{sB}, 2560")
    A(f"s_mul_i32 s{sIt}, s{sBR}, 1280")
    A(f"s_add_u32 s{sTmp}, s{sTmp}, s{sIt}")
    A(f"s_mul_i32 s{sIt}, s{sH}, 40")
    A(f"s_add_u32 s{sTmp}, s{sTmp}, s{sIt}")
    A(f"v_lshrrev_b32 v{vOutO}, 5, v0")
    A(f"v_lshlrev_b32 v{vOutO}, 3, v{vOutO}")
    A(f"v_add_u32 v{vOutO}, s{sTmp}, v{vOutO}")
    A(f"v_cndmask_b32 v{vOutO}, v{vTmp2}, v{vOutO}, vcc")
    A(f"v_mov_b32 v{vM}, 0xff800000")
    A(f"v_mov_b32 v{vL}, 0")
    A(f"v_mov_b32 v{vCnt}, 0")
    def ands(dst, src, lane):
        for k in range(4):
            A(f"v_and_b32_dpp v{dst+k}, v{src}, v{vMk+k} row_newbcast:{lane} row_mask:0xf bank_mask:0xf")
    A("s_waitcnt vmcnt(56)")
    for i in range(3):
        A(f"v_lshl_or_b32 v{vX+i}, v{vX+i}, 16, v{vX+i}")
    ands(vA0, vX, 0)
    for t in range(40):
        cur = vA0 if t % 2 == 0 else vA1; nxt = vA1 if t % 2 == 0 else vA0
        if t < 39: ands(nxt, vX + (t + 1) // 16, (t + 1) % 16)
        A("s_waitcnt vmcnt(55)")
        c = "0" if t == 0 else f"v[{vAcc}:{vAcc+3}]"
        A(f"v_mfma_f32_16x16x32_bf16 v[{vAcc}:{vAcc+3}], v[{cur}:{cur+3}], a[{4*t}:{4*t+3}], {c}")
        A(f"buffer_load_dwordx4 a[{4*t}:{4*t+3}], v{vWOo}, s[{sWO}:{sWO+3}], s{sWOoff} offen offset:{(t%5)*256} {wf}")
        if t % 5 == 4 and t < 39: A(f"s_add_u32 s{sWOoff}, s{sWOoff}, 5120")
    A(f"s_lshl_b32 s{sTmp}, s3, 9")
    A(f"v_add_u32 v{vTmp}, s{sTmp}, v{vLdsA}")
    A("s_mov_b32 exec_hi, 0")
    A(f"ds_write_b128 v{vTmp}, v[{vAcc}:{vAcc+3}] offset:{QP}")
    A("s_mov_b32 exec_hi, -1")
    A(f"v_lshlrev_b32 v{vTmp}, 5, v{vC}")
    A("s_waitcnt lgkmcnt(0)")
    A("s_barrier")
    for w in range(4):
        for hf in range(2):
            r = vSc + 8 * w + 4 * hf
            A(f"ds_read_b128 v[{r}:{r+3}], v{vTmp} offset:{QP + 512*w + 16*hf}")
    for k in range(4):
        A(f"v_mov_b32 v{vAcc+k}, 0")
    for w in range(1, 4):
        A(f"s_waitcnt lgkmcnt({6-2*w})")
        for e in range(8):
            A(f"v_add_f32 v{vSc+e}, v{vSc+e}, v{vSc+8*w+e}")
    for k in range(4):
        A(f"v_cvt_pk_bf16_f32 v{vQ+k}, v{vSc+2*k}, v{vSc+2*k+1}")
    A("s_waitcnt vmcnt(40)")
    stamp()

    DPPF = "row_mask:0xf bank_mask:0xf"
    class St: pass
    st = St()
    def body(w, issue):
        def wait(n):
            A(f"s_waitcnt vmcnt({n})")
            st.landed = max(st.landed, st.issued - n)
        def needl(idx):
            if st.landed <= idx: wait(st.issued - idx - 1)
        def iss(n):
            if issue:
                if st.issued - st.landed > w - 1: wait(w - 1)
                kvload(n); st.issued += 1
        def dots(t, base):
            needl(base + 3)
            for k in range(4):
                for j in range(4):
                    c = "0" if k == 0 else f"v{t+j}"
                    A(f"v_dot2_f32_bf16 v{t+j}, v{vRing+4*(base+j)+k}, v{vQ+k}, {c}")
        dots(vTA, 0); iss(0); iss(1)
        dots(vTB, 4); iss(2); iss(3)
        for (d, s, ctl, bm) in ((0, 0, "row_ror:8", 3), (1, 1, "row_ror:8", 3), (0, 2, "row_ror:8", 12), (1, 3, "row_ror:8", 12),
                                (0, 0, "row_half_mirror", 5), (0, 1, "row_half_mirror", 10),
                                (0, 0, "quad_perm:[1,0,3,2]", 15), (0, 0, "quad_perm:[2,3,0,1]", 15)):
            for t in (vTA, vTB):
                A(f"v_add_f32_dpp v{t+d}, v{t+s}, v{t+s} {ctl} row_mask:0xf bank_mask:{hex(bm)}")
        iss(4)
        A(f"v_cndmask_b32 v{vS}, v{vTA}, v{vTB}, s[{sCC}:{sCC+1}]")
        A(f"v_cvt_pk_bf16_f32 v{vS}, v{vS}, v{vS}")
        A(f"v_and_b32 v{vS}, 0xffff0000, v{vS}")
        A(f"v_mul_f32 v{vS}, {hex(f2u(128 ** -0.5))}, v{vS}")
        A(f"v_cvt_pk_bf16_f32 v{vS}, v{vS}, v{vS}")
        A(f"v_and_b32 v{vS}, 0xffff0000, v{vS}")
        iss(5)
        A(f"v_max_f32_dpp v{vT}, v{vS}, v{vS} quad_perm:[2,3,0,1] {DPPF}")
        A(f"v_max_f32_dpp v{vT}, v{vT}, v{vT} row_ror:4 {DPPF}")
        A(f"v_max_f32_dpp v{vT}, v{vT}, v{vT} row_ror:8 {DPPF}")
        A(f"v_max_f32_dpp v{vT}, v{vT}, v{vT} row_bcast:15 row_mask:0xa bank_mask:0xf")
        A(f"v_max_f32_dpp v{vT}, v{vT}, v{vT} row_bcast:31 row_mask:0xc bank_mask:0xf")
        A(f"v_max_f32 v{vT}, v{vT}, v{vM}")
        A(f"v_readlane_b32 s{sM}, v{vT}, 63")
        iss(6)
        A(f"v_subrev_f32 v{vAl}, s{sM}, v{vM}")
        A(f"v_subrev_f32 v{vE}, s{sM}, v{vS}")
        A(f"v_mov_b32 v{vM}, s{sM}")
        A(f"v_mul_f32 v{vAl}, {hex(f2u(1.4426950408889634))}, v{vAl}")
        A(f"v_mul_f32 v{vE}, {hex(f2u(1.4426950408889634))}, v{vE}")
        A(f"v_exp_f32 v{vAl}, v{vAl}")
        A(f"v_exp_f32 v{vE}, v{vE}")
        iss(7)
        A(f"v_cvt_pk_bf16_f32 v{vPk}, v{vE}, v{vE}")
        for k in range(4):
            A(f"v_mul_f32 v{vAcc+k}, v{vAcc+k}, v{vAl}")
        A(f"v_fma_f32 v{vL}, v{vL}, v{vAl}, v{vE}")
        lane = lambda j: 4 * (j & 3) + 2 * (j >> 2)
        ands(vA0, vPk, lane(0))
        for j in range(8):
            cur = vA0 if j % 2 == 0 else vA1; nxt = vA1 if j % 2 == 0 else vA0
            if j < 7: ands(nxt, vPk, lane(j + 1))
            needl(8 + j)
            r = vRing + 4 * (8 + j)
            A(f"v_mfma_f32_16x16x32_bf16 v[{vAcc}:{vAcc+3}], v[{cur}:{cur+3}], v[{r}:{r+3}], v[{vAcc}:{vAcc+3}]")
            iss(8 + j)
    def loop(lbl, w, it_end, gap_in):
        A(f"{lbl}:")
        A(f"s_cmp_eq_u32 s{sIt}, s{sBump}")
        A(f"s_cbranch_scc0 {lbl}_nb")
        A(f"s_mov_b32 s{sOne}, 1")
        A(f"s_atomic_add s{sOne}, s[{sCnt}:{sCnt+1}], 0x0")
        A(f"{lbl}_nb:")
        st.issued = 16; st.landed = 16 - gap_in
        body(w, True)
        assert st.issued - st.landed <= gap_in, (st.issued, st.landed)
        A(f"s_add_u32 s{sOff}, s{sOff}, 0x8000")
        A(f"s_add_u32 s{sIt}, s{sIt}, 1")
        A(f"s_cmp_lt_u32 s{sIt}, {it_end}")
        A(f"s_cbranch_scc1 {lbl}")
    A(f"s_mov_b32 s{sIt}, 0")
    gap = W
    loop("L_main", W, NT - 1 - last, W)
    if last:
        gap = max(W, W2)
        loop("L_main2", W2, NT - 1, gap)
    st.issued = 16; st.landed = 16 - gap
    body(0, False)
    stamp()
    for ctl in ("row_ror:8 " + DPPF, "row_ror:4 " + DPPF, "row_ror:2 " + DPPF, "row_ror:1 " + DPPF,
                "row_bcast:15 row_mask:0xa bank_mask:0xf", "row_bcast:31 row_mask:0xc bank_mask:0xf"):
        A(f"v_add_f32_dpp v{vL}, v{vL}, v{vL} {ctl}")
    A(f"s_mul_i32 s{sTmp}, s3, 576")
    A(f"v_add_u32 v{vTmp}, s{sTmp}, v{vLdsA}")
    A(f"s_lshl_b32 s{sTmp}, s3, 3")
    A(f"v_mov_b32 v{vTmp2}, s{sTmp}")
    A(f"v_mul_f32 v{vL}, 0.5, v{vL}")
    A("s_mov_b32 exec_hi, 0")
    A(f"ds_write_b128 v{vTmp}, v[{vAcc}:{vAcc+3}] offset:{OP}")
    A("s_mov_b32 exec_lo, 0")
    A("s_mov_b32 exec_hi, 0x80000000")
    A(f"ds_write_b64 v{vTmp2}, v[{vM}:{vM+1}] offset:{ST}")
    A("s_mov_b64 exec, 1")
    A(f"buffer_load_dword v{vCnt}, v{vCnt}, s[{sDBG}:{sDBG+3}], s{sGrp} offen sc1")
    A("s_mov_b64 exec, -1")
    A(f"v_and_b32 v{vTmp}, 3, v{vC}")
    A(f"v_lshlrev_b32 v{vTmp2}, 3, v{vTmp}")
    A(f"v_mul_u32_u24 v{vTmp}, 576, v{vTmp}")
    A(f"v_and_b32 v{vT}, 12, v{vC}")
    A(f"v_lshrrev_b32 v{vS}, 4, v{vLane}")
    A(f"v_add_u32 v{vT}, v{vT}, v{vS}")
    A(f"v_lshl_add_u32 v{vTmp}, v{vT}, 2, v{vTmp}")
    A(f"s_lshl_b32 s{sTmp}, s3, 7")
    A(f"v_add_u32 v{vTmp}, s{sTmp}, v{vTmp}")
    A("s_waitcnt lgkmcnt(0)")
    A("s_barrier")
    stamp()
    A(f"ds_read_b64 v[{vM}:{vM+1}], v{vTmp2} offset:{ST}")
    A(f"ds_read_b32 v{vTA}, v{vTmp} offset:{OP}")
    A(f"ds_read_b32 v{vTA+1}, v{vTmp} offset:{OP+64}")
    A("s_waitcnt lgkmcnt(2)" if not diag else "s_waitcnt lgkmcnt(0)")
    A(f"v_max_f32_dpp v{vT}, v{vM}, v{vM} quad_perm:[1,0,3,2] {DPPF}")
    A(f"v_max_f32_dpp v{vT}, v{vT}, v{vT} quad_perm:[2,3,0,1] {DPPF}")
    A(f"v_sub_f32 v{vE}, v{vM}, v{vT}")
    A(f"v_mul_f32 v{vE}, {hex(f2u(1.4426950408889634))}, v{vE}")
    A(f"v_exp_f32 v{vE}, v{vE}")
    A(f"v_mul_f32 v{vL}, v{vL}, v{vE}")
    A("s_waitcnt lgkmcnt(0)")
    A(f"v_mul_f32 v{vTA}, v{vTA}, v{vE}")
    A(f"v_mul_f32 v{vTA+1}, v{vTA+1}, v{vE}")
    for q in ("quad_perm:[1,0,3,2]", "quad_perm:[2,3,0,1]"):
        for r in (vL, vTA, vTA + 1):
            A(f"v_add_f32_dpp v{r}, v{r}, v{r} {q} {DPPF}")
    A(f"v_rcp_f32 v{vL}, v{vL}")
    A(f"v_mul_f32 v{vTA}, v{vTA}, v{vL}")
    A(f"v_mul_f32 v{vTA+1}, v{vTA+1}, v{vL}")
    A(f"v_cvt_pk_bf16_f32 v{vTA}, v{vTA}, v{vTA}")
    A(f"v_cvt_pk_bf16_f32 v{vTA+1}, v{vTA+1}, v{vTA+1}")
    vO = vRing
    ands(vA0, vTA, 0)
    for tq in range(8):
        cur = vA0 if tq % 2 == 0 else vA1; nxt = vA1 if tq % 2 == 0 else vA0
        if tq < 7: ands(nxt, vTA + ((tq + 1) >> 2), 4 * ((tq + 1) & 3))
        for cb in range(5):
            i = tq * 5 + cb
            c = "0" if tq == 0 else f"v[{vO+4*cb}:{vO+4*cb+3}]"
            A(f"v_mfma_f32_16x16x32_bf16 v[{vO+4*cb}:{vO+4*cb+3}], v[{cur}:{cur+3}], a[{4*i}:{4*i+3}], {c}")
    A(f"s_mul_i32 s{sTmp}, s3, 2560")
    A(f"v_add_u32 v{vTmp}, s{sTmp}, v{vLdsA}")
    A(f"v_lshlrev_b32 v{vTmp2}, 4, v0")
    A("s_mov_b32 exec_hi, 0")
    for cb in range(5):
        A(f"ds_write_b128 v{vTmp}, v[{vO+4*cb}:{vO+4*cb+3}] offset:{OUTP+512*cb}")
    A("s_mov_b32 exec_hi, -1")
    A("s_waitcnt lgkmcnt(0)")
    A("s_barrier")
    stamp()
    A("s_cmp_eq_u32 s3, 3")
    A("s_cbranch_scc1 L_fin")
    for w in range(4):
        A(f"ds_read_b128 v[{vSc+4*w}:{vSc+4*w+3}], v{vTmp2} offset:{OUTP+2560*w}")
    for w in range(1, 4):
        A(f"s_waitcnt lgkmcnt({3-w})" if not diag else "s_waitcnt lgkmcnt(0)")
        for e in range(4):
            A(f"v_add_f32 v{vSc+e}, v{vSc+e}, v{vSc+4*w+e}")
    for e in range(4):
        A(f"v_min_u32 v{vSc+e}, -2, v{vSc+e}")
    A(f"buffer_store_dwordx4 v[{vSc}:{vSc+3}], v{vPub}, s[{sWS}:{sWS+3}], 0 offen sc1")
    stamp()
    A(f"s_mov_b32 s{sSpin}, 0")
    A("s_cmp_lg_u32 s3, 0")
    A("s_cbranch_scc1 L_s1done")
    A("s_waitcnt vmcnt(1)")
    A("s_mov_b64 exec, 1")
    A("L_s1:")
    A(f"v_readfirstlane_b32 s{sTmp}, v{vCnt}")
    A(f"s_cmp_ge_u32 s{sTmp}, 32")
    A("s_cbranch_scc1 L_s1out")
    A(f"s_add_u32 s{sSpin}, s{sSpin}, 1")
    A(f"s_cmp_ge_u32 s{sSpin}, 0x20000")
    A("s_cbranch_scc1 L_s1out")
    if sleep1: A(f"s_sleep {sleep1}")
    A(f"v_mov_b32 v{vTmp}, 0")
    A(f"buffer_load_dword v{vCnt}, v{vTmp}, s[{sDBG}:{sDBG+3}], s{sGrp} offen sc1")
    A("s_waitcnt vmcnt(0)")
    A("s_branch L_s1")
    A("L_s1out:")
    A("s_mov_b64 exec, -1")
    A("L_s1done:")
    A("s_barrier")
    stamp()
    vD = vSc + 16
    A("L_s2:")
    A(f"buffer_load_dwordx4 v[{vD}:{vD+3}], v{vCon}, s[{sWS}:{sWS+3}], 0 offen sc1")
    A(f"s_add_u32 s{sSpin}, s{sSpin}, 1")
    A("s_waitcnt vmcnt(0)")
    A(f"v_max3_u32 v{vTmp}, v{vD}, v{vD+1}, v{vD+2}")
    A(f"v_max_u32 v{vTmp}, v{vTmp}, v{vD+3}")
    A(f"v_cmp_eq_u32 vcc, -1, v{vTmp}")
    A("s_and_b64 exec, exec, vcc")
    A("s_cbranch_execz L_s2out")
    A(f"s_cmp_ge_u32 s{sSpin}, 0x40000")
    A("s_cbranch_scc1 L_s2out")
    if sleep2: A(f"s_sleep {sleep2}")
    A("s_branch L_s2")
    A("L_s2out:")
    A("s_mov_b64 exec, -1")
    for ctl in ("row_ror:8 " + DPPF, "row_ror:4 " + DPPF, "row_ror:2 " + DPPF, "row_ror:1 " + DPPF, "row_bcast:15 row_mask:0xa bank_mask:0xf"):
        for e in range(4):
            A(f"v_add_f32_dpp v{vD+e}, v{vD+e}, v{vD+e} {ctl}")
    A(f"v_cvt_pk_bf16_f32 v{vD}, v{vD}, v{vD+1}")
    A(f"v_cvt_pk_bf16_f32 v{vD+1}, v{vD+2}, v{vD+3}")
    A("s_mov_b32 exec_lo, 0x10000")
    A("s_mov_b32 exec_hi, 0x10000")
    A(f"buffer_store_dwordx2 v[{vD}:{vD+1}], v{vOutO}, s[{sOUT}:{sOUT+3}], 0 offen")
    A("L_fin:")
    if diag:
        stamp()
        A("s_mov_b64 exec, -1")
        A(f"s_getreg_b32 s{sTmp}, hwreg(HW_REG_XCC_ID)")
        A("s_waitcnt lgkmcnt(0)")
        A(f"v_mov_b32 v{vStamp}, 0")
        for k in range(nstamp[0]):
            A(f"v_writelane_b32 v{vStamp}, s{sST+2*k}, {k}")
        A(f"v_writelane_b32 v{vStamp}, s{sTmp}, 14")
        A(f"v_writelane_b32 v{vStamp}, s{sSpin}, 15")
        A(f"s_add_u32 s{sX}, s28, 0x100000")
        A(f"s_addc_u32 s{sX+1}, s29, 0")
        A(f"s_mov_b32 s{sX+2}, 0x10000")
        A(f"s_lshl_b32 s{sTmp}, s2, 2")
        A(f"s_add_u32 s{sTmp}, s{sTmp}, s3")
        A(f"s_lshl_b32 s{sTmp}, s{sTmp}, 6")
        A(f"v_lshlrev_b32 v{vTmp}, 2, v{vLane}")
        A("s_mov_b64 exec, 0xffff")
        A(f"buffer_store_dword v{vStamp}, v{vTmp}, s[{sX}:{sX+3}], s{sTmp} offen")
    A("L_end:")
    A("s_endpgm")
    code = A.finish()
    txt = HEADER + "; Override launch geometry by editing the next line (default: block=256,\n; grid=ceil(out_elems/256), lds=0). Harness parses it; keep it on one line.\n"
    txt += "; @launch grid=(256,1,1) block=(256,1,1) lds=16384\n"
    txt += f'''.amdgcn_target "amdgcn-amd-amdhsa--gfx950"
.text
.globl {name}
.p2align 8
.type {name},@function
''' + code + f'''.section .rodata,"a"
.p2align 6
.amdhsa_kernel {name}
  .amdhsa_next_free_vgpr 416
  .amdhsa_next_free_sgpr 102
  .amdhsa_accum_offset 256
  .amdhsa_group_segment_fixed_size 0
  .amdhsa_kernarg_size 104
  .amdhsa_user_sgpr_count 2
  .amdhsa_user_sgpr_kernarg_segment_ptr 1
  .amdhsa_system_sgpr_workgroup_id_x 1
  .amdhsa_float_denorm_mode_32 3
.end_amdhsa_kernel
'''
    return txt

if __name__ == "__main__":
    import json
    kw = json.loads(sys.argv[1]) if len(sys.argv) > 1 else {}
    sys.stdout.write(gen(**kw))
```

```python
import sys, struct
from asmlib import Asm

NAME = "concat_heads__mha_block_cached__gqa_block_cached__decode_kernel"
HEADER = open("concat_heads__mha_block_cached__gqa_block_cached__decode.s.ref").read().split("; Override launch")[0]

def f2u(x): return struct.unpack("<I", struct.pack("<f", x))[0]

def gen(W=5, W2=None, last=0, kvf="nt", wf="nt", diag=0, bump=30, sleep1=8, sleep2=1, name=NAME):
    TL = 8; P = 16; NT = 32
    A = Asm()
    sK, sV, sWQ, sWO, sX, sWS, sOUT, sDBG = 32, 36, 40, 44, 48, 52, 56, 60
    sB, sH, sBR, sOff, sIt, sTmp, sM, sBump, sGrp, sSpin = 64, 65, 66, 67, 68, 69, 70, 71, 72, 73
    sCC = 74
    sCnt = 76
    sWOoff = 78; sOne = 79
    sST = 80
    vLane, vKV0, vKV1, vWQo, vWOo, vXo, vPub, vCon, vOutO, vTmp, vTmp2, vC = range(1, 13)
    vMk = 16; vQ = 20; vA0 = 24; vA1 = 28; vAcc = 32; vTA = 36; vTB = 40
    vM, vL = 44, 45
    vS, vT, vAl, vE, vPk = 46, 47, 48, 49, 50
    vX = 52
    vLdsA, vLdsB, vStamp, vCnt = 56, 57, 58, 59
    vRing = 64
    vSc = 128
    QP, OP, ST, OUTP = 0, 2048, 4352, 4608
    nstamp = [0]
    def stamp():
        if diag:
            A(f"s_memrealtime s[{sST+2*nstamp[0]}:{sST+2*nstamp[0]+1}]")
            nstamp[0] += 1
    def srd(s, nbytes):
        A(f"s_mov_b32 s{s+2}, {nbytes}")
        A(f"s_mov_b32 s{s+3}, 0x20000")

    A(f"{name}:")
    stamp()
    A("s_cmp_ge_u32 s2, 256")
    A("s_cbranch_scc1 L_end")
    A("s_load_dwordx16 s[4:19], s[0:1], 0")
    A("s_load_dwordx8 s[20:27], s[0:1], 64")
    A("s_load_dwordx2 s[28:29], s[0:1], 96")
    A(f"v_lshrrev_b32 v{vTmp}, 6, v0")
    A(f"v_and_b32 v{vLane}, 63, v0")
    A(f"v_readfirstlane_b32 s3, v{vTmp}")
    A(f"s_lshr_b32 s{sB}, s2, 6")
    A(f"s_and_b32 s{sH}, s2, 31")
    A(f"s_bfe_u32 s{sBR}, s2, 0x10005")
    A(f"v_lshlrev_b32 v{vKV0}, 4, v{vLane}")
    A(f"v_add_u32 v{vKV1}, 0x1000, v{vKV0}")
    A(f"v_and_b32 v{vC}, 15, v0")
    A(f"v_lshrrev_b32 v{vTmp}, 4, v{vLane}")
    A(f"v_lshlrev_b32 v{vTmp2}, 4, v{vC}")
    A(f"v_lshl_add_u32 v{vWQo}, v{vTmp}, 13, v{vTmp2}")
    A(f"v_mul_u32_u24 v{vWOo}, 1280, v{vTmp}")
    A(f"v_add_u32 v{vWOo}, v{vWOo}, v{vTmp2}")
    A(f"v_lshl_add_u32 v{vXo}, v{vC}, 2, v{vTmp}")
    A(f"v_lshlrev_b32 v{vXo}, 1, v{vXo}")
    A(f"s_mul_i32 s{sTmp}, s3, 320")
    A(f"s_mul_i32 s{sOff}, s{sB}, 1280")
    A(f"s_add_u32 s{sTmp}, s{sTmp}, s{sOff}")
    A(f"v_add_u32 v{vXo}, s{sTmp}, v{vXo}")
    A(f"v_mul_u32_u24 v{vTmp}, 205, v0")
    A(f"v_lshrrev_b32 v{vTmp}, 10, v{vTmp}")
    A(f"v_lshlrev_b32 v{vPub}, 9, v0")
    A(f"s_lshl_b32 s{sTmp}, s{sH}, 4")
    A(f"v_add_u32 v{vPub}, s{sTmp}, v{vPub}")
    A(f"s_lshl_b32 s{sGrp}, s{sBR}, 2")
    A(f"s_add_u32 s{sGrp}, s{sGrp}, s{sB}")
    A(f"s_lshl_b32 s{sOff}, s{sB}, 5")
    A(f"s_add_u32 s{sOff}, s{sOff}, s{sH}")
    A(f"s_lshl_b32 s{sOff}, s{sOff}, 20")
    A(f"s_mul_i32 s{sTmp}, s{sGrp}, 81920")
    for k in range(4):
        A(f"v_mov_b32 v{vSc+k}, -1")
    for s, n in ((sK, 1 << 20), (sV, 1 << 20), (sWQ, 5242880), (sWO, 5242880), (sX, 5120), (sWS, 81920), (sOUT, 10240), (sDBG, 256)):
        srd(s, n)
    A(f"s_cmp_eq_u32 s{sBR}, 0")
    A("s_waitcnt lgkmcnt(0)")
    stamp()
    A(f"s_cselect_b64 s[{sX}:{sX+1}], s[4:5], s[14:15]")
    A(f"s_cselect_b64 s[{sK}:{sK+1}], s[6:7], s[16:17]")
    A(f"s_cselect_b64 s[{sV}:{sV+1}], s[8:9], s[18:19]")
    A(f"s_cselect_b64 s[{sWQ}:{sWQ+1}], s[10:11], s[20:21]")
    A(f"s_cselect_b64 s[{sWO}:{sWO+1}], s[12:13], s[22:23]")
    A(f"s_add_u32 s{sWS}, s28, s{sTmp}")
    A(f"s_addc_u32 s{sWS+1}, s29, 0")
    A(f"buffer_store_dwordx4 v[{vSc}:{vSc+3}], v{vPub}, s[{sWS}:{sWS+3}], 0 offen sc1")
    for i in range(3):
        A(f"buffer_load_ushort v{vX+i}, v{vXo}, s[{sX}:{sX+3}], 0 offen offset:{128*i}")
    A(f"s_mul_i32 s{sTmp}, s3, {160*8192}")
    A(f"s_lshl_b32 s{sIt}, s{sH}, 8")
    A(f"s_add_u32 s{sTmp}, s{sTmp}, s{sIt}")
    for t in range(40):
        A(f"buffer_load_dwordx4 a[{4*t}:{4*t+3}], v{vWQo}, s[{sWQ}:{sWQ+3}], s{sTmp} offen {wf}")
        if t < 39: A(f"s_add_u32 s{sTmp}, s{sTmp}, 0x8000")
    A(f"s_add_u32 s{sK}, s{sK}, s{sOff}")
    A(f"s_addc_u32 s{sK+1}, s{sK+1}, 0")
    A(f"s_add_u32 s{sV}, s{sV}, s{sOff}")
    A(f"s_addc_u32 s{sV+1}, s{sV+1}, 0")
    A(f"s_lshl_b32 s{sOff}, s3, 13")
    def kvload(n):
        j = n % TL; s = sK if n < TL else sV
        r = vRing + 4 * n
        A(f"buffer_load_dwordx4 v[{r}:{r+3}], v{vKV0 if j < 4 else vKV1}, s[{s}:{s+3}], s{sOff} offen offset:{(j%4)*1024} {kvf}")
    for n in range(P): kvload(n)
    stamp()
    A(f"s_add_u32 s{sOff}, s{sOff}, 0x8000")
    A(f"s_mov_b64 s[{sOUT}:{sOUT+1}], s[24:25]")
    A(f"s_mov_b64 s[{sDBG}:{sDBG+1}], s[26:27]")
    A(f"s_lshl_b32 s{sGrp}, s{sGrp}, 5")
    A(f"s_add_u32 s{sCnt}, s26, s{sGrp}")
    A(f"s_addc_u32 s{sCnt+1}, s27, 0")
    A(f"s_mov_b32 s{sCC}, 0xcccccccc")
    A(f"s_mov_b32 s{sCC+1}, 0xcccccccc")
    A(f"s_cmp_eq_u32 s3, 0")
    A(f"s_cselect_b32 s{sBump}, {bump}, -1")
    A(f"s_lshl_b32 s{sWOoff}, s{sH}, 2")
    A(f"s_add_u32 s{sWOoff}, s{sWOoff}, s3")
    A(f"s_mul_i32 s{sWOoff}, s{sWOoff}, {32*1280}")
    A(f"v_and_b32 v{vTmp}, 1, v{vC}")
    A(f"v_lshlrev_b32 v{vTmp}, 4, v{vTmp}")
    A(f"v_mov_b32 v{vTmp2}, 0xffff")
    A(f"v_lshlrev_b32 v{vTmp2}, v{vTmp}, v{vTmp2}")
    A(f"v_lshrrev_b32 v{vTmp}, 1, v{vC}")
    for k in range(4):
        A(f"v_cmp_eq_u32 vcc, {k}, v{vTmp}")
        A(f"v_cndmask_b32 v{vMk+k}, 0, v{vTmp2}, vcc")
    A(f"v_lshrrev_b32 v{vTmp}, 4, v{vLane}")
    A(f"v_lshlrev_b32 v{vLdsA}, 5, v{vC}")
    A(f"v_lshl_add_u32 v{vLdsA}, v{vTmp}, 4, v{vLdsA}")
    A(f"s_mul_i32 s{sTmp}, s{sH}, 2560")
    A(f"v_lshlrev_b32 v{vCon}, 4, v0")
    A(f"v_add_u32 v{vCon}, s{sTmp}, v{vCon}")
    A(f"v_cmp_gt_u32 vcc, 160, v0")
    A(f"v_mov_b32 v{vTmp2}, 0x7fffffff")
    A(f"v_cndmask_b32 v{vCon}, v{vTmp2}, v{vCon}, vcc")
    A(f"s_mul_i32 s{sTmp}, s{sB}, 2560")
    A(f"s_mul_i32 s{sIt}, s{sBR}, 1280")
    A(f"s_add_u32 s{sTmp}, s{sTmp}, s{sIt}")
    A(f"s_mul_i32 s{sIt}, s{sH}, 40")
    A(f"s_add_u32 s{sTmp}, s{sTmp}, s{sIt}")
    A(f"v_lshrrev_b32 v{vOutO}, 5, v0")
    A(f"v_lshlrev_b32 v{vOutO}, 3, v{vOutO}")
    A(f"v_add_u32 v{vOutO}, s{sTmp}, v{vOutO}")
    A(f"v_cndmask_b32 v{vOutO}, v{vTmp2}, v{vOutO}, vcc")
    A(f"v_mov_b32 v{vM}, 0xff800000")
    A(f"v_mov_b32 v{vL}, 0")
    A(f"v_mov_b32 v{vCnt}, 0")
    def ands(dst, src, lane):
        for k in range(4):
            A(f"v_and_b32_dpp v{dst+k}, v{src}, v{vMk+k} row_newbcast:{lane} row_mask:0xf bank_mask:0xf")
    A("s_waitcnt vmcnt(56)")
    for i in range(3):
        A(f"v_lshl_or_b32 v{vX+i}, v{vX+i}, 16, v{vX+i}")
    ands(vA0, vX, 0)
    for t in range(40):
        cur = vA0 if t % 2 == 0 else vA1; nxt = vA1 if t % 2 == 0 else vA0
        if t < 39: ands(nxt, vX + (t + 1) // 16, (t + 1) % 16)
        A("s_waitcnt vmcnt(55)")
        c = "0" if t == 0 else f"v[{vAcc}:{vAcc+3}]"
        A(f"v_mfma_f32_16x16x32_bf16 v[{vAcc}:{vAcc+3}], v[{cur}:{cur+3}], a[{4*t}:{4*t+3}], {c}")
        A(f"buffer_load_dwordx4 a[{4*t}:{4*t+3}], v{vWOo}, s[{sWO}:{sWO+3}], s{sWOoff} offen offset:{(t%5)*256} {wf}")
        if t % 5 == 4 and t < 39: A(f"s_add_u32 s{sWOoff}, s{sWOoff}, 5120")
    A(f"s_lshl_b32 s{sTmp}, s3, 9")
    A(f"v_add_u32 v{vTmp}, s{sTmp}, v{vLdsA}")
    A("s_mov_b32 exec_hi, 0")
    A(f"ds_write_b128 v{vTmp}, v[{vAcc}:{vAcc+3}] offset:{QP}")
    A("s_mov_b32 exec_hi, -1")
    A(f"v_lshlrev_b32 v{vTmp}, 5, v{vC}")
    A("s_waitcnt lgkmcnt(0)")
    A("s_barrier")
    for w in range(4):
        for hf in range(2):
            r = vSc + 8 * w + 4 * hf
            A(f"ds_read_b128 v[{r}:{r+3}], v{vTmp} offset:{QP + 512*w + 16*hf}")
    for k in range(4):
        A(f"v_mov_b32 v{vAcc+k}, 0")
    for w in range(1, 4):
        A(f"s_waitcnt lgkmcnt({6-2*w})")
        for e in range(8):
            A(f"v_add_f32 v{vSc+e}, v{vSc+e}, v{vSc+8*w+e}")
    for k in range(4):
        A(f"v_cvt_pk_bf16_f32 v{vQ+k}, v{vSc+2*k}, v{vSc+2*k+1}")
    A("s_waitcnt vmcnt(40)")
    stamp()

    DPPF = "row_mask:0xf bank_mask:0xf"
    class St: pass
    st = St()
    def body(w, issue):
        def wait(n):
            A(f"s_waitcnt vmcnt({n})")
            st.landed = max(st.landed, st.issued - n)
        def needl(idx):
            if st.landed <= idx: wait(st.issued - idx - 1)
        def iss(n):
            if issue:
                if st.issued - st.landed > w - 1: wait(w - 1)
                kvload(n); st.issued += 1
        def dots(t, base):
            needl(base + 3)
            for k in range(4):
                for j in range(4):
                    c = "0" if k == 0 else f"v{t+j}"
                    A(f"v_dot2_f32_bf16 v{t+j}, v{vRing+4*(base+j)+k}, v{vQ+k}, {c}")
        dots(vTA, 0); iss(0); iss(1)
        dots(vTB, 4); iss(2); iss(3)
        for (d, s, ctl, bm) in ((0, 0, "row_ror:8", 3), (1, 1, "row_ror:8", 3), (0, 2, "row_ror:8", 12), (1, 3, "row_ror:8", 12),
                                (0, 0, "row_half_mirror", 5), (0, 1, "row_half_mirror", 10),
                                (0, 0, "quad_perm:[1,0,3,2]", 15), (0, 0, "quad_perm:[2,3,0,1]", 15)):
            for t in (vTA, vTB):
                A(f"v_add_f32_dpp v{t+d}, v{t+s}, v{t+s} {ctl} row_mask:0xf bank_mask:{hex(bm)}")
        iss(4)
        A(f"v_cndmask_b32 v{vS}, v{vTA}, v{vTB}, s[{sCC}:{sCC+1}]")
        A(f"v_cvt_pk_bf16_f32 v{vS}, v{vS}, v{vS}")
        A(f"v_and_b32 v{vS}, 0xffff0000, v{vS}")
        A(f"v_mul_f32 v{vS}, {hex(f2u(128 ** -0.5))}, v{vS}")
        A(f"v_cvt_pk_bf16_f32 v{vS}, v{vS}, v{vS}")
        A(f"v_and_b32 v{vS}, 0xffff0000, v{vS}")
        iss(5)
        A(f"v_max_f32_dpp v{vT}, v{vS}, v{vS} quad_perm:[2,3,0,1] {DPPF}")
        A(f"v_max_f32_dpp v{vT}, v{vT}, v{vT} row_ror:4 {DPPF}")
        A(f"v_max_f32_dpp v{vT}, v{vT}, v{vT} row_ror:8 {DPPF}")
        A(f"v_max_f32_dpp v{vT}, v{vT}, v{vT} row_bcast:15 row_mask:0xa bank_mask:0xf")
        A(f"v_max_f32_dpp v{vT}, v{vT}, v{vT} row_bcast:31 row_mask:0xc bank_mask:0xf")
        A(f"v_max_f32 v{vT}, v{vT}, v{vM}")
        A(f"v_readlane_b32 s{sM}, v{vT}, 63")
        iss(6)
        A(f"v_subrev_f32 v{vAl}, s{sM}, v{vM}")
        A(f"v_subrev_f32 v{vE}, s{sM}, v{vS}")
        A(f"v_mov_b32 v{vM}, s{sM}")
        A(f"v_mul_f32 v{vAl}, {hex(f2u(1.4426950408889634))}, v{vAl}")
        A(f"v_mul_f32 v{vE}, {hex(f2u(1.4426950408889634))}, v{vE}")
        A(f"v_exp_f32 v{vAl}, v{vAl}")
        A(f"v_exp_f32 v{vE}, v{vE}")
        iss(7)
        A(f"v_cvt_pk_bf16_f32 v{vPk}, v{vE}, v{vE}")
        for k in range(4):
            A(f"v_mul_f32 v{vAcc+k}, v{vAcc+k}, v{vAl}")
        A(f"v_fma_f32 v{vL}, v{vL}, v{vAl}, v{vE}")
        lane = lambda j: 4 * (j & 3) + 2 * (j >> 2)
        ands(vA0, vPk, lane(0))
        for j in range(8):
            cur = vA0 if j % 2 == 0 else vA1; nxt = vA1 if j % 2 == 0 else vA0
            if j < 7: ands(nxt, vPk, lane(j + 1))
            needl(8 + j)
            r = vRing + 4 * (8 + j)
            A(f"v_mfma_f32_16x16x32_bf16 v[{vAcc}:{vAcc+3}], v[{cur}:{cur+3}], v[{r}:{r+3}], v[{vAcc}:{vAcc+3}]")
            iss(8 + j)
    def loop(lbl, w, it_end, gap_in):
        A(f"{lbl}:")
        A(f"s_cmp_eq_u32 s{sIt}, s{sBump}")
        A(f"s_cbranch_scc0 {lbl}_nb")
        A(f"s_mov_b32 s{sOne}, 1")
        A(f"s_atomic_add s{sOne}, s[{sCnt}:{sCnt+1}], 0x0")
        A(f"{lbl}_nb:")
        st.issued = 16; st.landed = 16 - gap_in
        body(w, True)
        assert st.issued - st.landed <= gap_in, (st.issued, st.landed)
        A(f"s_add_u32 s{sOff}, s{sOff}, 0x8000")
        A(f"s_add_u32 s{sIt}, s{sIt}, 1")
        A(f"s_cmp_lt_u32 s{sIt}, {it_end}")
        A(f"s_cbranch_scc1 {lbl}")
    A(f"s_mov_b32 s{sIt}, 0")
    gap = W
    loop("L_main", W, NT - 1 - last, W)
    if last:
        gap = max(W, W2)
        loop("L_main2", W2, NT - 1, gap)
    st.issued = 16; st.landed = 16 - gap
    body(0, False)
    stamp()
    for ctl in ("row_ror:8 " + DPPF, "row_ror:4 " + DPPF, "row_ror:2 " + DPPF, "row_ror:1 " + DPPF,
                "row_bcast:15 row_mask:0xa bank_mask:0xf", "row_bcast:31 row_mask:0xc bank_mask:0xf"):
        A(f"v_add_f32_dpp v{vL}, v{vL}, v{vL} {ctl}")
    A(f"s_mul_i32 s{sTmp}, s3, 576")
    A(f"v_add_u32 v{vTmp}, s{sTmp}, v{vLdsA}")
    A(f"s_lshl_b32 s{sTmp}, s3, 3")
    A(f"v_mov_b32 v{vTmp2}, s{sTmp}")
    A(f"v_mul_f32 v{vL}, 0.5, v{vL}")
    A("s_mov_b32 exec_hi, 0")
    A(f"ds_write_b128 v{vTmp}, v[{vAcc}:{vAcc+3}] offset:{OP}")
    A("s_mov_b32 exec_lo, 0")
    A("s_mov_b32 exec_hi, 0x80000000")
    A(f"ds_write_b64 v{vTmp2}, v[{vM}:{vM+1}] offset:{ST}")
    A("s_mov_b64 exec, 1")
    A(f"buffer_load_dword v{vCnt}, v{vCnt}, s[{sDBG}:{sDBG+3}], s{sGrp} offen sc1")
    A("s_mov_b64 exec, -1")
    A(f"v_and_b32 v{vTmp}, 3, v{vC}")
    A(f"v_lshlrev_b32 v{vTmp2}, 3, v{vTmp}")
    A(f"v_mul_u32_u24 v{vTmp}, 576, v{vTmp}")
    A(f"v_and_b32 v{vT}, 12, v{vC}")
    A(f"v_lshrrev_b32 v{vS}, 4, v{vLane}")
    A(f"v_add_u32 v{vT}, v{vT}, v{vS}")
    A(f"v_lshl_add_u32 v{vTmp}, v{vT}, 2, v{vTmp}")
    A(f"s_lshl_b32 s{sTmp}, s3, 7")
    A(f"v_add_u32 v{vTmp}, s{sTmp}, v{vTmp}")
    A("s_waitcnt lgkmcnt(0)")
    A("s_barrier")
    stamp()
    A(f"ds_read_b64 v[{vM}:{vM+1}], v{vTmp2} offset:{ST}")
    A(f"ds_read_b32 v{vTA}, v{vTmp} offset:{OP}")
    A(f"ds_read_b32 v{vTA+1}, v{vTmp} offset:{OP+64}")
    A("s_waitcnt lgkmcnt(2)" if not diag else "s_waitcnt lgkmcnt(0)")
    A(f"v_max_f32_dpp v{vT}, v{vM}, v{vM} quad_perm:[1,0,3,2] {DPPF}")
    A(f"v_max_f32_dpp v{vT}, v{vT}, v{vT} quad_perm:[2,3,0,1] {DPPF}")
    A(f"v_sub_f32 v{vE}, v{vM}, v{vT}")
    A(f"v_mul_f32 v{vE}, {hex(f2u(1.4426950408889634))}, v{vE}")
    A(f"v_exp_f32 v{vE}, v{vE}")
    A(f"v_mul_f32 v{vL}, v{vL}, v{vE}")
    A("s_waitcnt lgkmcnt(0)")
    A(f"v_mul_f32 v{vTA}, v{vTA}, v{vE}")
    A(f"v_mul_f32 v{vTA+1}, v{vTA+1}, v{vE}")
    for q in ("quad_perm:[1,0,3,2]", "quad_perm:[2,3,0,1]"):
        for r in (vL, vTA, vTA + 1):
            A(f"v_add_f32_dpp v{r}, v{r}, v{r} {q} {DPPF}")
    A(f"v_rcp_f32 v{vL}, v{vL}")
    A(f"v_mul_f32 v{vTA}, v{vTA}, v{vL}")
    A(f"v_mul_f32 v{vTA+1}, v{vTA+1}, v{vL}")
    A(f"v_cvt_pk_bf16_f32 v{vTA}, v{vTA}, v{vTA}")
    A(f"v_cvt_pk_bf16_f32 v{vTA+1}, v{vTA+1}, v{vTA+1}")
    vO = vRing
    ands(vA0, vTA, 0)
    for tq in range(8):
        cur = vA0 if tq % 2 == 0 else vA1; nxt = vA1 if tq % 2 == 0 else vA0
        if tq < 7: ands(nxt, vTA + ((tq + 1) >> 2), 4 * ((tq + 1) & 3))
        for cb in range(5):
            i = tq * 5 + cb
            c = "0" if tq == 0 else f"v[{vO+4*cb}:{vO+4*cb+3}]"
            A(f"v_mfma_f32_16x16x32_bf16 v[{vO+4*cb}:{vO+4*cb+3}], v[{cur}:{cur+3}], a[{4*i}:{4*i+3}], {c}")
    A(f"s_mul_i32 s{sTmp}, s3, 2560")
    A(f"v_add_u32 v{vTmp}, s{sTmp}, v{vLdsA}")
    A(f"v_lshlrev_b32 v{vTmp2}, 4, v0")
    A("s_mov_b32 exec_hi, 0")
    for cb in range(5):
        A(f"ds_write_b128 v{vTmp}, v[{vO+4*cb}:{vO+4*cb+3}] offset:{OUTP+512*cb}")
    A("s_mov_b32 exec_hi, -1")
    A("s_waitcnt lgkmcnt(0)")
    A("s_barrier")
    stamp()
    A("s_cmp_eq_u32 s3, 3")
    A("s_cbranch_scc1 L_fin")
    for w in range(4):
        A(f"ds_read_b128 v[{vSc+4*w}:{vSc+4*w+3}], v{vTmp2} offset:{OUTP+2560*w}")
    for w in range(1, 4):
        A(f"s_waitcnt lgkmcnt({3-w})" if not diag else "s_waitcnt lgkmcnt(0)")
        for e in range(4):
            A(f"v_add_f32 v{vSc+e}, v{vSc+e}, v{vSc+4*w+e}")
    for e in range(4):
        A(f"v_min_u32 v{vSc+e}, -2, v{vSc+e}")
    A(f"buffer_store_dwordx4 v[{vSc}:{vSc+3}], v{vPub}, s[{sWS}:{sWS+3}], 0 offen sc1")
    stamp()
    A(f"s_mov_b32 s{sSpin}, 0")
    A("s_cmp_lg_u32 s3, 0")
    A("s_cbranch_scc1 L_s1done")
    A("s_waitcnt vmcnt(1)")
    A("s_mov_b64 exec, 1")
    A("L_s1:")
    A(f"v_readfirstlane_b32 s{sTmp}, v{vCnt}")
    A(f"s_cmp_ge_u32 s{sTmp}, 32")
    A("s_cbranch_scc1 L_s1out")
    A(f"s_add_u32 s{sSpin}, s{sSpin}, 1")
    A(f"s_cmp_ge_u32 s{sSpin}, 0x20000")
    A("s_cbranch_scc1 L_s1out")
    if sleep1: A(f"s_sleep {sleep1}")
    A(f"v_mov_b32 v{vTmp}, 0")
    A(f"buffer_load_dword v{vCnt}, v{vTmp}, s[{sDBG}:{sDBG+3}], s{sGrp} offen sc1")
    A("s_waitcnt vmcnt(0)")
    A("s_branch L_s1")
    A("L_s1out:")
    A("s_mov_b64 exec, -1")
    A("L_s1done:")
    A("s_barrier")
    stamp()
    vD = vSc + 16
    A("L_s2:")
    A(f"buffer_load_dwordx4 v[{vD}:{vD+3}], v{vCon}, s[{sWS}:{sWS+3}], 0 offen sc1")
    A(f"s_add_u32 s{sSpin}, s{sSpin}, 1")
    A("s_waitcnt vmcnt(0)")
    A(f"v_max3_u32 v{vTmp}, v{vD}, v{vD+1}, v{vD+2}")
    A(f"v_max_u32 v{vTmp}, v{vTmp}, v{vD+3}")
    A(f"v_cmp_eq_u32 vcc, -1, v{vTmp}")
    A("s_and_b64 exec, exec, vcc")
    A("s_cbranch_execz L_s2out")
    A(f"s_cmp_ge_u32 s{sSpin}, 0x40000")
    A("s_cbranch_scc1 L_s2out")
    if sleep2: A(f"s_sleep {sleep2}")
    A("s_branch L_s2")
    A("L_s2out:")
    A("s_mov_b64 exec, -1")
    for ctl in ("row_ror:8 " + DPPF, "row_ror:4 " + DPPF, "row_ror:2 " + DPPF, "row_ror:1 " + DPPF, "row_bcast:15 row_mask:0xa bank_mask:0xf"):
        for e in range(4):
            A(f"v_add_f32_dpp v{vD+e}, v{vD+e}, v{vD+e} {ctl}")
    A(f"v_cvt_pk_bf16_f32 v{vD}, v{vD}, v{vD+1}")
    A(f"v_cvt_pk_bf16_f32 v{vD+1}, v{vD+2}, v{vD+3}")
    A("s_mov_b32 exec_lo, 0x10000")
    A("s_mov_b32 exec_hi, 0x10000")
    A(f"buffer_store_dwordx2 v[{vD}:{vD+1}], v{vOutO}, s[{sOUT}:{sOUT+3}], 0 offen")
    A("L_fin:")
    if diag == 2:
        stamp()
        A("s_waitcnt lgkmcnt(0)")
        A("s_cmp_eq_u32 s3, 0")
        A("s_cbranch_scc0 L_end")
        A("s_mov_b64 exec, 1")
        A(f"v_mov_b32 v{vTmp}, 0")
        for slot, (k, inv) in enumerate(((0, 1), (3, 0), (3, 1), (4, 0), (4, 1), (9, 0), (2, 0))):
            A(f"v_mov_b32 v{vSc+slot}, s{sST+2*k}")
            if inv: A(f"v_not_b32 v{vSc+slot}, v{vSc+slot}")
            A(f"buffer_atomic_umax v{vSc+slot}, v{vTmp}, s[{sDBG}:{sDBG+3}], 0 offen offset:{4+4*slot}")
    if diag == 1:
        stamp()
        A("s_mov_b64 exec, -1")
        A(f"s_getreg_b32 s{sTmp}, hwreg(HW_REG_XCC_ID)")
        A("s_waitcnt lgkmcnt(0)")
        A(f"v_mov_b32 v{vStamp}, 0")
        for k in range(nstamp[0]):
            A(f"v_writelane_b32 v{vStamp}, s{sST+2*k}, {k}")
        A(f"v_writelane_b32 v{vStamp}, s{sTmp}, 14")
        A(f"v_writelane_b32 v{vStamp}, s{sSpin}, 15")
        A(f"s_add_u32 s{sX}, s28, 0x100000")
        A(f"s_addc_u32 s{sX+1}, s29, 0")
        A(f"s_mov_b32 s{sX+2}, 0x10000")
        A(f"s_lshl_b32 s{sTmp}, s2, 2")
        A(f"s_add_u32 s{sTmp}, s{sTmp}, s3")
        A(f"s_lshl_b32 s{sTmp}, s{sTmp}, 6")
        A(f"v_lshlrev_b32 v{vTmp}, 2, v{vLane}")
        A("s_mov_b64 exec, 0xffff")
        A(f"buffer_store_dword v{vStamp}, v{vTmp}, s[{sX}:{sX+3}], s{sTmp} offen")
    A("L_end:")
    A("s_endpgm")
    code = A.finish()
    txt = HEADER + "; Override launch geometry by editing the next line (default: block=256,\n; grid=ceil(out_elems/256), lds=0). Harness parses it; keep it on one line.\n"
    txt += "; @launch grid=(256,1,1) block=(256,1,1) lds=16384\n"
    txt += f'''.amdgcn_target "amdgcn-amd-amdhsa--gfx950"
.text
.globl {name}
.p2align 8
.type {name},@function
''' + code + f'''.section .rodata,"a"
.p2align 6
.amdhsa_kernel {name}
  .amdhsa_next_free_vgpr 416
  .amdhsa_next_free_sgpr 102
  .amdhsa_accum_offset 256
  .amdhsa_group_segment_fixed_size 0
  .amdhsa_kernarg_size 104
  .amdhsa_user_sgpr_count 2
  .amdhsa_user_sgpr_kernarg_segment_ptr 1
  .amdhsa_system_sgpr_workgroup_id_x 1
  .amdhsa_float_denorm_mode_32 3
.end_amdhsa_kernel
'''
    return txt

if __name__ == "__main__":
    import json
    kw = json.loads(sys.argv[1]) if len(sys.argv) > 1 else {}
    sys.stdout.write(gen(**kw))
```

```python
import sys, struct
from asmlib import Asm

NAME = "concat_heads__mha_block_cached__gqa_block_cached__decode_kernel"
HEADER = open("concat_heads__mha_block_cached__gqa_block_cached__decode.s.ref").read().split("; Override launch")[0]

def f2u(x): return struct.unpack("<I", struct.pack("<f", x))[0]

def gen(W=5, W2=None, last=0, kvf="nt", wf="nt", diag=0, bump=30, sleep1=8, sleep2=1, amp=0, ampk=0, fix=15000, name=NAME):
    TL = 8; P = 16; NT = 32
    A = Asm()
    sK, sV, sWQ, sWO, sX, sWS, sOUT, sDBG = 32, 36, 40, 44, 48, 52, 56, 60
    sB, sH, sBR, sOff, sIt, sTmp, sM, sBump, sGrp, sSpin = 64, 65, 66, 67, 68, 69, 70, 71, 72, 73
    sCC = 74
    sCnt = 76
    sWOoff = 78; sOne = 79
    sST = 80
    vLane, vKV0, vKV1, vWQo, vWOo, vXo, vPub, vCon, vOutO, vTmp, vTmp2, vC = range(1, 13)
    vMk = 16; vQ = 20; vA0 = 24; vA1 = 28; vAcc = 32; vTA = 36; vTB = 40
    vM, vL = 44, 45
    vS, vT, vAl, vE, vPk = 46, 47, 48, 49, 50
    vX = 52
    vLdsA, vLdsB, vStamp, vCnt = 56, 57, 58, 59
    vRing = 64
    vSc = 128
    QP, OP, ST, OUTP = 0, 2048, 4352, 4608
    nstamp = [0]
    def stamp():
        if diag:
            A(f"s_memrealtime s[{sST+2*nstamp[0]}:{sST+2*nstamp[0]+1}]")
            nstamp[0] += 1
    def srd(s, nbytes):
        A(f"s_mov_b32 s{s+2}, {nbytes}")
        A(f"s_mov_b32 s{s+3}, 0x20000")

    A(f"{name}:")
    stamp()
    A("s_cmp_ge_u32 s2, 256")
    A("s_cbranch_scc1 L_end")
    A("s_load_dwordx16 s[4:19], s[0:1], 0")
    A("s_load_dwordx8 s[20:27], s[0:1], 64")
    A("s_load_dwordx2 s[28:29], s[0:1], 96")
    A(f"v_lshrrev_b32 v{vTmp}, 6, v0")
    A(f"v_and_b32 v{vLane}, 63, v0")
    A(f"v_readfirstlane_b32 s3, v{vTmp}")
    A(f"s_lshr_b32 s{sB}, s2, 6")
    A(f"s_and_b32 s{sH}, s2, 31")
    A(f"s_bfe_u32 s{sBR}, s2, 0x10005")
    A(f"v_lshlrev_b32 v{vKV0}, 4, v{vLane}")
    A(f"v_add_u32 v{vKV1}, 0x1000, v{vKV0}")
    A(f"v_and_b32 v{vC}, 15, v0")
    A(f"v_lshrrev_b32 v{vTmp}, 4, v{vLane}")
    A(f"v_lshlrev_b32 v{vTmp2}, 4, v{vC}")
    A(f"v_lshl_add_u32 v{vWQo}, v{vTmp}, 13, v{vTmp2}")
    A(f"v_mul_u32_u24 v{vWOo}, 1280, v{vTmp}")
    A(f"v_add_u32 v{vWOo}, v{vWOo}, v{vTmp2}")
    A(f"v_lshl_add_u32 v{vXo}, v{vC}, 2, v{vTmp}")
    A(f"v_lshlrev_b32 v{vXo}, 1, v{vXo}")
    A(f"s_mul_i32 s{sTmp}, s3, 320")
    A(f"s_mul_i32 s{sOff}, s{sB}, 1280")
    A(f"s_add_u32 s{sTmp}, s{sTmp}, s{sOff}")
    A(f"v_add_u32 v{vXo}, s{sTmp}, v{vXo}")
    A(f"v_mul_u32_u24 v{vTmp}, 205, v0")
    A(f"v_lshrrev_b32 v{vTmp}, 10, v{vTmp}")
    A(f"v_lshlrev_b32 v{vPub}, 9, v0")
    A(f"s_lshl_b32 s{sTmp}, s{sH}, 4")
    A(f"v_add_u32 v{vPub}, s{sTmp}, v{vPub}")
    A(f"s_lshl_b32 s{sGrp}, s{sBR}, 2")
    A(f"s_add_u32 s{sGrp}, s{sGrp}, s{sB}")
    A(f"s_lshl_b32 s{sOff}, s{sB}, 5")
    A(f"s_add_u32 s{sOff}, s{sOff}, s{sH}")
    A(f"s_lshl_b32 s{sOff}, s{sOff}, 20")
    A(f"s_mul_i32 s{sTmp}, s{sGrp}, 81920")
    for k in range(4):
        A(f"v_mov_b32 v{vSc+k}, -1")
    for s, n in ((sK, 1 << 20), (sV, 1 << 20), (sWQ, 5242880), (sWO, 5242880), (sX, 5120), (sWS, 81920), (sOUT, 10240), (sDBG, 256)):
        srd(s, n)
    A(f"s_cmp_eq_u32 s{sBR}, 0")
    A("s_waitcnt lgkmcnt(0)")
    stamp()
    A(f"s_cselect_b64 s[{sX}:{sX+1}], s[4:5], s[14:15]")
    A(f"s_cselect_b64 s[{sK}:{sK+1}], s[6:7], s[16:17]")
    A(f"s_cselect_b64 s[{sV}:{sV+1}], s[8:9], s[18:19]")
    A(f"s_cselect_b64 s[{sWQ}:{sWQ+1}], s[10:11], s[20:21]")
    A(f"s_cselect_b64 s[{sWO}:{sWO+1}], s[12:13], s[22:23]")
    A(f"s_add_u32 s{sWS}, s28, s{sTmp}")
    A(f"s_addc_u32 s{sWS+1}, s29, 0")
    A(f"buffer_store_dwordx4 v[{vSc}:{vSc+3}], v{vPub}, s[{sWS}:{sWS+3}], 0 offen sc1")
    for i in range(3):
        A(f"buffer_load_ushort v{vX+i}, v{vXo}, s[{sX}:{sX+3}], 0 offen offset:{128*i}")
    A(f"s_mul_i32 s{sTmp}, s3, {160*8192}")
    A(f"s_lshl_b32 s{sIt}, s{sH}, 8")
    A(f"s_add_u32 s{sTmp}, s{sTmp}, s{sIt}")
    for t in range(40):
        A(f"buffer_load_dwordx4 a[{4*t}:{4*t+3}], v{vWQo}, s[{sWQ}:{sWQ+3}], s{sTmp} offen {wf}")
        if t < 39: A(f"s_add_u32 s{sTmp}, s{sTmp}, 0x8000")
    A(f"s_add_u32 s{sK}, s{sK}, s{sOff}")
    A(f"s_addc_u32 s{sK+1}, s{sK+1}, 0")
    A(f"s_add_u32 s{sV}, s{sV}, s{sOff}")
    A(f"s_addc_u32 s{sV+1}, s{sV+1}, 0")
    A(f"s_lshl_b32 s{sOff}, s3, 13")
    def kvload(n):
        j = n % TL; s = sK if n < TL else sV
        r = vRing + 4 * n
        A(f"buffer_load_dwordx4 v[{r}:{r+3}], v{vKV0 if j < 4 else vKV1}, s[{s}:{s+3}], s{sOff} offen offset:{(j%4)*1024} {kvf}")
    for n in range(P): kvload(n)
    stamp()
    A(f"s_add_u32 s{sOff}, s{sOff}, 0x8000")
    A(f"s_mov_b64 s[{sOUT}:{sOUT+1}], s[24:25]")
    A(f"s_mov_b64 s[{sDBG}:{sDBG+1}], s[26:27]")
    A(f"s_lshl_b32 s{sGrp}, s{sGrp}, 5")
    A(f"s_add_u32 s{sCnt}, s26, s{sGrp}")
    A(f"s_addc_u32 s{sCnt+1}, s27, 0")
    A(f"s_mov_b32 s{sCC}, 0xcccccccc")
    A(f"s_mov_b32 s{sCC+1}, 0xcccccccc")
    A(f"s_cmp_eq_u32 s3, 0")
    A(f"s_cselect_b32 s{sBump}, {bump}, -1")
    A(f"s_lshl_b32 s{sWOoff}, s{sH}, 2")
    A(f"s_add_u32 s{sWOoff}, s{sWOoff}, s3")
    A(f"s_mul_i32 s{sWOoff}, s{sWOoff}, {32*1280}")
    A(f"v_and_b32 v{vTmp}, 1, v{vC}")
    A(f"v_lshlrev_b32 v{vTmp}, 4, v{vTmp}")
    A(f"v_mov_b32 v{vTmp2}, 0xffff")
    A(f"v_lshlrev_b32 v{vTmp2}, v{vTmp}, v{vTmp2}")
    A(f"v_lshrrev_b32 v{vTmp}, 1, v{vC}")
    for k in range(4):
        A(f"v_cmp_eq_u32 vcc, {k}, v{vTmp}")
        A(f"v_cndmask_b32 v{vMk+k}, 0, v{vTmp2}, vcc")
    A(f"v_lshrrev_b32 v{vTmp}, 4, v{vLane}")
    A(f"v_lshlrev_b32 v{vLdsA}, 5, v{vC}")
    A(f"v_lshl_add_u32 v{vLdsA}, v{vTmp}, 4, v{vLdsA}")
    A(f"s_mul_i32 s{sTmp}, s{sH}, 2560")
    A(f"v_lshlrev_b32 v{vCon}, 4, v0")
    A(f"v_add_u32 v{vCon}, s{sTmp}, v{vCon}")
    A(f"v_cmp_gt_u32 vcc, 160, v0")
    A(f"v_mov_b32 v{vTmp2}, 0x7fffffff")
    A(f"v_cndmask_b32 v{vCon}, v{vTmp2}, v{vCon}, vcc")
    A(f"s_mul_i32 s{sTmp}, s{sB}, 2560")
    A(f"s_mul_i32 s{sIt}, s{sBR}, 1280")
    A(f"s_add_u32 s{sTmp}, s{sTmp}, s{sIt}")
    A(f"s_mul_i32 s{sIt}, s{sH}, 40")
    A(f"s_add_u32 s{sTmp}, s{sTmp}, s{sIt}")
    A(f"v_lshrrev_b32 v{vOutO}, 5, v0")
    A(f"v_lshlrev_b32 v{vOutO}, 3, v{vOutO}")
    A(f"v_add_u32 v{vOutO}, s{sTmp}, v{vOutO}")
    A(f"v_cndmask_b32 v{vOutO}, v{vTmp2}, v{vOutO}, vcc")
    A(f"v_mov_b32 v{vM}, 0xff800000")
    A(f"v_mov_b32 v{vL}, 0")
    A(f"v_mov_b32 v{vCnt}, 0")
    def ands(dst, src, lane):
        for k in range(4):
            A(f"v_and_b32_dpp v{dst+k}, v{src}, v{vMk+k} row_newbcast:{lane} row_mask:0xf bank_mask:0xf")
    A("s_waitcnt vmcnt(56)")
    for i in range(3):
        A(f"v_lshl_or_b32 v{vX+i}, v{vX+i}, 16, v{vX+i}")
    ands(vA0, vX, 0)
    for t in range(40):
        cur = vA0 if t % 2 == 0 else vA1; nxt = vA1 if t % 2 == 0 else vA0
        if t < 39: ands(nxt, vX + (t + 1) // 16, (t + 1) % 16)
        A("s_waitcnt vmcnt(55)")
        c = "0" if t == 0 else f"v[{vAcc}:{vAcc+3}]"
        A(f"v_mfma_f32_16x16x32_bf16 v[{vAcc}:{vAcc+3}], v[{cur}:{cur+3}], a[{4*t}:{4*t+3}], {c}")
        A(f"buffer_load_dwordx4 a[{4*t}:{4*t+3}], v{vWOo}, s[{sWO}:{sWO+3}], s{sWOoff} offen offset:{(t%5)*256} {wf}")
        if t % 5 == 4 and t < 39: A(f"s_add_u32 s{sWOoff}, s{sWOoff}, 5120")
    A(f"s_lshl_b32 s{sTmp}, s3, 9")
    A(f"v_add_u32 v{vTmp}, s{sTmp}, v{vLdsA}")
    A("s_mov_b32 exec_hi, 0")
    A(f"ds_write_b128 v{vTmp}, v[{vAcc}:{vAcc+3}] offset:{QP}")
    A("s_mov_b32 exec_hi, -1")
    A(f"v_lshlrev_b32 v{vTmp}, 5, v{vC}")
    A("s_waitcnt lgkmcnt(0)")
    A("s_barrier")
    for w in range(4):
        for hf in range(2):
            r = vSc + 8 * w + 4 * hf
            A(f"ds_read_b128 v[{r}:{r+3}], v{vTmp} offset:{QP + 512*w + 16*hf}")
    for k in range(4):
        A(f"v_mov_b32 v{vAcc+k}, 0")
    for w in range(1, 4):
        A(f"s_waitcnt lgkmcnt({6-2*w})")
        for e in range(8):
            A(f"v_add_f32 v{vSc+e}, v{vSc+e}, v{vSc+8*w+e}")
    for k in range(4):
        A(f"v_cvt_pk_bf16_f32 v{vQ+k}, v{vSc+2*k}, v{vSc+2*k+1}")
    A("s_waitcnt vmcnt(40)")
    stamp()

    DPPF = "row_mask:0xf bank_mask:0xf"
    class St: pass
    st = St()
    def body(w, issue):
        def wait(n):
            A(f"s_waitcnt vmcnt({n})")
            st.landed = max(st.landed, st.issued - n)
        def needl(idx):
            if st.landed <= idx: wait(st.issued - idx - 1)
        def iss(n):
            if issue:
                if st.issued - st.landed > w - 1: wait(w - 1)
                kvload(n); st.issued += 1
        def dots(t, base):
            needl(base + 3)
            for k in range(4):
                for j in range(4):
                    c = "0" if k == 0 else f"v{t+j}"
                    A(f"v_dot2_f32_bf16 v{t+j}, v{vRing+4*(base+j)+k}, v{vQ+k}, {c}")
        dots(vTA, 0); iss(0); iss(1)
        dots(vTB, 4); iss(2); iss(3)
        for (d, s, ctl, bm) in ((0, 0, "row_ror:8", 3), (1, 1, "row_ror:8", 3), (0, 2, "row_ror:8", 12), (1, 3, "row_ror:8", 12),
                                (0, 0, "row_half_mirror", 5), (0, 1, "row_half_mirror", 10),
                                (0, 0, "quad_perm:[1,0,3,2]", 15), (0, 0, "quad_perm:[2,3,0,1]", 15)):
            for t in (vTA, vTB):
                A(f"v_add_f32_dpp v{t+d}, v{t+s}, v{t+s} {ctl} row_mask:0xf bank_mask:{hex(bm)}")
        iss(4)
        A(f"v_cndmask_b32 v{vS}, v{vTA}, v{vTB}, s[{sCC}:{sCC+1}]")
        A(f"v_cvt_pk_bf16_f32 v{vS}, v{vS}, v{vS}")
        A(f"v_and_b32 v{vS}, 0xffff0000, v{vS}")
        A(f"v_mul_f32 v{vS}, {hex(f2u(128 ** -0.5))}, v{vS}")
        A(f"v_cvt_pk_bf16_f32 v{vS}, v{vS}, v{vS}")
        A(f"v_and_b32 v{vS}, 0xffff0000, v{vS}")
        iss(5)
        A(f"v_max_f32_dpp v{vT}, v{vS}, v{vS} quad_perm:[2,3,0,1] {DPPF}")
        A(f"v_max_f32_dpp v{vT}, v{vT}, v{vT} row_ror:4 {DPPF}")
        A(f"v_max_f32_dpp v{vT}, v{vT}, v{vT} row_ror:8 {DPPF}")
        A(f"v_max_f32_dpp v{vT}, v{vT}, v{vT} row_bcast:15 row_mask:0xa bank_mask:0xf")
        A(f"v_max_f32_dpp v{vT}, v{vT}, v{vT} row_bcast:31 row_mask:0xc bank_mask:0xf")
        A(f"v_max_f32 v{vT}, v{vT}, v{vM}")
        A(f"v_readlane_b32 s{sM}, v{vT}, 63")
        iss(6)
        A(f"v_subrev_f32 v{vAl}, s{sM}, v{vM}")
        A(f"v_subrev_f32 v{vE}, s{sM}, v{vS}")
        A(f"v_mov_b32 v{vM}, s{sM}")
        A(f"v_mul_f32 v{vAl}, {hex(f2u(1.4426950408889634))}, v{vAl}")
        A(f"v_mul_f32 v{vE}, {hex(f2u(1.4426950408889634))}, v{vE}")
        A(f"v_exp_f32 v{vAl}, v{vAl}")
        A(f"v_exp_f32 v{vE}, v{vE}")
        iss(7)
        A(f"v_cvt_pk_bf16_f32 v{vPk}, v{vE}, v{vE}")
        for k in range(4):
            A(f"v_mul_f32 v{vAcc+k}, v{vAcc+k}, v{vAl}")
        A(f"v_fma_f32 v{vL}, v{vL}, v{vAl}, v{vE}")
        lane = lambda j: 4 * (j & 3) + 2 * (j >> 2)
        ands(vA0, vPk, lane(0))
        for j in range(8):
            cur = vA0 if j % 2 == 0 else vA1; nxt = vA1 if j % 2 == 0 else vA0
            if j < 7: ands(nxt, vPk, lane(j + 1))
            needl(8 + j)
            r = vRing + 4 * (8 + j)
            A(f"v_mfma_f32_16x16x32_bf16 v[{vAcc}:{vAcc+3}], v[{cur}:{cur+3}], v[{r}:{r+3}], v[{vAcc}:{vAcc+3}]")
            iss(8 + j)
    def loop(lbl, w, it_end, gap_in):
        A(f"{lbl}:")
        A(f"s_cmp_eq_u32 s{sIt}, s{sBump}")
        A(f"s_cbranch_scc0 {lbl}_nb")
        A(f"s_mov_b32 s{sOne}, 1")
        A(f"s_atomic_add s{sOne}, s[{sCnt}:{sCnt+1}], 0x0")
        A(f"{lbl}_nb:")
        st.issued = 16; st.landed = 16 - gap_in
        body(w, True)
        assert st.issued - st.landed <= gap_in, (st.issued, st.landed)
        A(f"s_add_u32 s{sOff}, s{sOff}, 0x8000")
        A(f"s_add_u32 s{sIt}, s{sIt}, 1")
        A(f"s_cmp_lt_u32 s{sIt}, {it_end}")
        A(f"s_cbranch_scc1 {lbl}")
    A(f"s_mov_b32 s{sIt}, 0")
    gap = W
    loop("L_main", W, NT - 1 - last, W)
    if last:
        gap = max(W, W2)
        loop("L_main2", W2, NT - 1, gap)
    st.issued = 16; st.landed = 16 - gap
    body(0, False)
    stamp()
    for ctl in ("row_ror:8 " + DPPF, "row_ror:4 " + DPPF, "row_ror:2 " + DPPF, "row_ror:1 " + DPPF,
                "row_bcast:15 row_mask:0xa bank_mask:0xf", "row_bcast:31 row_mask:0xc bank_mask:0xf"):
        A(f"v_add_f32_dpp v{vL}, v{vL}, v{vL} {ctl}")
    A(f"s_mul_i32 s{sTmp}, s3, 576")
    A(f"v_add_u32 v{vTmp}, s{sTmp}, v{vLdsA}")
    A(f"s_lshl_b32 s{sTmp}, s3, 3")
    A(f"v_mov_b32 v{vTmp2}, s{sTmp}")
    A(f"v_mul_f32 v{vL}, 0.5, v{vL}")
    A("s_mov_b32 exec_hi, 0")
    A(f"ds_write_b128 v{vTmp}, v[{vAcc}:{vAcc+3}] offset:{OP}")
    A("s_mov_b32 exec_lo, 0")
    A("s_mov_b32 exec_hi, 0x80000000")
    A(f"ds_write_b64 v{vTmp2}, v[{vM}:{vM+1}] offset:{ST}")
    A("s_mov_b64 exec, 1")
    A(f"buffer_load_dword v{vCnt}, v{vCnt}, s[{sDBG}:{sDBG+3}], s{sGrp} offen sc1")
    A("s_mov_b64 exec, -1")
    A(f"v_and_b32 v{vTmp}, 3, v{vC}")
    A(f"v_lshlrev_b32 v{vTmp2}, 3, v{vTmp}")
    A(f"v_mul_u32_u24 v{vTmp}, 576, v{vTmp}")
    A(f"v_and_b32 v{vT}, 12, v{vC}")
    A(f"v_lshrrev_b32 v{vS}, 4, v{vLane}")
    A(f"v_add_u32 v{vT}, v{vT}, v{vS}")
    A(f"v_lshl_add_u32 v{vTmp}, v{vT}, 2, v{vTmp}")
    A(f"s_lshl_b32 s{sTmp}, s3, 7")
    A(f"v_add_u32 v{vTmp}, s{sTmp}, v{vTmp}")
    A("s_waitcnt lgkmcnt(0)")
    A("s_barrier")
    stamp()
    A(f"ds_read_b64 v[{vM}:{vM+1}], v{vTmp2} offset:{ST}")
    A(f"ds_read_b32 v{vTA}, v{vTmp} offset:{OP}")
    A(f"ds_read_b32 v{vTA+1}, v{vTmp} offset:{OP+64}")
    A("s_waitcnt lgkmcnt(2)" if not diag else "s_waitcnt lgkmcnt(0)")
    A(f"v_max_f32_dpp v{vT}, v{vM}, v{vM} quad_perm:[1,0,3,2] {DPPF}")
    A(f"v_max_f32_dpp v{vT}, v{vT}, v{vT} quad_perm:[2,3,0,1] {DPPF}")
    A(f"v_sub_f32 v{vE}, v{vM}, v{vT}")
    A(f"v_mul_f32 v{vE}, {hex(f2u(1.4426950408889634))}, v{vE}")
    A(f"v_exp_f32 v{vE}, v{vE}")
    A(f"v_mul_f32 v{vL}, v{vL}, v{vE}")
    A("s_waitcnt lgkmcnt(0)")
    A(f"v_mul_f32 v{vTA}, v{vTA}, v{vE}")
    A(f"v_mul_f32 v{vTA+1}, v{vTA+1}, v{vE}")
    for q in ("quad_perm:[1,0,3,2]", "quad_perm:[2,3,0,1]"):
        for r in (vL, vTA, vTA + 1):
            A(f"v_add_f32_dpp v{r}, v{r}, v{r} {q} {DPPF}")
    A(f"v_rcp_f32 v{vL}, v{vL}")
    A(f"v_mul_f32 v{vTA}, v{vTA}, v{vL}")
    A(f"v_mul_f32 v{vTA+1}, v{vTA+1}, v{vL}")
    A(f"v_cvt_pk_bf16_f32 v{vTA}, v{vTA}, v{vTA}")
    A(f"v_cvt_pk_bf16_f32 v{vTA+1}, v{vTA+1}, v{vTA+1}")
    vO = vRing
    ands(vA0, vTA, 0)
    for tq in range(8):
        cur = vA0 if tq % 2 == 0 else vA1; nxt = vA1 if tq % 2 == 0 else vA0
        if tq < 7: ands(nxt, vTA + ((tq + 1) >> 2), 4 * ((tq + 1) & 3))
        for cb in range(5):
            i = tq * 5 + cb
            c = "0" if tq == 0 else f"v[{vO+4*cb}:{vO+4*cb+3}]"
            A(f"v_mfma_f32_16x16x32_bf16 v[{vO+4*cb}:{vO+4*cb+3}], v[{cur}:{cur+3}], a[{4*i}:{4*i+3}], {c}")
    A(f"s_mul_i32 s{sTmp}, s3, 2560")
    A(f"v_add_u32 v{vTmp}, s{sTmp}, v{vLdsA}")
    A(f"v_lshlrev_b32 v{vTmp2}, 4, v0")
    A("s_mov_b32 exec_hi, 0")
    for cb in range(5):
        A(f"ds_write_b128 v{vTmp}, v[{vO+4*cb}:{vO+4*cb+3}] offset:{OUTP+512*cb}")
    A("s_mov_b32 exec_hi, -1")
    A("s_waitcnt lgkmcnt(0)")
    A("s_barrier")
    stamp()
    A("s_cmp_eq_u32 s3, 3")
    A("s_cbranch_scc1 L_fin")
    for w in range(4):
        A(f"ds_read_b128 v[{vSc+4*w}:{vSc+4*w+3}], v{vTmp2} offset:{OUTP+2560*w}")
    for w in range(1, 4):
        A(f"s_waitcnt lgkmcnt({3-w})" if not diag else "s_waitcnt lgkmcnt(0)")
        for e in range(4):
            A(f"v_add_f32 v{vSc+e}, v{vSc+e}, v{vSc+4*w+e}")
    for e in range(4):
        A(f"v_min_u32 v{vSc+e}, -2, v{vSc+e}")
    A(f"buffer_store_dwordx4 v[{vSc}:{vSc+3}], v{vPub}, s[{sWS}:{sWS+3}], 0 offen sc1")
    stamp()
    A(f"s_mov_b32 s{sSpin}, 0")
    A("s_cmp_lg_u32 s3, 0")
    A("s_cbranch_scc1 L_s1done")
    A("s_waitcnt vmcnt(1)")
    A("s_mov_b64 exec, 1")
    A("L_s1:")
    A(f"v_readfirstlane_b32 s{sTmp}, v{vCnt}")
    A(f"s_cmp_ge_u32 s{sTmp}, 32")
    A("s_cbranch_scc1 L_s1out")
    A(f"s_add_u32 s{sSpin}, s{sSpin}, 1")
    A(f"s_cmp_ge_u32 s{sSpin}, 0x20000")
    A("s_cbranch_scc1 L_s1out")
    if sleep1: A(f"s_sleep {sleep1}")
    A(f"v_mov_b32 v{vTmp}, 0")
    A(f"buffer_load_dword v{vCnt}, v{vTmp}, s[{sDBG}:{sDBG+3}], s{sGrp} offen sc1")
    A("s_waitcnt vmcnt(0)")
    A("s_branch L_s1")
    A("L_s1out:")
    A("s_mov_b64 exec, -1")
    A("L_s1done:")
    A("s_barrier")
    stamp()
    vD = vSc + 16
    A("L_s2:")
    A(f"buffer_load_dwordx4 v[{vD}:{vD+3}], v{vCon}, s[{sWS}:{sWS+3}], 0 offen sc1")
    A(f"s_add_u32 s{sSpin}, s{sSpin}, 1")
    A("s_waitcnt vmcnt(0)")
    A(f"v_max3_u32 v{vTmp}, v{vD}, v{vD+1}, v{vD+2}")
    A(f"v_max_u32 v{vTmp}, v{vTmp}, v{vD+3}")
    A(f"v_cmp_eq_u32 vcc, -1, v{vTmp}")
    A("s_and_b64 exec, exec, vcc")
    A("s_cbranch_execz L_s2out")
    A(f"s_cmp_ge_u32 s{sSpin}, 0x40000")
    A("s_cbranch_scc1 L_s2out")
    if sleep2: A(f"s_sleep {sleep2}")
    A("s_branch L_s2")
    A("L_s2out:")
    A("s_mov_b64 exec, -1")
    for ctl in ("row_ror:8 " + DPPF, "row_ror:4 " + DPPF, "row_ror:2 " + DPPF, "row_ror:1 " + DPPF, "row_bcast:15 row_mask:0xa bank_mask:0xf"):
        for e in range(4):
            A(f"v_add_f32_dpp v{vD+e}, v{vD+e}, v{vD+e} {ctl}")
    A(f"v_cvt_pk_bf16_f32 v{vD}, v{vD}, v{vD+1}")
    A(f"v_cvt_pk_bf16_f32 v{vD+1}, v{vD+2}, v{vD+3}")
    A("s_mov_b32 exec_lo, 0x10000")
    A("s_mov_b32 exec_hi, 0x10000")
    A(f"buffer_store_dwordx2 v[{vD}:{vD+1}], v{vOutO}, s[{sOUT}:{sOUT+3}], 0 offen")
    A("L_fin:")
    if diag == 3:
        stamp()
        A("s_waitcnt lgkmcnt(0)")
        A(f"s_sub_u32 s{sTmp}, s{sST+2*ampk}, s{sST}")
        A(f"s_mul_i32 s{sTmp}, s{sTmp}, {amp}")
        A(f"s_add_u32 s{sTmp}, s{sTmp}, {fix}")
        A("L_hold:")
        A(f"s_memrealtime s[{sCC}:{sCC+1}]")
        A("s_waitcnt lgkmcnt(0)")
        A(f"s_sub_u32 s{sIt}, s{sCC}, s{sST}")
        A(f"s_cmp_lt_u32 s{sIt}, s{sTmp}")
        A("s_cbranch_scc1 L_hold")
    if diag == 2:
        stamp()
        A("s_waitcnt lgkmcnt(0)")
        A("s_cmp_eq_u32 s3, 0")
        A("s_cbranch_scc0 L_end")
        A("s_mov_b64 exec, 1")
        A(f"v_mov_b32 v{vTmp}, 0")
        for slot, (k, inv) in enumerate(((0, 1), (3, 0), (3, 1), (4, 0), (4, 1), (9, 0), (2, 0))):
            A(f"v_mov_b32 v{vSc+slot}, s{sST+2*k}")
            if inv: A(f"v_not_b32 v{vSc+slot}, v{vSc+slot}")
            A(f"buffer_atomic_umax v{vSc+slot}, v{vTmp}, s[{sDBG}:{sDBG+3}], 0 offen offset:{4+4*slot}")
    if diag == 1:
        stamp()
        A("s_mov_b64 exec, -1")
        A(f"s_getreg_b32 s{sTmp}, hwreg(HW_REG_XCC_ID)")
        A("s_waitcnt lgkmcnt(0)")
        A(f"v_mov_b32 v{vStamp}, 0")
        for k in range(nstamp[0]):
            A(f"v_writelane_b32 v{vStamp}, s{sST+2*k}, {k}")
        A(f"v_writelane_b32 v{vStamp}, s{sTmp}, 14")
        A(f"v_writelane_b32 v{vStamp}, s{sSpin}, 15")
        A(f"s_add_u32 s{sX}, s28, 0x100000")
        A(f"s_addc_u32 s{sX+1}, s29, 0")
        A(f"s_mov_b32 s{sX+2}, 0x10000")
        A(f"s_lshl_b32 s{sTmp}, s2, 2")
        A(f"s_add_u32 s{sTmp}, s{sTmp}, s3")
        A(f"s_lshl_b32 s{sTmp}, s{sTmp}, 6")
        A(f"v_lshlrev_b32 v{vTmp}, 2, v{vLane}")
        A("s_mov_b64 exec, 0xffff")
        A(f"buffer_store_dword v{vStamp}, v{vTmp}, s[{sX}:{sX+3}], s{sTmp} offen")
    A("L_end:")
    A("s_endpgm")
    code = A.finish()
    txt = HEADER + "; Override launch geometry by editing the next line (default: block=256,\n; grid=ceil(out_elems/256), lds=0). Harness parses it; keep it on one line.\n"
    txt += "; @launch grid=(256,1,1) block=(256,1,1) lds=16384\n"
    txt += f'''.amdgcn_target "amdgcn-amd-amdhsa--gfx950"
.text
.globl {name}
.p2align 8
.type {name},@function
''' + code + f'''.section .rodata,"a"
.p2align 6
.amdhsa_kernel {name}
  .amdhsa_next_free_vgpr 416
  .amdhsa_next_free_sgpr 102
  .amdhsa_accum_offset 256
  .amdhsa_group_segment_fixed_size 0
  .amdhsa_kernarg_size 104
  .amdhsa_user_sgpr_count 2
  .amdhsa_user_sgpr_kernarg_segment_ptr 1
  .amdhsa_system_sgpr_workgroup_id_x 1
  .amdhsa_float_denorm_mode_32 3
.end_amdhsa_kernel
'''
    return txt

if __name__ == "__main__":
    import json
    kw = json.loads(sys.argv[1]) if len(sys.argv) > 1 else {}
    sys.stdout.write(gen(**kw))
```

```python
import sys, struct
from asmlib import Asm

NAME = "concat_heads__mha_block_cached__gqa_block_cached__decode_kernel"
HEADER = open("concat_heads__mha_block_cached__gqa_block_cached__decode.s.ref").read().split("; Override launch")[0]
NSTAMP = 10
LOG2E = 1.4426950408889634

def f2u(x): return struct.unpack("<I", struct.pack("<f", x))[0]

def gen(W=5, W2=None, last=0, kvf="nt", wf="nt", diag=0, NB=2, WB=9, kper=5, early=1,
        slA=24, slB=6, slC=0, nA=16, nB=4, amp=0, ampk=0, fix=15000, chk=8, name=NAME):
    TL = 8; P = 16; NT = 32
    A = Asm()
    sK, sV, sWQ, sWO, sX, sWS, sOUT = 32, 36, 40, 44, 48, 52, 56
    sB, sH, sBR, sOff, sIt, sTmp, sM, sGrp, sSpin, sWOoff = 64, 65, 66, 67, 68, 69, 70, 71, 72, 73
    sCC = 74
    sST = 80
    vLane, vKV0, vKV1, vWQo, vWOo, vXo, vPub, vCon, vOutO, vTmp, vTmp2, vC = range(1, 13)
    vMk = 16; vQ = 20; vA0 = 24; vA1 = 28; vAcc = 32; vTA = 36; vTB = 40
    vM, vL = 44, 45
    vS, vT, vAl, vE, vPk = 46, 47, 48, 49, 50
    vX = 52
    vLdsA, vLdsO, vStamp, vLdsS = 56, 57, 58, 59
    vOldP, vOldC = 160, 164
    vRing = 64
    vSc = 128
    QP, OP, ST, OUTP = 0, 2048, 4352, 4608
    DPPF = "row_mask:0xf bank_mask:0xf"
    nstamp = [0]
    def stamp():
        if diag:
            A(f"s_memrealtime s[{sST+2*nstamp[0]}:{sST+2*nstamp[0]+1}]")
            nstamp[0] += 1
    def srd(s, nbytes):
        A(f"s_mov_b32 s{s+2}, {nbytes}")
        A(f"s_mov_b32 s{s+3}, 0x20000")

    A(f"{name}:")
    stamp()
    A("s_cmp_ge_u32 s2, 256")
    A("s_cbranch_scc1 L_end")
    A("s_load_dwordx16 s[4:19], s[0:1], 0")
    A("s_load_dwordx8 s[20:27], s[0:1], 64")
    A("s_load_dwordx2 s[28:29], s[0:1], 96")
    A(f"v_lshrrev_b32 v{vTmp}, 6, v0")
    A(f"v_and_b32 v{vLane}, 63, v0")
    A(f"v_readfirstlane_b32 s3, v{vTmp}")
    A(f"s_lshr_b32 s{sB}, s2, 6")
    A(f"s_and_b32 s{sH}, s2, 31")
    A(f"s_bfe_u32 s{sBR}, s2, 0x10005")
    A(f"v_lshlrev_b32 v{vKV0}, 4, v{vLane}")
    A(f"v_add_u32 v{vKV1}, 0x1000, v{vKV0}")
    A(f"v_and_b32 v{vC}, 15, v0")
    A(f"v_lshrrev_b32 v{vTmp}, 4, v{vLane}")
    A(f"v_lshlrev_b32 v{vTmp2}, 4, v{vC}")
    A(f"v_lshl_add_u32 v{vWQo}, v{vTmp}, 13, v{vTmp2}")
    A(f"v_mul_u32_u24 v{vWOo}, 1280, v{vTmp}")
    A(f"v_add_u32 v{vWOo}, v{vWOo}, v{vTmp2}")
    A(f"v_lshl_add_u32 v{vXo}, v{vC}, 2, v{vTmp}")
    A(f"v_lshlrev_b32 v{vXo}, 1, v{vXo}")
    A(f"s_mul_i32 s{sTmp}, s3, 320")
    A(f"s_mul_i32 s{sOff}, s{sB}, 1280")
    A(f"s_add_u32 s{sTmp}, s{sTmp}, s{sOff}")
    A(f"v_add_u32 v{vXo}, s{sTmp}, v{vXo}")
    A(f"s_lshl_b32 s{sGrp}, s{sBR}, 2")
    A(f"s_add_u32 s{sGrp}, s{sGrp}, s{sB}")
    A(f"s_mul_i32 s{sGrp}, s{sGrp}, 81920")
    A(f"s_lshl_b32 s{sM}, s{sB}, 5")
    A(f"s_add_u32 s{sM}, s{sM}, s{sH}")
    A(f"s_lshl_b32 s{sM}, s{sM}, 20")
    A(f"s_mul_i32 s{sTmp}, s3, {160*8192}")
    A(f"s_lshl_b32 s{sIt}, s{sH}, 8")
    A(f"s_add_u32 s{sTmp}, s{sTmp}, s{sIt}")
    A(f"s_lshl_b32 s{sOff}, s3, 13")
    A(f"v_mov_b32 v{vTmp2}, 0x7fffffff")
    A(f"v_cmp_gt_u32 vcc, 160, v0")
    A(f"s_mul_i32 s{sIt}, s{sH}, 2560")
    A(f"v_lshlrev_b32 v{vPub}, 4, v0")
    A(f"v_add_u32 v{vPub}, s{sIt}, v{vPub}")
    A(f"v_cndmask_b32 v{vPub}, v{vTmp2}, v{vPub}, vcc")
    A(f"v_and_b32 v{vCon}, 31, v0")
    A(f"v_mul_u32_u24 v{vCon}, 2560, v{vCon}")
    A(f"v_lshrrev_b32 v{vOutO}, 5, v0")
    A(f"v_lshl_add_u32 v{vCon}, v{vOutO}, 4, v{vCon}")
    A(f"s_mul_i32 s{sIt}, s{sH}, 80")
    A(f"v_add_u32 v{vCon}, s{sIt}, v{vCon}")
    A(f"v_cndmask_b32 v{vCon}, v{vTmp2}, v{vCon}, vcc")
    for s, n in ((sK, 1 << 20), (sV, 1 << 20), (sWQ, 5242880), (sWO, 5242880), (sX, 5120), (sWS, 81920), (sOUT, 10240)):
        srd(s, n)
    A(f"s_cmp_eq_u32 s{sBR}, 0")
    A("s_waitcnt lgkmcnt(0)")
    stamp()
    A(f"s_cselect_b64 s[{sX}:{sX+1}], s[4:5], s[14:15]")
    A(f"s_cselect_b64 s[{sWQ}:{sWQ+1}], s[10:11], s[20:21]")
    A(f"s_cselect_b64 s[{sK}:{sK+1}], s[6:7], s[16:17]")
    A(f"s_cselect_b64 s[{sV}:{sV+1}], s[8:9], s[18:19]")
    A(f"s_cselect_b64 s[{sWO}:{sWO+1}], s[12:13], s[22:23]")
    order = []
    for i in range(3):
        A(f"buffer_load_ushort v{vX+i}, v{vXo}, s[{sX}:{sX+3}], 0 offen offset:{128*i}")
        order.append(("x", i))
    A(f"s_add_u32 s{sK}, s{sK}, s{sM}")
    A(f"s_addc_u32 s{sK+1}, s{sK+1}, 0")
    A(f"s_add_u32 s{sV}, s{sV}, s{sM}")
    A(f"s_addc_u32 s{sV+1}, s{sV+1}, 0")
    def kvload(n):
        j = n % TL; s = sK if n < TL else sV
        r = vRing + 4 * n
        A(f"buffer_load_dwordx4 v[{r}:{r+3}], v{vKV0 if j < 4 else vKV1}, s[{s}:{s+3}], s{sOff} offen offset:{(j%4)*1024} {kvf}")
    nkv = 0
    for t in range(40):
        A(f"buffer_load_dwordx4 a[{4*t}:{4*t+3}], v{vWQo}, s[{sWQ}:{sWQ+3}], s{sTmp} offen {wf}")
        order.append(("wq", t))
        if t < 39: A(f"s_add_u32 s{sTmp}, s{sTmp}, 0x8000")
        if kper and t % kper == kper - 1 and nkv < P:
            kvload(nkv); order.append(("kv", nkv)); nkv += 1
    for n in range(nkv, P):
        kvload(n); order.append(("kv", n))
    A(f"s_add_u32 s{sWS}, s28, s{sGrp}")
    A(f"s_addc_u32 s{sWS+1}, s29, 0")
    A(f"buffer_load_dwordx4 v[{vOldP}:{vOldP+3}], v{vPub}, s[{sWS}:{sWS+3}], 0 offen sc1")
    A(f"buffer_load_dwordx4 v[{vOldC}:{vOldC+3}], v{vCon}, s[{sWS}:{sWS+3}], 0 offen sc1")
    order += [("old", 0), ("old", 1)]
    assert len(order) <= 63
    stamp()
    A(f"s_add_u32 s{sOff}, s{sOff}, 0x8000")
    A(f"s_mov_b64 s[{sOUT}:{sOUT+1}], s[24:25]")
    A(f"s_mov_b32 s{sCC}, 0xcccccccc")
    A(f"s_mov_b32 s{sCC+1}, 0xcccccccc")
    A(f"s_lshl_b32 s{sWOoff}, s{sH}, 2")
    A(f"s_add_u32 s{sWOoff}, s{sWOoff}, s3")
    A(f"s_mul_i32 s{sWOoff}, s{sWOoff}, {32*1280}")
    A(f"s_mul_i32 s{sTmp}, s{sB}, 2560")
    A(f"s_mul_i32 s{sIt}, s{sBR}, 1280")
    A(f"s_add_u32 s{sTmp}, s{sTmp}, s{sIt}")
    A(f"s_mul_i32 s{sIt}, s{sH}, 40")
    A(f"s_add_u32 s{sTmp}, s{sTmp}, s{sIt}")
    A(f"v_lshlrev_b32 v{vOutO}, 3, v{vOutO}")
    A(f"v_add_u32 v{vOutO}, s{sTmp}, v{vOutO}")
    A(f"v_cndmask_b32 v{vOutO}, v{vTmp2}, v{vOutO}, vcc")
    A(f"v_and_b32 v{vTmp}, 1, v{vC}")
    A(f"v_lshlrev_b32 v{vTmp}, 4, v{vTmp}")
    A(f"v_mov_b32 v{vTmp2}, 0xffff")
    A(f"v_lshlrev_b32 v{vTmp2}, v{vTmp}, v{vTmp2}")
    A(f"v_lshrrev_b32 v{vTmp}, 1, v{vC}")
    for k in range(4):
        A(f"v_cmp_eq_u32 vcc, {k}, v{vTmp}")
        A(f"v_cndmask_b32 v{vMk+k}, 0, v{vTmp2}, vcc")
    A(f"v_lshrrev_b32 v{vTmp}, 4, v{vLane}")
    A(f"v_lshlrev_b32 v{vLdsA}, 5, v{vC}")
    A(f"v_lshl_add_u32 v{vLdsA}, v{vTmp}, 4, v{vLdsA}")
    A(f"v_and_b32 v{vTmp2}, 12, v{vC}")
    A(f"v_add_u32 v{vTmp}, v{vTmp}, v{vTmp2}")
    A(f"v_and_b32 v{vTmp2}, 3, v{vC}")
    A(f"v_lshlrev_b32 v{vLdsS}, 3, v{vTmp2}")
    A(f"v_mul_u32_u24 v{vLdsO}, 576, v{vTmp2}")
    A(f"v_lshl_add_u32 v{vLdsO}, v{vTmp}, 2, v{vLdsO}")
    A(f"s_lshl_b32 s{sTmp}, s3, 7")
    A(f"v_add_u32 v{vLdsO}, s{sTmp}, v{vLdsO}")
    A(f"v_mov_b32 v{vM}, 0xff800000")
    A(f"v_mov_b32 v{vL}, 0")
    def ands(dst, src, lane):
        for k in range(4):
            A(f"v_and_b32_dpp v{dst+k}, v{src}, v{vMk+k} row_newbcast:{lane} {DPPF}")
    younger = lambda key: len(order) - 1 - order.index(key)
    A(f"s_waitcnt vmcnt({younger(('x', 2))})")
    for i in range(3):
        A(f"v_lshl_or_b32 v{vX+i}, v{vX+i}, 16, v{vX+i}")
    ands(vA0, vX, 0)
    for t in range(40):
        cur = vA0 if t % 2 == 0 else vA1; nxt = vA1 if t % 2 == 0 else vA0
        if t < 39: ands(nxt, vX + (t + 1) // 16, (t + 1) % 16)
        A(f"s_waitcnt vmcnt({younger(('wq', t))})")
        c = "0" if t == 0 else f"v[{vAcc}:{vAcc+3}]"
        A(f"v_mfma_f32_16x16x32_bf16 v[{vAcc}:{vAcc+3}], v[{cur}:{cur+3}], a[{4*t}:{4*t+3}], {c}")
    A(f"s_lshl_b32 s{sTmp}, s3, 9")
    A(f"v_add_u32 v{vTmp}, s{sTmp}, v{vLdsA}")
    A("s_mov_b32 exec_hi, 0")
    A(f"ds_write_b128 v{vTmp}, v[{vAcc}:{vAcc+3}] offset:{QP}")
    A("s_mov_b32 exec_hi, -1")
    A(f"v_lshlrev_b32 v{vTmp}, 5, v{vC}")
    A("s_waitcnt lgkmcnt(0)")
    A("s_barrier")
    for w in range(4):
        for hf in range(2):
            r = vSc + 8 * w + 4 * hf
            A(f"ds_read_b128 v[{r}:{r+3}], v{vTmp} offset:{QP + 512*w + 16*hf}")
    for k in range(4):
        A(f"v_mov_b32 v{vAcc+k}, 0")
    for w in range(1, 4):
        A(f"s_waitcnt lgkmcnt({6-2*w})")
        for e in range(8):
            A(f"v_add_f32 v{vSc+e}, v{vSc+e}, v{vSc+8*w+e}")
    for k in range(4):
        A(f"v_cvt_pk_bf16_f32 v{vQ+k}, v{vSc+2*k}, v{vSc+2*k+1}")
    stamp()

    class St: pass
    st = St()
    def woload(i):
        A(f"buffer_load_dwordx4 a[{4*i}:{4*i+3}], v{vWOo}, s[{sWO}:{sWO+3}], s{sWOoff} offen offset:{(i%5)*256} {wf}")
        if i % 5 == 4 and i < 39: A(f"s_add_u32 s{sWOoff}, s{sWOoff}, 5120")
    def body(w, issue, extra=(), final=False):
        extra = list(extra); nx = len(extra); npos = {}
        def wait(n):
            A(f"s_waitcnt vmcnt({n})")
            st.landed = max(st.landed, st.issued - n)
        def needl(n):
            if st.landed <= st.pos[n]: wait(st.issued - st.pos[n] - 1)
        def thr():
            if st.issued - st.landed > w - 1: wait(w - 1)
        def iss(n):
            if issue:
                thr(); kvload(n); npos[n] = st.issued; st.issued += 1
                k = (n + 1) * nx // 16 - n * nx // 16
                for _ in range(k):
                    thr(); woload(extra.pop(0)); st.issued += 1
        def dots(t, base):
            needl(base + 3)
            for k in range(4):
                for j in range(4):
                    c = "0" if k == 0 else f"v{t+j}"
                    A(f"v_dot2_f32_bf16 v{t+j}, v{vRing+4*(base+j)+k}, v{vQ+k}, {c}")
        dots(vTA, 0); iss(0); iss(1)
        dots(vTB, 4); iss(2); iss(3)
        for (d, s, ctl, bm) in ((0, 0, "row_ror:8", 3), (1, 1, "row_ror:8", 3), (0, 2, "row_ror:8", 12), (1, 3, "row_ror:8", 12),
                                (0, 0, "row_half_mirror", 5), (0, 1, "row_half_mirror", 10),
                                (0, 0, "quad_perm:[1,0,3,2]", 15), (0, 0, "quad_perm:[2,3,0,1]", 15)):
            for t in (vTA, vTB):
                A(f"v_add_f32_dpp v{t+d}, v{t+s}, v{t+s} {ctl} row_mask:0xf bank_mask:{hex(bm)}")
        iss(4)
        A(f"v_cndmask_b32 v{vS}, v{vTA}, v{vTB}, s[{sCC}:{sCC+1}]")
        A(f"v_cvt_pk_bf16_f32 v{vS}, v{vS}, v{vS}")
        A(f"v_and_b32 v{vS}, 0xffff0000, v{vS}")
        A(f"v_mul_f32 v{vS}, {hex(f2u(128 ** -0.5))}, v{vS}")
        A(f"v_cvt_pk_bf16_f32 v{vS}, v{vS}, v{vS}")
        A(f"v_and_b32 v{vS}, 0xffff0000, v{vS}")
        iss(5)
        A(f"v_max_f32_dpp v{vT}, v{vS}, v{vS} quad_perm:[2,3,0,1] {DPPF}")
        A(f"v_max_f32_dpp v{vT}, v{vT}, v{vT} row_ror:4 {DPPF}")
        A(f"v_max_f32_dpp v{vT}, v{vT}, v{vT} row_ror:8 {DPPF}")
        A(f"v_max_f32_dpp v{vT}, v{vT}, v{vT} row_bcast:15 row_mask:0xa bank_mask:0xf")
        A(f"v_max_f32_dpp v{vT}, v{vT}, v{vT} row_bcast:31 row_mask:0xc bank_mask:0xf")
        A(f"v_max_f32 v{vT}, v{vT}, v{vM}")
        A(f"v_readlane_b32 s{sM}, v{vT}, 63")
        iss(6)
        A(f"v_subrev_f32 v{vAl}, s{sM}, v{vM}")
        A(f"v_subrev_f32 v{vE}, s{sM}, v{vS}")
        A(f"v_mov_b32 v{vM}, s{sM}")
        A(f"v_mul_f32 v{vAl}, {hex(f2u(LOG2E))}, v{vAl}")
        A(f"v_mul_f32 v{vE}, {hex(f2u(LOG2E))}, v{vE}")
        A(f"v_exp_f32 v{vAl}, v{vAl}")
        A(f"v_exp_f32 v{vE}, v{vE}")
        iss(7)
        A(f"v_fma_f32 v{vL}, v{vL}, v{vAl}, v{vE}")
        if final:
            for ctl in ("row_ror:8 " + DPPF, "row_ror:4 " + DPPF, "row_ror:2 " + DPPF, "row_ror:1 " + DPPF,
                        "row_bcast:15 row_mask:0xa bank_mask:0xf", "row_bcast:31 row_mask:0xc bank_mask:0xf"):
                A(f"v_add_f32_dpp v{vL}, v{vL}, v{vL} {ctl}")
            A(f"s_lshl_b32 s{sTmp}, s3, 3")
            A(f"v_mov_b32 v{vTmp2}, s{sTmp}")
            A(f"v_mul_f32 v{vL}, 0.5, v{vL}")
            A("s_mov_b32 exec_lo, 0")
            A("s_mov_b32 exec_hi, 0x80000000")
            A(f"ds_write_b64 v{vTmp2}, v[{vM}:{vM+1}] offset:{ST}")
            A("s_mov_b64 exec, -1")
            A("s_waitcnt lgkmcnt(0)")
            A("s_barrier")
            A(f"ds_read_b64 v[{vTA}:{vTA+1}], v{vLdsS} offset:{ST}")
            A("s_waitcnt lgkmcnt(0)")
            A(f"v_max_f32_dpp v{vT}, v{vTA}, v{vTA} quad_perm:[1,0,3,2] {DPPF}")
            A(f"v_max_f32_dpp v{vT}, v{vT}, v{vT} quad_perm:[2,3,0,1] {DPPF}")
            A(f"v_sub_f32 v{vTA}, v{vTA}, v{vT}")
            A(f"v_sub_f32 v{vM}, v{vM}, v{vT}")
            A(f"v_mul_f32 v{vTA}, {hex(f2u(LOG2E))}, v{vTA}")
            A(f"v_mul_f32 v{vM}, {hex(f2u(LOG2E))}, v{vM}")
            A(f"v_exp_f32 v{vTA}, v{vTA}")
            A(f"v_exp_f32 v{vM}, v{vM}")
            A(f"v_mul_f32 v{vL}, v{vTA+1}, v{vTA}")
            A(f"v_add_f32_dpp v{vL}, v{vL}, v{vL} quad_perm:[1,0,3,2] {DPPF}")
            A(f"v_add_f32_dpp v{vL}, v{vL}, v{vL} quad_perm:[2,3,0,1] {DPPF}")
            A(f"v_rcp_f32 v{vL}, v{vL}")
            A(f"v_mul_f32 v{vM}, v{vM}, v{vL}")
            A(f"v_mul_f32 v{vE}, v{vE}, v{vM}")
            A(f"v_mul_f32 v{vAl}, v{vAl}, v{vM}")
        A(f"v_cvt_pk_bf16_f32 v{vPk}, v{vE}, v{vE}")
        for k in range(4):
            A(f"v_mul_f32 v{vAcc+k}, v{vAcc+k}, v{vAl}")
        if final:
            A(f"s_mul_i32 s{sTmp}, s3, 576")
            A(f"v_add_u32 v{vTmp}, s{sTmp}, v{vLdsA}")
            for k in range(4):
                A(f"v_not_b32 v{vOldP+k}, v{vOldP+k}")
        lane = lambda j: 4 * (j & 3) + 2 * (j >> 2)
        ands(vA0, vPk, lane(0))
        for j in range(8):
            cur = vA0 if j % 2 == 0 else vA1; nxt = vA1 if j % 2 == 0 else vA0
            if j < 7: ands(nxt, vPk, lane(j + 1))
            needl(8 + j)
            r = vRing + 4 * (8 + j)
            A(f"v_mfma_f32_16x16x32_bf16 v[{vAcc}:{vAcc+3}], v[{cur}:{cur+3}], v[{r}:{r+3}], v[{vAcc}:{vAcc+3}]")
            iss(8 + j)
        assert not extra
        if issue: st.pos = npos
    st.issued = len(order); st.landed = order.index(("wq", 39)) + 1
    st.pos = {n: order.index(("kv", n)) for n in range(16)}
    for b in range(NB):
        body(WB, True, range(40 * b // NB, 40 * (b + 1) // NB))
        A(f"s_add_u32 s{sOff}, s{sOff}, 0x8000")
    gap0 = st.issued - st.landed
    def canon(gap):
        st.issued = 16; st.landed = 16 - gap; st.pos = {n: n for n in range(16)}
    def loop(lbl, w, it_end, gap_in):
        A(f"{lbl}:")
        if diag and lbl == "L_main":
            A(f"s_cmp_eq_u32 s{sIt}, {chk}")
            A(f"s_cbranch_scc0 {lbl}_ns")
            stamp()
            A(f"{lbl}_ns:")
        canon(gap_in)
        body(w, True)
        assert st.issued - st.landed <= gap_in, (st.issued, st.landed)
        A(f"s_add_u32 s{sOff}, s{sOff}, 0x8000")
        A(f"s_add_u32 s{sIt}, s{sIt}, 1")
        A(f"s_cmp_lt_u32 s{sIt}, {it_end}")
        A(f"s_cbranch_scc1 {lbl}")
    A(f"s_mov_b32 s{sIt}, {NB}")
    gap = max(W, gap0)
    loop("L_main", W, NT - 1 - last, gap)
    gap = W
    if last:
        gap = max(W, W2)
        loop("L_main2", W2, NT - 1, gap)
    canon(gap)
    body(0, False, final=True)
    stamp()
    A("s_mov_b32 exec_hi, 0")
    A(f"ds_write_b128 v{vTmp}, v[{vAcc}:{vAcc+3}] offset:{OP}")
    A("s_mov_b32 exec_hi, -1")
    A(f"s_mul_i32 s{sTmp}, s3, 2560")
    A(f"v_add_u32 v{vTmp}, s{sTmp}, v{vLdsA}")
    A(f"v_lshlrev_b32 v{vTmp2}, 4, v0")
    A("s_waitcnt lgkmcnt(0)")
    A("s_barrier")
    A(f"ds_read_b32 v{vTA}, v{vLdsO} offset:{OP}")
    A(f"ds_read_b32 v{vTA+1}, v{vLdsO} offset:{OP+64}")
    stamp()
    A("s_waitcnt lgkmcnt(0)")
    for q in ("quad_perm:[1,0,3,2]", "quad_perm:[2,3,0,1]"):
        for r in (vTA, vTA + 1):
            A(f"v_add_f32_dpp v{r}, v{r}, v{r} {q} {DPPF}")
    A(f"v_cvt_pk_bf16_f32 v{vTA}, v{vTA}, v{vTA}")
    A(f"v_cvt_pk_bf16_f32 v{vTA+1}, v{vTA+1}, v{vTA+1}")
    vO = vRing
    ands(vA0, vTA, 0)
    for tq in range(8):
        cur = vA0 if tq % 2 == 0 else vA1; nxt = vA1 if tq % 2 == 0 else vA0
        for cb in range(5):
            i = tq * 5 + cb
            c = "0" if tq == 0 else f"v[{vO+4*cb}:{vO+4*cb+3}]"
            A(f"v_mfma_f32_16x16x32_bf16 v[{vO+4*cb}:{vO+4*cb+3}], v[{cur}:{cur+3}], a[{4*i}:{4*i+3}], {c}")
            if cb == 0 and tq < 7: ands(nxt, vTA + ((tq + 1) >> 2), 4 * ((tq + 1) & 3))
    A("s_mov_b32 exec_hi, 0")
    for cb in range(5):
        A(f"ds_write_b128 v{vTmp}, v[{vO+4*cb}:{vO+4*cb+3}] offset:{OUTP+512*cb}")
    A("s_mov_b32 exec_hi, -1")
    A("s_waitcnt lgkmcnt(0)")
    A("s_barrier")
    stamp()
    A(f"s_mov_b32 s{sSpin}, 0")
    A("s_cmp_eq_u32 s3, 3")
    A("s_cbranch_scc1 L_fin")
    for w in range(4):
        A(f"ds_read_b128 v[{vSc+4*w}:{vSc+4*w+3}], v{vTmp2} offset:{OUTP+2560*w}")
    for w in range(1, 4):
        A(f"s_waitcnt lgkmcnt({3-w})" if not diag else "s_waitcnt lgkmcnt(0)")
        for e in range(4):
            A(f"v_add_f32 v{vSc+e}, v{vSc+e}, v{vSc+4*w+e}")
    for e in range(4):
        A(f"v_bfi_b32 v{vSc+e}, 1, v{vOldP+e}, v{vSc+e}")
    A(f"buffer_store_dwordx4 v[{vSc}:{vSc+3}], v{vPub}, s[{sWS}:{sWS+3}], 0 offen sc1")
    stamp()
    vD = vSc + 16
    A(f"v_cmp_gt_u32 vcc, 160, v0")
    for e in range(4):
        A(f"v_mov_b32 v{vD+e}, 0")
    A("s_mov_b64 exec, vcc")
    A("L_s2:")
    A(f"buffer_load_dwordx4 v[{vD}:{vD+3}], v{vCon}, s[{sWS}:{sWS+3}], 0 offen sc1")
    A(f"s_add_u32 s{sSpin}, s{sSpin}, 1")
    A("s_waitcnt vmcnt(0)")
    for e in range(4):
        A(f"v_xor_b32 v{vSc+4+e}, v{vD+e}, v{vOldC+e}")
    A(f"v_and_b32 v{vSc+4}, v{vSc+4}, v{vSc+5}")
    A(f"v_and_b32 v{vSc+6}, v{vSc+6}, v{vSc+7}")
    A(f"v_and_b32 v{vSc+4}, v{vSc+4}, v{vSc+6}")
    A(f"v_and_b32 v{vSc+4}, 1, v{vSc+4}")
    A(f"v_cmp_eq_u32 vcc, 0, v{vSc+4}")
    A("s_and_b64 exec, exec, vcc")
    A("s_cbranch_execz L_s2out")
    A(f"s_cmp_ge_u32 s{sSpin}, 0x40000")
    A("s_cbranch_scc1 L_s2out")
    A(f"s_bcnt1_i32_b64 s{sTmp}, exec")
    A(f"s_cmp_le_u32 s{sTmp}, {nB}")
    A("s_cbranch_scc1 L_s2c")
    A(f"s_cmp_le_u32 s{sTmp}, {nA}")
    A("s_cbranch_scc1 L_s2b")
    A(f"s_sleep {slA}")
    A("L_s2b:")
    A(f"s_sleep {slB}")
    A("L_s2c:")
    if slC: A(f"s_sleep {slC}")
    A("s_branch L_s2")
    A("L_s2out:")
    A("s_mov_b64 exec, -1")
    for ctl in ("row_ror:8 " + DPPF, "row_ror:4 " + DPPF, "row_ror:2 " + DPPF, "row_ror:1 " + DPPF, "row_bcast:15 row_mask:0xa bank_mask:0xf"):
        for e in range(4):
            A(f"v_add_f32_dpp v{vD+e}, v{vD+e}, v{vD+e} {ctl}")
    A(f"v_cvt_pk_bf16_f32 v{vD}, v{vD}, v{vD+1}")
    A(f"v_cvt_pk_bf16_f32 v{vD+1}, v{vD+2}, v{vD+3}")
    A("s_mov_b32 exec_lo, 0x10000")
    A("s_mov_b32 exec_hi, 0x10000")
    A(f"buffer_store_dwordx2 v[{vD}:{vD+1}], v{vOutO}, s[{sOUT}:{sOUT+3}], 0 offen")
    A("L_fin:")
    if diag == 3:
        stamp()
        A("s_waitcnt lgkmcnt(0)")
        A(f"s_sub_u32 s{sTmp}, s{sST+2*ampk}, s{sST}")
        A(f"s_mul_i32 s{sTmp}, s{sTmp}, {amp}")
        A(f"s_add_u32 s{sTmp}, s{sTmp}, {fix}")
        A("L_hold:")
        A(f"s_memrealtime s[{sCC}:{sCC+1}]")
        A("s_waitcnt lgkmcnt(0)")
        A(f"s_sub_u32 s{sIt}, s{sCC}, s{sST}")
        A(f"s_cmp_lt_u32 s{sIt}, s{sTmp}")
        A("s_cbranch_scc1 L_hold")
    if diag == 1:
        stamp()
        A("s_mov_b64 exec, -1")
        A(f"s_getreg_b32 s{sTmp}, hwreg(HW_REG_XCC_ID)")
        A("s_waitcnt lgkmcnt(0)")
        A(f"v_mov_b32 v{vStamp}, 0")
        for k in range(nstamp[0]):
            A(f"v_writelane_b32 v{vStamp}, s{sST+2*k}, {k}")
        A(f"v_writelane_b32 v{vStamp}, s{sTmp}, 14")
        A(f"v_writelane_b32 v{vStamp}, s{sSpin}, 15")
        A(f"s_add_u32 s{sX}, s28, 0x100000")
        A(f"s_addc_u32 s{sX+1}, s29, 0")
        A(f"s_mov_b32 s{sX+2}, 0x10000")
        A(f"s_lshl_b32 s{sTmp}, s2, 2")
        A(f"s_add_u32 s{sTmp}, s{sTmp}, s3")
        A(f"s_lshl_b32 s{sTmp}, s{sTmp}, 6")
        A(f"v_lshlrev_b32 v{vTmp}, 2, v{vLane}")
        A("s_mov_b64 exec, 0xffff")
        A(f"buffer_store_dword v{vStamp}, v{vTmp}, s[{sX}:{sX+3}], s{sTmp} offen")
    A("L_end:")
    A("s_endpgm")
    code = A.finish()
    txt = HEADER + "; Override launch geometry by editing the next line (default: block=256,\n; grid=ceil(out_elems/256), lds=0). Harness parses it; keep it on one line.\n"
    txt += "; @launch grid=(256,1,1) block=(256,1,1) lds=16384\n"
    txt += f'''.amdgcn_target "amdgcn-amd-amdhsa--gfx950"
.text
.globl {name}
.p2align 8
.type {name},@function
''' + code + f'''.section .rodata,"a"
.p2align 6
.amdhsa_kernel {name}
  .amdhsa_next_free_vgpr 416
  .amdhsa_next_free_sgpr 102
  .amdhsa_accum_offset 256
  .amdhsa_group_segment_fixed_size 0
  .amdhsa_kernarg_size 104
  .amdhsa_user_sgpr_count 2
  .amdhsa_user_sgpr_kernarg_segment_ptr 1
  .amdhsa_system_sgpr_workgroup_id_x 1
  .amdhsa_float_denorm_mode_32 3
.end_amdhsa_kernel
'''
    return txt

if __name__ == "__main__":
    import json
    kw = json.loads(sys.argv[1]) if len(sys.argv) > 1 else {}
    sys.stdout.write(gen(**kw))
```

```python
import sys, struct
from asmlib import Asm

NAME = "concat_heads__mha_block_cached__gqa_block_cached__decode_kernel"
HEADER = open("concat_heads__mha_block_cached__gqa_block_cached__decode.s.ref").read().split("; Override launch")[0]
NSTAMP = 10
LOG2E = 1.4426950408889634
ROW = 3072

def f2u(x): return struct.unpack("<I", struct.pack("<f", x))[0]

def gen(W=5, WB=8, kvf="nt", wf="", pubf="sc1", diag=0, kper=2, swz=31, deep=1, W0=None, pv=0, oldpro=1, WF=None, noex=0, nofill=0, kvw=1, WP=None, WX=None, stl=('karg','issue','q','T8','T16','T24','end','bar'), earlypoll=0, sl0=0,
        wqB=(1, 6), qB=6, woA=(7, 16), epA=16, woB=(18, 31), oldT=2, Wlast=None, nlast=0,
        slA=24, slB=6, slC=0, nA=24, nB=12, amp=0, ampk=0, fix=15000, name=NAME):
    A = Asm()
    pX, pK, pV, pWQ, pWO = (4, 14), (6, 16), (8, 18), (10, 20), (12, 22)
    sS, sE, sWS, sOUT = 32, 36, 40, 44
    sB, sH, sHf, sO0, sO1, sBase, sTmp, sTmp2, sM, sSpin, sEo, sWQo, sWOo, sC0, sC1, sR = range(48, 64)
    sM1, sM2, sM3, sP5 = 64, 66, 68, 70
    sST = 76
    vLane, vWQo, vWOo, vXo, vPub, vCon, vOutO, vTmp, vTmp2, vC, vLdsA, vLdsO, vLdsS, vStamp, vLdsP = range(1, 16)
    vMk = 16; vQA = 20; vQB = 24; vA0 = 28; vA1 = 32; vAcc = 36; vAq = 40
    vTA, vTB = 44, 48
    vM, vL = 52, 53; vT, vF = 54, 55
    vX = 56
    vRing = 64
    vOff = 128
    vSs = 136
    vSc = 144
    vRing2 = 176
    vO = 176
    vOldP = (240, 244)
    vOldC = 248
    vD = 212
    vRes = 220
    vStat = (224, 226)
    vU = 228
    vE1, vE2 = 62, 63
    QP, OP, ST, OUTP = 0, 2048, 4352, 4608
    DPPF = "row_mask:0xf bank_mask:0xf"
    RED64 = ("row_ror:8 " + DPPF, "row_ror:4 " + DPPF, "row_ror:2 " + DPPF, "row_ror:1 " + DPPF,
             "row_bcast:15 row_mask:0xa bank_mask:0xf", "row_bcast:31 row_mask:0xc bank_mask:0xf")
    nstamp = [0]
    def stamp(kind=None):
        if kind is not None and kind not in stl: return
        if diag:
            A(f"s_memrealtime s[{sST+2*nstamp[0]}:{sST+2*nstamp[0]+1}]")
            nstamp[0] += 1
    class St: pass
    st = St(); st.issued = 0; st.landed = 0; st.pos = {}
    def op(key, text):
        A(text); st.pos[key] = st.issued; st.issued += 1
        assert st.issued - st.landed <= 63
    def wait(n):
        A(f"s_waitcnt vmcnt({n})"); st.landed = max(st.landed, st.issued - n)
    def need(key):
        if st.landed <= st.pos[key]: wait(st.issued - st.pos[key] - 1)
    def thr(w):
        if st.issued - st.landed > w - 1: wait(w - 1)
    st.kv = []; st.err = 0.0
    def thrkv(wf_):
        st.err += wf_; w = int(st.err + 1e-9); st.err -= w
        if len(st.kv) >= w:
            p = st.kv[len(st.kv) - w]
            if st.landed <= p: wait(st.issued - p - 1)
    def setbase(s, p): A(f"s_mov_b64 s[{s}:{s+1}], s[{p}:{p+1}]")

    A(f"{name}:")
    stamp()
    A("s_cmp_ge_u32 s2, 256")
    A("s_cbranch_scc1 L_end")
    A("s_load_dwordx16 s[4:19], s[0:1], 0")
    A("s_load_dwordx8 s[20:27], s[0:1], 64")
    A("s_load_dwordx2 s[28:29], s[0:1], 96")
    A(f"v_lshrrev_b32 v{vTmp}, 6, v0")
    A(f"v_and_b32 v{vLane}, 63, v0")
    A(f"v_readfirstlane_b32 s3, v{vTmp}")
    A(f"s_lshr_b32 s{sB}, s2, 6")
    A(f"s_and_b32 s{sH}, s2, 31")
    A(f"s_bfe_u32 s{sHf}, s2, 0x10005")
    A(f"v_and_b32 v{vC}, 15, v0")
    A(f"v_lshrrev_b32 v{vTmp}, 4, v{vLane}")
    A(f"v_lshlrev_b32 v{vTmp2}, 4, v{vC}")
    A(f"v_lshl_add_u32 v{vWQo}, v{vTmp}, 13, v{vTmp2}")
    A(f"v_mul_u32_u24 v{vWOo}, 1280, v{vTmp}")
    A(f"v_add_u32 v{vWOo}, v{vWOo}, v{vTmp2}")
    A(f"v_lshl_add_u32 v{vXo}, v{vC}, 2, v{vTmp}")
    A(f"v_lshlrev_b32 v{vXo}, 1, v{vXo}")
    A(f"s_mul_i32 s{sTmp}, s3, 320")
    A(f"s_mul_i32 s{sTmp2}, s{sB}, 1280")
    A(f"s_add_u32 s{sTmp}, s{sTmp}, s{sTmp2}")
    A(f"v_add_u32 v{vXo}, s{sTmp}, v{vXo}")
    A(f"s_mul_i32 s{sWQo}, s3, {160*8192}")
    A(f"s_lshl_b32 s{sTmp}, s{sH}, 8")
    A(f"s_add_u32 s{sWQo}, s{sWQo}, s{sTmp}")
    A(f"s_lshr_b32 s{sR}, s2, 3")
    A(f"s_add_u32 s{sR}, s{sR}, s2")
    A(f"s_and_b32 s{sR}, s{sR}, {swz}")
    A(f"v_lshlrev_b32 v{vTmp2}, 4, v{vLane}")
    for j in range(8):
        A(f"s_add_u32 s{sTmp}, s{sR}, {j}")
        A(f"s_and_b32 s{sTmp}, s{sTmp}, 7")
        A(f"v_lshl_add_u32 v{vOff+j}, s{sTmp}, 10, v{vTmp2}")
    A(f"s_lshr_b32 s{sTmp}, s{sR}, 3")
    A(f"s_xor_b32 s{sTmp}, s{sTmp}, s3")
    A(f"s_lshl_b32 s{sTmp}, s{sTmp}, 13")
    A(f"s_lshl_b32 s{sBase}, s{sB}, 6")
    A(f"s_lshl_b32 s{sTmp2}, s{sH}, 1")
    A(f"s_add_u32 s{sBase}, s{sBase}, s{sTmp2}")
    A(f"s_add_u32 s{sBase}, s{sBase}, s{sHf}")
    A(f"s_mul_i32 s{sC0}, s{sBase}, {ROW}")
    A(f"s_lshl_b32 s{sBase}, s{sBase}, 19")
    A(f"s_add_u32 s{sBase}, s{sBase}, s{sTmp}")
    A(f"s_mov_b32 s{sO0}, s{sBase}")
    A(f"s_add_u32 s{sO1}, s{sBase}, 0x40000")
    A(f"s_mov_b32 s{sS+2}, {128 << 20}")
    A(f"s_mov_b32 s{sS+3}, 0x20000")
    A(f"s_mov_b32 s{sE+2}, 5120")
    A(f"s_mov_b32 s{sE+3}, 0x20000")
    A(f"s_mov_b32 s{sEo}, s{sWQo}")
    A("s_waitcnt lgkmcnt(0)")
    stamp("karg")
    setbase(sE, pX[0])
    setbase(sS, pK[0])
    for i in range(3):
        op(("x", 0, i), f"buffer_load_ushort v{vX+i}, v{vXo}, s[{sE}:{sE+3}], 0 offen offset:{128*i}")
    setbase(sE, pWQ[0])
    A(f"s_mov_b32 s{sE+2}, 5242880")
    def slot(T, n): return (vRing2 if (deep and T == 0) else vRing) + 4 * n
    def reg4(T, n):
        if pv and T == 8: return f"a[{160+4*n}:{163+4*n}]"
        return f"v[{slot(T, n)}:{slot(T, n)+3}]"
    def kvload(T, n):
        st.kv.append(st.issued)
        op(("kv", T, n), f"buffer_load_dwordx4 {reg4(T, n)}, v{vOff + n % 8}, s[{sS}:{sS+3}], s{sO0 if n < 8 else sO1} offen {kvf}")
    def wqload(br, t):
        op(("wq", br, t), f"buffer_load_dwordx4 a[{4*t}:{4*t+3}], v{vWQo}, s[{sE}:{sE+3}], s{sEo} offen {wf}")
        if t < 39: A(f"s_add_u32 s{sEo}, s{sEo}, 0x8000")
    def woload(br, i):
        if i == 0:
            setbase(sE, pWO[br]); A(f"s_mov_b32 s{sEo}, s{sWOo}")
        op(("wo", br, i), f"buffer_load_dwordx4 a[{4*i}:{4*i+3}], v{vWOo}, s[{sE}:{sE+3}], s{sEo} offen offset:{(i%5)*256} {wf}")
        if i % 5 == 4 and i < 39: A(f"s_add_u32 s{sEo}, s{sEo}, 5120")
    def xB():
        setbase(sE, pX[1])
        A(f"s_mov_b32 s{sE+2}, 5120")
        for i in range(3):
            op(("x", 1, i), f"buffer_load_ushort v{vX+3+i}, v{vXo}, s[{sE}:{sE+3}], 0 offen offset:{128*i}")
        setbase(sE, pWQ[1])
        A(f"s_mov_b32 s{sE+2}, 5242880")
        A(f"s_mov_b32 s{sEo}, s{sWQo}")
    def nexttask():
        A(f"s_add_u32 s{sO0}, s{sO0}, 0x8000")
        A(f"s_add_u32 s{sO1}, s{sO1}, 0x8000")
    nkv = 0
    for t in range(40):
        if WP: thr(WP)
        wqload(0, t)
        while kper and nkv < 16 and (nkv + 1) * kper <= t + 1:
            if WP: thr(WP)
            kvload(0, nkv); nkv += 1
    for n in range(nkv, 16): kvload(0, n)
    late = []
    if deep:
        nexttask()
        for n in range(4): kvload(1, n)
        late = [(lambda n=n: kvload(1, n)) for n in range(4, 16)]
        if pv:
            def pvload(n):
                if n == 0:
                    setbase(sS, pV[0]); A(f"s_mov_b32 s{sO0}, s{sBase}"); A(f"s_add_u32 s{sO1}, s{sBase}, 0x40000")
                kvload(8, n)
                if n == 15:
                    setbase(sS, pK[0]); nexttask()
            late += [(lambda n=n: pvload(n)) for n in range(16)]
        late += [xB]
    else:
        xB()
    stamp("issue")
    setbase(sOUT, 24); A(f"s_mov_b32 s{sOUT+2}, 10240"); A(f"s_mov_b32 s{sOUT+3}, 0x20000")
    setbase(sWS, 28); A(f"s_mov_b32 s{sWS+2}, {8*64*ROW}"); A(f"s_mov_b32 s{sWS+3}, 0x20000")
    for m, v in ((sM1, 0x22222222), (sM2, 0x44444444), (sM3, 0x88888888)):
        A(f"s_mov_b32 s{m}, {hex(v)}"); A(f"s_mov_b32 s{m+1}, {hex(v)}")
    A(f"s_lshl_b32 s{sWOo}, s{sH}, 2")
    A(f"s_add_u32 s{sWOo}, s{sWOo}, s3")
    A(f"s_mul_i32 s{sWOo}, s{sWOo}, {32*1280}")
    A(f"v_mov_b32 v{vTmp2}, 0x7fffffff")
    A(f"v_cmp_gt_u32 vcc, 192, v0")
    A(f"v_lshlrev_b32 v{vPub}, 4, v0")
    A(f"v_add_u32 v{vPub}, s{sC0}, v{vPub}")
    A(f"v_cndmask_b32 v{vPub}, v{vTmp2}, v{vPub}, vcc")
    A(f"v_mul_u32_u24 v{vTmp}, 171, v0")
    A(f"v_lshrrev_b32 v{vTmp}, 10, v{vTmp}")
    A(f"v_sub_u32 v{vLdsP}, v0, v{vTmp}")
    A(f"v_mul_u32_u24 v{vTmp}, 6, v{vTmp}")
    A(f"v_sub_u32 v{vTmp}, v0, v{vTmp}")
    A(f"v_cmp_eq_u32 s[{sP5}:{sP5+1}], 5, v{vTmp}")
    A(f"v_lshlrev_b32 v{vLdsP}, 4, v{vLdsP}")
    A(f"s_lshl_b32 s{sTmp}, s{sHf}, 2")
    A(f"s_add_u32 s{sTmp}, s{sTmp}, s{sB}")
    A(f"s_lshl_b32 s{sTmp}, s{sTmp}, 2")
    A(f"s_add_u32 s{sTmp}, s{sTmp}, s3")
    A(f"s_mul_i32 s{sC0}, s{sTmp}, {16*ROW}")
    A(f"s_mul_i32 s{sTmp}, s{sH}, 96")
    A(f"s_add_u32 s{sC0}, s{sC0}, s{sTmp}")
    A(f"s_add_u32 s{sC1}, s{sC0}, {8*ROW}")
    A(f"v_lshrrev_b32 v{vCon}, 3, v{vLane}")
    A(f"v_mul_u32_u24 v{vCon}, {ROW}, v{vCon}")
    A(f"v_and_b32 v{vTmp}, 7, v{vLane}")
    A(f"v_lshl_add_u32 v{vCon}, v{vTmp}, 4, v{vCon}")
    A(f"v_cmp_gt_u32 vcc, 6, v{vTmp}")
    A(f"v_cndmask_b32 v{vCon}, v{vTmp2}, v{vCon}, vcc")
    A(f"s_mul_i32 s{sTmp}, s{sB}, 2560")
    A(f"s_mul_i32 s{sTmp2}, s{sHf}, 1280")
    A(f"s_add_u32 s{sTmp}, s{sTmp}, s{sTmp2}")
    A(f"s_mul_i32 s{sTmp2}, s{sH}, 40")
    A(f"s_add_u32 s{sTmp}, s{sTmp}, s{sTmp2}")
    A(f"v_mov_b32 v{vOutO}, s{sTmp}")
    A(f"v_and_b32 v{vTmp}, 1, v{vC}")
    A(f"v_lshlrev_b32 v{vTmp}, 4, v{vTmp}")
    A(f"v_mov_b32 v{vTmp2}, 0xffff")
    A(f"v_lshlrev_b32 v{vTmp2}, v{vTmp}, v{vTmp2}")
    A(f"v_lshrrev_b32 v{vTmp}, 1, v{vC}")
    for k in range(4):
        A(f"v_cmp_eq_u32 vcc, {k}, v{vTmp}")
        A(f"v_cndmask_b32 v{vMk+k}, 0, v{vTmp2}, vcc")
    A(f"v_lshrrev_b32 v{vTmp}, 4, v{vLane}")
    A(f"v_lshlrev_b32 v{vLdsA}, 5, v{vC}")
    A(f"v_lshl_add_u32 v{vLdsA}, v{vTmp}, 4, v{vLdsA}")
    A(f"v_and_b32 v{vTmp2}, 12, v{vC}")
    A(f"v_add_u32 v{vTmp}, v{vTmp}, v{vTmp2}")
    A(f"v_and_b32 v{vTmp2}, 3, v{vC}")
    A(f"v_lshlrev_b32 v{vLdsS}, 3, v{vTmp2}")
    A(f"v_mul_u32_u24 v{vLdsO}, 576, v{vTmp2}")
    A(f"v_lshl_add_u32 v{vLdsO}, v{vTmp}, 2, v{vLdsO}")
    A(f"s_lshl_b32 s{sTmp}, s3, 7")
    A(f"v_add_u32 v{vLdsO}, s{sTmp}, v{vLdsO}")

    def ands(dst, src, lane):
        for k in range(4):
            A(f"v_and_b32_dpp v{dst+k}, v{src}, v{vMk+k} row_newbcast:{lane} {DPPF}")
    def bar():
        A("s_waitcnt lgkmcnt(0)"); A("s_barrier")
    def ldsw(scale, off, reg):
        A(f"s_mul_i32 s{sTmp}, s3, {scale}")
        A(f"v_add_u32 v{vE1}, s{sTmp}, v{vLdsA}")
        A("s_mov_b32 exec_hi, 0")
        for o, r in zip(off, reg):
            A(f"ds_write_b128 v{vE1}, v[{r}:{r+3}] offset:{o}")
        A("s_mov_b32 exec_hi, -1")
    def q_chunks(br, per):
        xs = vX + 3 * br
        def head():
            need(("x", br, 2))
            for i in range(3):
                A(f"v_lshl_or_b32 v{xs+i}, v{xs+i}, 16, v{xs+i}")
            ands(vA0, xs, 0)
        def mm(t0, t1):
            def f():
                for t in range(t0, t1):
                    cur = vA0 if t % 2 == 0 else vA1; nxt = vA1 if t % 2 == 0 else vA0
                    if t < 39: ands(nxt, xs + (t + 1) // 16, (t + 1) % 16)
                    need(("wq", br, t))
                    c = "0" if t == 0 else f"v[{vAq}:{vAq+3}]"
                    A(f"v_mfma_f32_16x16x32_bf16 v[{vAq}:{vAq+3}], v[{cur}:{cur+3}], a[{4*t}:{4*t+3}], {c}")
                    if br == 0 and late and (t >= 2 or len(late) > 1): late.pop(0)()
            return f
        return [head] + [mm(t, min(40, t + per)) for t in range(0, 40, per)] + [lambda: ldsw(512, [QP if br == 0 else OUTP], [vAq])]
    def q_finish(dst):
        QP = 0 if dst == vQA else OUTP
        A(f"v_lshlrev_b32 v{vE1}, 5, v{vC}")
        for w in range(4):
            for hf in range(2):
                r = vSc + 8 * w + 4 * hf
                A(f"ds_read_b128 v[{r}:{r+3}], v{vE1} offset:{QP + 512*w + 16*hf}")
        for w in range(1, 4):
            A(f"s_waitcnt lgkmcnt({6-2*w})" if not diag else "s_waitcnt lgkmcnt(0)")
            for e in range(8):
                A(f"v_add_f32 v{vSc+e}, v{vSc+e}, v{vSc+8*w+e}")
        for k in range(4):
            A(f"v_cvt_pk_bf16_f32 v{dst+k}, v{vSc+2*k}, v{vSc+2*k+1}")
    olds = [lambda: op(("old", 0), f"buffer_load_dwordx4 v[{vOldP[0]}:{vOldP[0]+3}], v{vPub}, s[{sWS}:{sWS+3}], 0 offen sc1"),
            lambda: (A(f"s_mov_b32 s{sTmp}, {4*64*ROW}"),
                     op(("old", 1), f"buffer_load_dwordx4 v[{vOldP[1]}:{vOldP[1]+3}], v{vPub}, s[{sWS}:{sWS+3}], s{sTmp} offen sc1")),
            lambda: op(("old", 2), f"buffer_load_dwordx4 v[{vOldC}:{vOldC+3}], v{vCon}, s[{sWS}:{sWS+3}], s{sC0} offen sc1"),
            lambda: op(("old", 3), f"buffer_load_dwordx4 v[{vOldC+4}:{vOldC+7}], v{vCon}, s[{sWS}:{sWS+3}], s{sC1} offen sc1")]
    if oldpro: late += olds
    for f in q_chunks(0, 40): f()
    assert not late
    stamp("qm")
    bar()
    q_finish(vQA)
    stamp("q")

    def softmax_chunks(br):
        S = [vSs + t for t in range(8)]
        def c_round(op_):
            return lambda: [A(op_.format(s=s)) for s in S]
        def c_max():
            A(f"v_max3_f32 v{vT}, v{S[0]}, v{S[1]}, v{S[2]}")
            A(f"v_max3_f32 v{vF}, v{S[3]}, v{S[4]}, v{S[5]}")
            A(f"v_max3_f32 v{vT}, v{vT}, v{S[6]}, v{S[7]}")
            A(f"v_max_f32 v{vT}, v{vT}, v{vF}")
            for ctl in RED64: A(f"v_max_f32_dpp v{vT}, v{vT}, v{vT} {ctl}")
            A(f"v_readlane_b32 s{sM}, v{vT}, 63")
        def c_exp():
            for s in S: A(f"v_subrev_f32 v{s}, s{sM}, v{s}")
            for s in S: A(f"v_mul_f32 v{s}, {hex(f2u(LOG2E))}, v{s}")
            for s in S: A(f"v_exp_f32 v{s}, v{s}")
        def c_sum():
            A(f"v_mov_b32 v{vM}, s{sM}")
            A(f"v_add_f32 v{vL}, v{S[0]}, v{S[1]}")
            A(f"v_add_f32 v{vT}, v{S[2]}, v{S[3]}")
            A(f"v_add_f32 v{vF}, v{S[4]}, v{S[5]}")
            A(f"v_add_f32 v{vE1}, v{S[6]}, v{S[7]}")
            A(f"v_add_f32 v{vL}, v{vL}, v{vT}")
            A(f"v_add_f32 v{vF}, v{vF}, v{vE1}")
            A(f"v_add_f32 v{vL}, v{vL}, v{vF}")
            for ctl in RED64: A(f"v_add_f32_dpp v{vL}, v{vL}, v{vL} {ctl}")
            A(f"s_lshl_b32 s{sTmp}, s3, 3")
            A(f"v_mov_b32 v{vE1}, s{sTmp}")
            A("s_mov_b32 exec_lo, 0")
            A("s_mov_b32 exec_hi, 0x80000000")
            A(f"ds_write_b64 v{vE1}, v[{vM}:{vM+1}] offset:{ST}")
            A("s_mov_b64 exec, -1")
        def c_norm():
            bar()
            A(f"ds_read_b64 v[{vTA}:{vTA+1}], v{vLdsS} offset:{ST}")
            A("s_waitcnt lgkmcnt(0)")
            Mx, Lx = vStat[br], vStat[br] + 1
            A(f"v_max_f32_dpp v{Mx}, v{vTA}, v{vTA} quad_perm:[1,0,3,2] {DPPF}")
            A(f"v_max_f32_dpp v{Mx}, v{Mx}, v{Mx} quad_perm:[2,3,0,1] {DPPF}")
            A(f"v_sub_f32 v{vTA}, v{vTA}, v{Mx}")
            A(f"v_sub_f32 v{vM}, v{vM}, v{Mx}")
            A(f"v_mul_f32 v{vTA}, {hex(f2u(LOG2E))}, v{vTA}")
            A(f"v_mul_f32 v{vM}, {hex(f2u(LOG2E))}, v{vM}")
            A(f"v_exp_f32 v{vTA}, v{vTA}")
            A(f"v_exp_f32 v{vM}, v{vM}")
            A(f"v_mul_f32 v{Lx}, v{vTA+1}, v{vTA}")
            A(f"v_add_f32_dpp v{Lx}, v{Lx}, v{Lx} quad_perm:[1,0,3,2] {DPPF}")
            A(f"v_add_f32_dpp v{Lx}, v{Lx}, v{Lx} quad_perm:[2,3,0,1] {DPPF}")
            A(f"v_rcp_f32 v{vF}, v{Lx}")
            A(f"v_mul_f32 v{vF}, v{vF}, v{vM}")
        def c_pack():
            for s in S: A(f"v_mul_f32 v{s}, v{s}, v{vF}")
            for s in S: A(f"v_cvt_pk_bf16_f32 v{s}, v{s}, v{s}")
        def c_r1():
            for o in ("v_cvt_pk_bf16_f32 v{s}, v{s}, v{s}", "v_and_b32 v{s}, 0xffff0000, v{s}", "v_mul_f32 v{s}, " + hex(f2u(128 ** -0.5)) + ", v{s}"):
                c_round(o)()
        def c_r2():
            for o in ("v_cvt_pk_bf16_f32 v{s}, v{s}, v{s}", "v_and_b32 v{s}, 0xffff0000, v{s}"):
                c_round(o)()
        ch = [c_r1, lambda: (c_r2(), c_max()), c_exp, c_sum, c_norm, c_pack]
        if br == 0: ch[-1] = lambda: (c_pack(), q_finish(vQB))
        return ch
    def proj_chunks(br, res, per):
        def c_w(): ldsw(576, [OP], [vAcc])
        def c_r():
            bar()
            A(f"ds_read_b32 v{vU}, v{vLdsO} offset:{OP}")
            A(f"ds_read_b32 v{vU+1}, v{vLdsO} offset:{OP+64}")
            if br == 1: stamp('bar')
            A("s_waitcnt lgkmcnt(0)")
            for q in ("quad_perm:[1,0,3,2]", "quad_perm:[2,3,0,1]"):
                for r in (vU, vU + 1):
                    A(f"v_add_f32_dpp v{r}, v{r}, v{r} {q} {DPPF}")
            A(f"v_cvt_pk_bf16_f32 v{vU}, v{vU}, v{vU}")
            A(f"v_cvt_pk_bf16_f32 v{vU+1}, v{vU+1}, v{vU+1}")
            need(("wo", br, 39))
            ands(vA0, vU, 0)
        def mm(q0, q1):
            def f():
                for tq in range(q0, q1):
                    cur = vA0 if tq % 2 == 0 else vA1; nxt = vA1 if tq % 2 == 0 else vA0
                    for cb in range(5):
                        i = tq * 5 + cb
                        c = "0" if tq == 0 else f"v[{vO+4*cb}:{vO+4*cb+3}]"
                        A(f"v_mfma_f32_16x16x32_bf16 v[{vO+4*cb}:{vO+4*cb+3}], v[{cur}:{cur+3}], a[{4*i}:{4*i+3}], {c}")
                        if cb == 0 and tq < 7: ands(nxt, vU + ((tq + 1) >> 2), 4 * ((tq + 1) & 3))
            return f
        def c_w2():
            ldsw(2560, [OUTP + 512 * cb for cb in range(5)], [vO + 4 * cb for cb in range(5)])
        def c_sum():
            bar()
            for w in range(4):
                A(f"ds_read_b128 v[{vSc+4*w}:{vSc+4*w+3}], v{vLdsP} offset:{OUTP+2560*w}")
            for w in range(1, 4):
                A(f"s_waitcnt lgkmcnt({3-w})" if not diag else "s_waitcnt lgkmcnt(0)")
                for e in range(4):
                    A(f"v_add_f32 v{vSc+e}, v{vSc+e}, v{vSc+4*w+e}")
            A(f"v_cndmask_b32 v{vSc}, v{vSc}, v{vStat[br]}, s[{sP5}:{sP5+1}]")
            A(f"v_cndmask_b32 v{vSc+1}, v{vSc+1}, v{vStat[br]+1}, s[{sP5}:{sP5+1}]")
            for e in range(4):
                A(f"v_bfi_b32 v{res+e}, 1, v{vOldP[br]+e}, v{vSc+e}")
        return [c_w, c_r] + [mm(q, q + per) for q in range(0, 8, per)] + [c_w2, c_sum]
    def poll(key):
        op((key, 0), f"buffer_load_dwordx4 v[{vD}:{vD+3}], v{vCon}, s[{sWS}:{sWS+3}], s{sC0} offen sc1")
        op((key, 1), f"buffer_load_dwordx4 v[{vD+4}:{vD+7}], v{vCon}, s[{sWS}:{sWS+3}], s{sC1} offen sc1")
    def notold():
        need(("old", 1))
        for br in range(2):
            for e in range(4): A(f"v_not_b32 v{vOldP[br]+e}, v{vOldP[br]+e}")

    extras = {T: [] for T in range(32)}
    fills = {T: [] for T in range(32)}
    def spread(rng, fn):
        Ts = list(range(rng[0], rng[1])); n = len(Ts)
        for a, T in enumerate(Ts):
            extras[T] += [(lambda i=i: fn(i)) for i in range(40 * a // n, 40 * (a + 1) // n)]
    if noex:
        for i in range(40): st.pos[("wq", 1, i)] = st.pos[("wo", 0, i)] = st.pos[("wo", 1, i)] = 0
        spread = lambda a, b: None
    spread(wqB, lambda i: wqload(1, i))
    spread(woA, lambda i: woload(0, i))
    spread(woB, lambda i: woload(1, i))
    if not oldpro:
        for a, f in enumerate(olds): extras[oldT + a].insert(0, f)
    fills[qB] = q_chunks(1, 3)
    pa = proj_chunks(0, vRes, 1)
    fills[epA] = [pa[0], pa[1]] + pa[2:6]
    fills[epA + 1] = pa[6:10] + [pa[10], pa[11]]
    if nofill: fills = {T: [] for T in range(32)}
    fills[15].append(notold)
    assert wqB[1] <= qB < 7 and woA[0] > qB and woA[1] <= epA and woB[0] > epA + 1 and oldT + 5 < 15 and epA > 15

    def body(T):
        ph, t = T >> 3, T & 7
        br = ph >> 1; isK = (ph & 1) == 0
        issue = T < 31 and not (deep and T == 0) and not (pv and T == 8)
        Tn = 9 if (pv and T == 7) else T + 1
        ex = list(extras[T]); nx = len(ex)
        fl = list(fills[T]); nf = len(fl)
        w = WB if nx >= 3 else W
        if Wlast and T >= 31 - nlast: w = Wlast
        if issue:
            if t == 7:
                setbase(sS, (pV[br] if isK else pK[1]))
                A(f"s_mov_b32 s{sO0}, s{sBase}")
                A(f"s_add_u32 s{sO1}, s{sBase}, 0x40000")
                if Tn == 9: nexttask()
            else:
                nexttask()
        if WF and (nf > 1 or (isK and t == 7)): w = max(w, WF)
        if W0 and T <= 1: w = W0
        wk = WX if (WX and nx >= 3) else W
        if Wlast and T >= 31 - nlast: wk = Wlast
        if WF and (nf > 1 or (isK and t == 7)): wk = max(wk, WF)
        def iss(n):
            if issue:
                if kvw: thrkv(wk)
                else: thr(w)
                kvload(Tn, n)
            for _ in range((n + 1) * nx // 16 - n * nx // 16):
                if not kvw: thr(w)
                ex.pop(0)()
            for _ in range((n + 1) * nf // 16 - n * nf // 16):
                fl.pop(0)()
        if isK:
            vQ = vQA if br == 0 else vQB
            def dots(tr, base):
                need(("kv", T, base + 3))
                for k in range(4):
                    for j in range(4):
                        c = "0" if k == 0 else f"v{tr+j}"
                        A(f"v_dot2_f32_bf16 v{tr+j}, v{slot(T, base+j)+k}, v{vQ+k}, {c}")
            def red():
                for (d, s, ctl, bm) in ((0, 0, "row_ror:8", 3), (1, 1, "row_ror:8", 3), (0, 2, "row_ror:8", 12), (1, 3, "row_ror:8", 12),
                                        (0, 0, "row_half_mirror", 5), (0, 1, "row_half_mirror", 10),
                                        (0, 0, "quad_perm:[1,0,3,2]", 15), (0, 0, "quad_perm:[2,3,0,1]", 15)):
                    for tr in (vTA, vTB):
                        A(f"v_add_f32_dpp v{tr+d}, v{tr+s}, v{tr+s} {ctl} row_mask:0xf bank_mask:{hex(bm)}")
            S = vSs + t
            if t < 7:
                dots(vTA, 0); iss(0); iss(1)
                dots(vTB, 4); iss(2); iss(3)
                red(); iss(4); iss(5)
                A(f"v_cndmask_b32 v{S}, v{vTA}, v{vTB}, s[{sM1}:{sM1+1}]")
                iss(6); iss(7)
                dots(vTA, 8); iss(8); iss(9)
                dots(vTB, 12); iss(10); iss(11)
                red(); iss(12); iss(13)
                A(f"v_cndmask_b32 v{S}, v{S}, v{vTA}, s[{sM2}:{sM2+1}]")
                A(f"v_cndmask_b32 v{S}, v{S}, v{vTB}, s[{sM3}:{sM3+1}]")
                iss(14); iss(15)
            else:
                assert nf == 0
                dots(vTA, 0); iss(0); iss(1)
                dots(vTB, 4); iss(2); iss(3)
                red(); iss(4)
                A(f"v_cndmask_b32 v{S}, v{vTA}, v{vTB}, s[{sM1}:{sM1+1}]")
                dots(vTA, 8); iss(5); iss(6)
                dots(vTB, 12); iss(7); iss(8)
                red(); iss(9)
                A(f"v_cndmask_b32 v{S}, v{S}, v{vTA}, s[{sM2}:{sM2+1}]")
                A(f"v_cndmask_b32 v{S}, v{S}, v{vTB}, s[{sM3}:{sM3+1}]")
                for a, f in enumerate(softmax_chunks(br)):
                    f(); iss(10 + a)
        else:
            lane = lambda n: 4 * (n & 3) + (n >> 2)
            Pk = vSs + t
            if T == 31:
                op(("pub", 0), f"buffer_store_dwordx4 v[{vRes}:{vRes+3}], v{vPub}, s[{sWS}:{sWS+3}], 0 offen {pubf}")
            ands(vA0, Pk, lane(0))
            for n in range(16):
                cur = vA0 if n % 2 == 0 else vA1; nxt = vA1 if n % 2 == 0 else vA0
                if n < 15: ands(nxt, Pk, lane(n + 1))
                need(("kv", T, n))
                c = "0" if (t == 0 and n == 0) else f"v[{vAcc}:{vAcc+3}]"
                A(f"v_mfma_f32_16x16x32_bf16 v[{vAcc}:{vAcc+3}], v[{cur}:{cur+3}], {reg4(T, n)}, {c}")
                iss(n)
        assert not ex and not fl
    for T in range(32):
        stamp(f'T{T}')
        body(T)
    stamp("end")
    pb = proj_chunks(1, vSc + 16, 8)
    pb[0]()
    if earlypoll: poll("p0")
    A(f"s_mov_b32 s{sTmp2}, {4*64*ROW}")
    A(f"s_mov_b32 s{sSpin}, 0")
    for f in pb[1:-1]: f()
    stamp("mm")
    pb[-1]()
    op(("pub", 1), f"buffer_store_dwordx4 v[{vSc+16}:{vSc+19}], v{vPub}, s[{sWS}:{sWS+3}], s{sTmp2} offen {pubf}")
    stamp("pub")
    need(("old", 3))
    A("s_mov_b32 exec_lo, 0x3f3f3f3f")
    A("s_mov_b32 exec_hi, 0x3f3f3f3f")
    if sl0: A(f"s_sleep {sl0}")
    if not earlypoll: poll("p0")
    need(("p0", 1))
    A("L_chk:")
    for e in range(8):
        A(f"v_xor_b32 v{vSc+e}, v{vD+e}, v{vOldC+e}")
    for (a, b) in ((0, 1), (2, 3), (4, 5), (6, 7), (0, 2), (4, 6), (0, 4)):
        A(f"v_and_b32 v{vSc+a}, v{vSc+a}, v{vSc+b}")
    A(f"v_and_b32 v{vSc}, 1, v{vSc}")
    A(f"v_cmp_eq_u32 vcc, 0, v{vSc}")
    A("s_and_b64 exec, exec, vcc")
    A("s_cbranch_execz L_got")
    A(f"s_add_u32 s{sSpin}, s{sSpin}, 1")
    A(f"s_cmp_ge_u32 s{sSpin}, 0x40000")
    A("s_cbranch_scc1 L_got")
    A(f"s_bcnt1_i32_b64 s{sTmp}, exec")
    A(f"s_cmp_le_u32 s{sTmp}, {nB}")
    A("s_cbranch_scc1 L_pc")
    A(f"s_cmp_le_u32 s{sTmp}, {nA}")
    A("s_cbranch_scc1 L_pb")
    if slA: A(f"s_sleep {slA}")
    A("L_pb:")
    if slB: A(f"s_sleep {slB}")
    A("L_pc:")
    if slC: A(f"s_sleep {slC}")
    poll("p1")
    A("s_waitcnt vmcnt(0)")
    A("s_branch L_chk")
    A("L_got:")
    stamp("got")
    A("s_mov_b64 exec, -1")
    Mw, Lw, Tw, Fw = (vSc, vSc + 1), (vSc + 2, vSc + 3), (vSc + 4, vSc + 5), (vSc + 6, vSc + 7)
    for i in range(2):
        for dst, src in ((Mw[i], vD + 4 * i), (Lw[i], vD + 4 * i + 1)):
            A(f"v_mov_b32_dpp v{dst}, v{src} row_newbcast:5 row_mask:0xf bank_mask:0x3")
    for i in range(2):
        for dst, src in ((Mw[i], vD + 4 * i), (Lw[i], vD + 4 * i + 1)):
            A(f"v_mov_b32_dpp v{dst}, v{src} row_newbcast:13 row_mask:0xf bank_mask:0xc")
    A(f"v_lshrrev_b32 v{vTmp}, 4, v0")
    A(f"v_mul_u32_u24 v{vTmp}, 144, v{vTmp}")
    for i in range(2): A(f"v_max_f32_dpp v{Tw[i]}, v{Mw[i]}, v{Mw[i]} row_ror:8 {DPPF}")
    A(f"v_and_b32 v{vTmp2}, 7, v0")
    for i in range(2): A(f"v_sub_f32 v{Tw[i]}, v{Mw[i]}, v{Tw[i]}")
    for i in range(2): A(f"v_mul_f32 v{Tw[i]}, {hex(f2u(LOG2E))}, v{Tw[i]}")
    for i in range(2): A(f"v_exp_f32 v{Tw[i]}, v{Tw[i]}")
    A(f"v_lshl_add_u32 v{vTmp}, v{vTmp2}, 4, v{vTmp}")
    for i in range(2): A(f"v_mul_f32 v{Tw[i]}, v{Tw[i]}, v{Lw[i]}")
    A(f"v_mul_u32_u24 v{vTmp2}, 144, v{vC}")
    A(f"s_lshl_b32 s{sTmp}, s3, 4")
    for i in range(2): A(f"v_add_f32_dpp v{Fw[i]}, v{Tw[i]}, v{Tw[i]} row_ror:8 {DPPF}")
    for i in range(2): A(f"v_rcp_f32 v{Fw[i]}, v{Fw[i]}")
    A(f"v_mov_b32 v{vT}, s{sTmp}")
    for i in range(2): A(f"v_mul_f32 v{Tw[i]}, v{Tw[i]}, v{Fw[i]}")
    A(f"v_cmp_gt_u32 vcc, 16, v{vLane}")
    for e in range(4): A(f"v_mul_f32 v{vD+e}, v{vD+e}, v{Tw[0]}")
    A(f"v_cndmask_b32 v{vT}, 64, v{vT}, vcc")
    for e in range(4): A(f"v_fmac_f32 v{vD+e}, v{vD+4+e}, v{Tw[1]}")
    A(f"v_add_u32 v{vTmp2}, v{vTmp2}, v{vT}")
    for e in range(4): A(f"v_add_f32_dpp v{vD+e}, v{vD+e}, v{vD+e} row_ror:8 {DPPF}")
    A("s_mov_b32 exec_lo, 0x001f001f")
    A("s_mov_b32 exec_hi, 0x001f001f")
    A(f"ds_write_b128 v{vTmp}, v[{vD}:{vD+3}] offset:{QP}")
    A("s_mov_b64 exec, -1")
    A(f"v_lshrrev_b32 v{vT}, 1, v{vT}")
    A(f"v_add_u32 v{vOutO}, v{vOutO}, v{vT}")
    bar()
    A(f"ds_read_b128 v[{vD}:{vD+3}], v{vTmp2} offset:{QP}")
    A("s_cmp_eq_u32 s3, 0")
    A(f"s_cselect_b32 s{sTmp}, 0x10001, 1")
    A("s_waitcnt lgkmcnt(0)")
    for ctl in RED64[:4]:
        for e in range(4):
            A(f"v_add_f32_dpp v{vD+e}, v{vD+e}, v{vD+e} {ctl}")
    A(f"v_cvt_pk_bf16_f32 v{vD}, v{vD}, v{vD+1}")
    A(f"v_cvt_pk_bf16_f32 v{vD+1}, v{vD+2}, v{vD+3}")
    A(f"s_mov_b32 exec_lo, s{sTmp}")
    A("s_mov_b32 exec_hi, 0")
    A(f"buffer_store_dwordx2 v[{vD}:{vD+1}], v{vOutO}, s[{sOUT}:{sOUT+3}], 0 offen")
    if diag == 3:
        stamp()
        A("s_waitcnt lgkmcnt(0)")
        A(f"s_sub_u32 s{sTmp}, s{sST+2*ampk}, s{sST}")
        A(f"s_mul_i32 s{sTmp}, s{sTmp}, {amp}")
        A(f"s_add_u32 s{sTmp}, s{sTmp}, {fix}")
        A("L_hold:")
        A(f"s_memrealtime s[{sM1}:{sM1+1}]")
        A("s_waitcnt lgkmcnt(0)")
        A(f"s_sub_u32 s{sTmp2}, s{sM1}, s{sST}")
        A(f"s_cmp_lt_u32 s{sTmp2}, s{sTmp}")
        A("s_cbranch_scc1 L_hold")
    if diag == 1:
        stamp()
        A("s_mov_b64 exec, -1")
        A(f"s_getreg_b32 s{sTmp}, hwreg(HW_REG_XCC_ID)")
        A("s_waitcnt lgkmcnt(0)")
        A(f"v_mov_b32 v{vStamp}, 0")
        for k in range(nstamp[0]):
            A(f"v_writelane_b32 v{vStamp}, s{sST+2*k}, {k}")
        A(f"v_writelane_b32 v{vStamp}, s{sTmp}, 14")
        A(f"v_writelane_b32 v{vStamp}, s{sSpin}, 15")
        A(f"s_add_u32 s{sE}, s28, 0x200000")
        A(f"s_addc_u32 s{sE+1}, s29, 0")
        A(f"s_mov_b32 s{sE+2}, 0x10000")
        A(f"s_lshl_b32 s{sTmp}, s2, 2")
        A(f"s_add_u32 s{sTmp}, s{sTmp}, s3")
        A(f"s_lshl_b32 s{sTmp}, s{sTmp}, 6")
        A(f"v_lshlrev_b32 v{vTmp}, 2, v{vLane}")
        A("s_mov_b64 exec, 0xffff")
        A(f"buffer_store_dword v{vStamp}, v{vTmp}, s[{sE}:{sE+3}], s{sTmp} offen")
        assert nstamp[0] == NSTAMP, nstamp
    A("L_end:")
    A("s_endpgm")
    code = A.finish()
    txt = HEADER + "; Override launch geometry by editing the next line (default: block=256,\n; grid=ceil(out_elems/256), lds=0). Harness parses it; keep it on one line.\n"
    txt += "; @launch grid=(256,1,1) block=(256,1,1) lds=16384\n"
    txt += f'''.amdgcn_target "amdgcn-amd-amdhsa--gfx950"
.text
.globl {name}
.p2align 8
.type {name},@function
''' + code + f'''.section .rodata,"a"
.p2align 6
.amdhsa_kernel {name}
  .amdhsa_next_free_vgpr 512
  .amdhsa_next_free_sgpr 102
  .amdhsa_accum_offset 256
  .amdhsa_group_segment_fixed_size 0
  .amdhsa_kernarg_size 104
  .amdhsa_user_sgpr_count 2
  .amdhsa_user_sgpr_kernarg_segment_ptr 1
  .amdhsa_system_sgpr_workgroup_id_x 1
  .amdhsa_float_denorm_mode_32 3
.end_amdhsa_kernel
'''
    return txt
DIAG_OFF = 0x200000

if __name__ == "__main__":
    import json
    kw = json.loads(sys.argv[1]) if len(sys.argv) > 1 else {}
    sys.stdout.write(gen(**kw))
```

```python
import sys, struct
from asmlib import Asm

NAME = "concat_heads__mha_block_cached__gqa_block_cached__decode_kernel"
HEADER = open("concat_heads__mha_block_cached__gqa_block_cached__decode.s.ref").read().split("; Override launch")[0]
NSTAMP = 10
LOG2E = 1.4426950408889634
ROW = 3072

def f2u(x): return struct.unpack("<I", struct.pack("<f", x))[0]

def gen(W=5, WB=8, kvf="nt", wf="", pubf="sc1", diag=0, kper=2, swz=31, deep=1, W0=None, pv=0, oldpro=1, WF=None, noex=0, nofill=0, kvw=1, WP=None, WX=None, outf='', lds=16384, nv=512, ns=102, stl=('karg','issue','q','T8','T16','T24','end','bar'), earlypoll=0, sl0=0,
        wqB=(1, 6), qB=6, woA=(7, 16), epA=16, woB=(18, 31), oldT=2, Wlast=None, nlast=0,
        slA=24, slB=6, slC=0, nA=24, nB=12, amp=0, ampk=0, fix=15000, name=NAME):
    A = Asm()
    pX, pK, pV, pWQ, pWO = (4, 14), (6, 16), (8, 18), (10, 20), (12, 22)
    sS, sE, sWS, sOUT = 32, 36, 40, 44
    sB, sH, sHf, sO0, sO1, sBase, sTmp, sTmp2, sM, sSpin, sEo, sWQo, sWOo, sC0, sC1, sR = range(48, 64)
    sM1, sM2, sM3, sP5 = 64, 66, 68, 70
    sST = 76
    vLane, vWQo, vWOo, vXo, vPub, vCon, vOutO, vTmp, vTmp2, vC, vLdsA, vLdsO, vLdsS, vStamp, vLdsP = range(1, 16)
    vMk = 16; vQA = 20; vQB = 24; vA0 = 28; vA1 = 32; vAcc = 36; vAq = 40
    vTA, vTB = 44, 48
    vM, vL = 52, 53; vT, vF = 54, 55
    vX = 56
    vRing = 64
    vOff = 128
    vSs = 136
    vSc = 144
    vRing2 = 176
    vO = 176
    vOldP = (240, 244)
    vOldC = 248
    vD = 212
    vRes = 220
    vStat = (224, 226)
    vU = 228
    vE1, vE2 = 62, 63
    QP, OP, ST, OUTP = 0, 2048, 4352, 4608
    DPPF = "row_mask:0xf bank_mask:0xf"
    RED64 = ("row_ror:8 " + DPPF, "row_ror:4 " + DPPF, "row_ror:2 " + DPPF, "row_ror:1 " + DPPF,
             "row_bcast:15 row_mask:0xa bank_mask:0xf", "row_bcast:31 row_mask:0xc bank_mask:0xf")
    nstamp = [0]
    def stamp(kind=None):
        if kind is not None and kind not in stl: return
        if diag:
            A(f"s_memrealtime s[{sST+2*nstamp[0]}:{sST+2*nstamp[0]+1}]")
            nstamp[0] += 1
    class St: pass
    st = St(); st.issued = 0; st.landed = 0; st.pos = {}
    def op(key, text):
        A(text); st.pos[key] = st.issued; st.issued += 1
        assert st.issued - st.landed <= 63
    def wait(n):
        A(f"s_waitcnt vmcnt({n})"); st.landed = max(st.landed, st.issued - n)
    def need(key):
        if st.landed <= st.pos[key]: wait(st.issued - st.pos[key] - 1)
    def thr(w):
        if st.issued - st.landed > w - 1: wait(w - 1)
    st.kv = []; st.err = 0.0
    def thrkv(wf_):
        st.err += wf_; w = int(st.err + 1e-9); st.err -= w
        if len(st.kv) >= w:
            p = st.kv[len(st.kv) - w]
            if st.landed <= p: wait(st.issued - p - 1)
    def setbase(s, p): A(f"s_mov_b64 s[{s}:{s+1}], s[{p}:{p+1}]")

    A(f"{name}:")
    stamp()
    A("s_cmp_ge_u32 s2, 256")
    A("s_cbranch_scc1 L_end")
    A("s_load_dwordx16 s[4:19], s[0:1], 0")
    A("s_load_dwordx8 s[20:27], s[0:1], 64")
    A("s_load_dwordx2 s[28:29], s[0:1], 96")
    A(f"v_lshrrev_b32 v{vTmp}, 6, v0")
    A(f"v_and_b32 v{vLane}, 63, v0")
    A(f"v_readfirstlane_b32 s3, v{vTmp}")
    A(f"s_lshr_b32 s{sB}, s2, 6")
    A(f"s_and_b32 s{sH}, s2, 31")
    A(f"s_bfe_u32 s{sHf}, s2, 0x10005")
    A(f"v_and_b32 v{vC}, 15, v0")
    A(f"v_lshrrev_b32 v{vTmp}, 4, v{vLane}")
    A(f"v_lshlrev_b32 v{vTmp2}, 4, v{vC}")
    A(f"v_lshl_add_u32 v{vWQo}, v{vTmp}, 13, v{vTmp2}")
    A(f"v_mul_u32_u24 v{vWOo}, 1280, v{vTmp}")
    A(f"v_add_u32 v{vWOo}, v{vWOo}, v{vTmp2}")
    A(f"v_lshl_add_u32 v{vXo}, v{vC}, 2, v{vTmp}")
    A(f"v_lshlrev_b32 v{vXo}, 1, v{vXo}")
    A(f"s_mul_i32 s{sTmp}, s3, 320")
    A(f"s_mul_i32 s{sTmp2}, s{sB}, 1280")
    A(f"s_add_u32 s{sTmp}, s{sTmp}, s{sTmp2}")
    A(f"v_add_u32 v{vXo}, s{sTmp}, v{vXo}")
    A(f"s_mul_i32 s{sWQo}, s3, {160*8192}")
    A(f"s_lshl_b32 s{sTmp}, s{sH}, 8")
    A(f"s_add_u32 s{sWQo}, s{sWQo}, s{sTmp}")
    A(f"s_lshr_b32 s{sR}, s2, 3")
    A(f"s_add_u32 s{sR}, s{sR}, s2")
    A(f"s_and_b32 s{sR}, s{sR}, {swz}")
    A(f"v_lshlrev_b32 v{vTmp2}, 4, v{vLane}")
    for j in range(8):
        A(f"s_add_u32 s{sTmp}, s{sR}, {j}")
        A(f"s_and_b32 s{sTmp}, s{sTmp}, 7")
        A(f"v_lshl_add_u32 v{vOff+j}, s{sTmp}, 10, v{vTmp2}")
    A(f"s_lshr_b32 s{sTmp}, s{sR}, 3")
    A(f"s_xor_b32 s{sTmp}, s{sTmp}, s3")
    A(f"s_lshl_b32 s{sTmp}, s{sTmp}, 13")
    A(f"s_lshl_b32 s{sBase}, s{sB}, 6")
    A(f"s_lshl_b32 s{sTmp2}, s{sH}, 1")
    A(f"s_add_u32 s{sBase}, s{sBase}, s{sTmp2}")
    A(f"s_add_u32 s{sBase}, s{sBase}, s{sHf}")
    A(f"s_mul_i32 s{sC0}, s{sBase}, {ROW}")
    A(f"s_lshl_b32 s{sBase}, s{sBase}, 19")
    A(f"s_add_u32 s{sBase}, s{sBase}, s{sTmp}")
    A(f"s_mov_b32 s{sO0}, s{sBase}")
    A(f"s_add_u32 s{sO1}, s{sBase}, 0x40000")
    A(f"s_mov_b32 s{sS+2}, {128 << 20}")
    A(f"s_mov_b32 s{sS+3}, 0x20000")
    A(f"s_mov_b32 s{sE+2}, 5120")
    A(f"s_mov_b32 s{sE+3}, 0x20000")
    A(f"s_mov_b32 s{sEo}, s{sWQo}")
    A("s_waitcnt lgkmcnt(0)")
    stamp("karg")
    setbase(sE, pX[0])
    setbase(sS, pK[0])
    for i in range(3):
        op(("x", 0, i), f"buffer_load_ushort v{vX+i}, v{vXo}, s[{sE}:{sE+3}], 0 offen offset:{128*i}")
    setbase(sE, pWQ[0])
    A(f"s_mov_b32 s{sE+2}, 5242880")
    def slot(T, n): return (vRing2 if (deep and T == 0) else vRing) + 4 * n
    def reg4(T, n):
        if pv and T == 8: return f"a[{160+4*n}:{163+4*n}]"
        return f"v[{slot(T, n)}:{slot(T, n)+3}]"
    def kvload(T, n):
        st.kv.append(st.issued)
        op(("kv", T, n), f"buffer_load_dwordx4 {reg4(T, n)}, v{vOff + n % 8}, s[{sS}:{sS+3}], s{sO0 if n < 8 else sO1} offen {kvf}")
    def wqload(br, t):
        op(("wq", br, t), f"buffer_load_dwordx4 a[{4*t}:{4*t+3}], v{vWQo}, s[{sE}:{sE+3}], s{sEo} offen {wf}")
        if t < 39: A(f"s_add_u32 s{sEo}, s{sEo}, 0x8000")
    def woload(br, i):
        if i == 0:
            setbase(sE, pWO[br]); A(f"s_mov_b32 s{sEo}, s{sWOo}")
        op(("wo", br, i), f"buffer_load_dwordx4 a[{4*i}:{4*i+3}], v{vWOo}, s[{sE}:{sE+3}], s{sEo} offen offset:{(i%5)*256} {wf}")
        if i % 5 == 4 and i < 39: A(f"s_add_u32 s{sEo}, s{sEo}, 5120")
    def xB():
        setbase(sE, pX[1])
        A(f"s_mov_b32 s{sE+2}, 5120")
        for i in range(3):
            op(("x", 1, i), f"buffer_load_ushort v{vX+3+i}, v{vXo}, s[{sE}:{sE+3}], 0 offen offset:{128*i}")
        setbase(sE, pWQ[1])
        A(f"s_mov_b32 s{sE+2}, 5242880")
        A(f"s_mov_b32 s{sEo}, s{sWQo}")
    def nexttask():
        A(f"s_add_u32 s{sO0}, s{sO0}, 0x8000")
        A(f"s_add_u32 s{sO1}, s{sO1}, 0x8000")
    nkv = 0
    for t in range(40):
        if WP: thr(WP)
        wqload(0, t)
        while kper and nkv < 16 and (nkv + 1) * kper <= t + 1:
            if WP: thr(WP)
            kvload(0, nkv); nkv += 1
    for n in range(nkv, 16): kvload(0, n)
    late = []
    if deep:
        nexttask()
        for n in range(4): kvload(1, n)
        late = [(lambda n=n: kvload(1, n)) for n in range(4, 16)]
        if pv:
            def pvload(n):
                if n == 0:
                    setbase(sS, pV[0]); A(f"s_mov_b32 s{sO0}, s{sBase}"); A(f"s_add_u32 s{sO1}, s{sBase}, 0x40000")
                kvload(8, n)
                if n == 15:
                    setbase(sS, pK[0]); nexttask()
            late += [(lambda n=n: pvload(n)) for n in range(16)]
        late += [xB]
    else:
        xB()
    stamp("issue")
    setbase(sOUT, 24); A(f"s_mov_b32 s{sOUT+2}, 10240"); A(f"s_mov_b32 s{sOUT+3}, 0x20000")
    setbase(sWS, 28); A(f"s_mov_b32 s{sWS+2}, {8*64*ROW}"); A(f"s_mov_b32 s{sWS+3}, 0x20000")
    for m, v in ((sM1, 0x22222222), (sM2, 0x44444444), (sM3, 0x88888888)):
        A(f"s_mov_b32 s{m}, {hex(v)}"); A(f"s_mov_b32 s{m+1}, {hex(v)}")
    A(f"s_lshl_b32 s{sWOo}, s{sH}, 2")
    A(f"s_add_u32 s{sWOo}, s{sWOo}, s3")
    A(f"s_mul_i32 s{sWOo}, s{sWOo}, {32*1280}")
    A(f"v_mov_b32 v{vTmp2}, 0x7fffffff")
    A(f"v_cmp_gt_u32 vcc, 192, v0")
    A(f"v_lshlrev_b32 v{vPub}, 4, v0")
    A(f"v_add_u32 v{vPub}, s{sC0}, v{vPub}")
    A(f"v_cndmask_b32 v{vPub}, v{vTmp2}, v{vPub}, vcc")
    A(f"v_mul_u32_u24 v{vTmp}, 171, v0")
    A(f"v_lshrrev_b32 v{vTmp}, 10, v{vTmp}")
    A(f"v_sub_u32 v{vLdsP}, v0, v{vTmp}")
    A(f"v_mul_u32_u24 v{vTmp}, 6, v{vTmp}")
    A(f"v_sub_u32 v{vTmp}, v0, v{vTmp}")
    A(f"v_cmp_eq_u32 s[{sP5}:{sP5+1}], 5, v{vTmp}")
    A(f"v_lshlrev_b32 v{vLdsP}, 4, v{vLdsP}")
    A(f"s_lshl_b32 s{sTmp}, s{sHf}, 2")
    A(f"s_add_u32 s{sTmp}, s{sTmp}, s{sB}")
    A(f"s_lshl_b32 s{sTmp}, s{sTmp}, 2")
    A(f"s_add_u32 s{sTmp}, s{sTmp}, s3")
    A(f"s_mul_i32 s{sC0}, s{sTmp}, {16*ROW}")
    A(f"s_mul_i32 s{sTmp}, s{sH}, 96")
    A(f"s_add_u32 s{sC0}, s{sC0}, s{sTmp}")
    A(f"s_add_u32 s{sC1}, s{sC0}, {8*ROW}")
    A(f"v_lshrrev_b32 v{vCon}, 3, v{vLane}")
    A(f"v_mul_u32_u24 v{vCon}, {ROW}, v{vCon}")
    A(f"v_and_b32 v{vTmp}, 7, v{vLane}")
    A(f"v_lshl_add_u32 v{vCon}, v{vTmp}, 4, v{vCon}")
    A(f"v_cmp_gt_u32 vcc, 6, v{vTmp}")
    A(f"v_cndmask_b32 v{vCon}, v{vTmp2}, v{vCon}, vcc")
    A(f"s_mul_i32 s{sTmp}, s{sB}, 2560")
    A(f"s_mul_i32 s{sTmp2}, s{sHf}, 1280")
    A(f"s_add_u32 s{sTmp}, s{sTmp}, s{sTmp2}")
    A(f"s_mul_i32 s{sTmp2}, s{sH}, 40")
    A(f"s_add_u32 s{sTmp}, s{sTmp}, s{sTmp2}")
    A(f"v_mov_b32 v{vOutO}, s{sTmp}")
    A(f"v_and_b32 v{vTmp}, 1, v{vC}")
    A(f"v_lshlrev_b32 v{vTmp}, 4, v{vTmp}")
    A(f"v_mov_b32 v{vTmp2}, 0xffff")
    A(f"v_lshlrev_b32 v{vTmp2}, v{vTmp}, v{vTmp2}")
    A(f"v_lshrrev_b32 v{vTmp}, 1, v{vC}")
    for k in range(4):
        A(f"v_cmp_eq_u32 vcc, {k}, v{vTmp}")
        A(f"v_cndmask_b32 v{vMk+k}, 0, v{vTmp2}, vcc")
    A(f"v_lshrrev_b32 v{vTmp}, 4, v{vLane}")
    A(f"v_lshlrev_b32 v{vLdsA}, 5, v{vC}")
    A(f"v_lshl_add_u32 v{vLdsA}, v{vTmp}, 4, v{vLdsA}")
    A(f"v_and_b32 v{vTmp2}, 12, v{vC}")
    A(f"v_add_u32 v{vTmp}, v{vTmp}, v{vTmp2}")
    A(f"v_and_b32 v{vTmp2}, 3, v{vC}")
    A(f"v_lshlrev_b32 v{vLdsS}, 3, v{vTmp2}")
    A(f"v_mul_u32_u24 v{vLdsO}, 576, v{vTmp2}")
    A(f"v_lshl_add_u32 v{vLdsO}, v{vTmp}, 2, v{vLdsO}")
    A(f"s_lshl_b32 s{sTmp}, s3, 7")
    A(f"v_add_u32 v{vLdsO}, s{sTmp}, v{vLdsO}")

    def ands(dst, src, lane):
        for k in range(4):
            A(f"v_and_b32_dpp v{dst+k}, v{src}, v{vMk+k} row_newbcast:{lane} {DPPF}")
    def bar():
        A("s_waitcnt lgkmcnt(0)"); A("s_barrier")
    def ldsw(scale, off, reg):
        A(f"s_mul_i32 s{sTmp}, s3, {scale}")
        A(f"v_add_u32 v{vE1}, s{sTmp}, v{vLdsA}")
        A("s_mov_b32 exec_hi, 0")
        for o, r in zip(off, reg):
            A(f"ds_write_b128 v{vE1}, v[{r}:{r+3}] offset:{o}")
        A("s_mov_b32 exec_hi, -1")
    def q_chunks(br, per):
        xs = vX + 3 * br
        def head():
            need(("x", br, 2))
            for i in range(3):
                A(f"v_lshl_or_b32 v{xs+i}, v{xs+i}, 16, v{xs+i}")
            ands(vA0, xs, 0)
        def mm(t0, t1):
            def f():
                for t in range(t0, t1):
                    cur = vA0 if t % 2 == 0 else vA1; nxt = vA1 if t % 2 == 0 else vA0
                    if t < 39: ands(nxt, xs + (t + 1) // 16, (t + 1) % 16)
                    need(("wq", br, t))
                    c = "0" if t == 0 else f"v[{vAq}:{vAq+3}]"
                    A(f"v_mfma_f32_16x16x32_bf16 v[{vAq}:{vAq+3}], v[{cur}:{cur+3}], a[{4*t}:{4*t+3}], {c}")
                    if br == 0 and late and (t >= 2 or len(late) > 1): late.pop(0)()
            return f
        return [head] + [mm(t, min(40, t + per)) for t in range(0, 40, per)] + [lambda: ldsw(512, [QP if br == 0 else OUTP], [vAq])]
    def q_finish(dst):
        QP = 0 if dst == vQA else OUTP
        A(f"v_lshlrev_b32 v{vE1}, 5, v{vC}")
        for w in range(4):
            for hf in range(2):
                r = vSc + 8 * w + 4 * hf
                A(f"ds_read_b128 v[{r}:{r+3}], v{vE1} offset:{QP + 512*w + 16*hf}")
        for w in range(1, 4):
            A(f"s_waitcnt lgkmcnt({6-2*w})" if not diag else "s_waitcnt lgkmcnt(0)")
            for e in range(8):
                A(f"v_add_f32 v{vSc+e}, v{vSc+e}, v{vSc+8*w+e}")
        for k in range(4):
            A(f"v_cvt_pk_bf16_f32 v{dst+k}, v{vSc+2*k}, v{vSc+2*k+1}")
    olds = [lambda: op(("old", 0), f"buffer_load_dwordx4 v[{vOldP[0]}:{vOldP[0]+3}], v{vPub}, s[{sWS}:{sWS+3}], 0 offen sc1"),
            lambda: (A(f"s_mov_b32 s{sTmp}, {4*64*ROW}"),
                     op(("old", 1), f"buffer_load_dwordx4 v[{vOldP[1]}:{vOldP[1]+3}], v{vPub}, s[{sWS}:{sWS+3}], s{sTmp} offen sc1")),
            lambda: op(("old", 2), f"buffer_load_dwordx4 v[{vOldC}:{vOldC+3}], v{vCon}, s[{sWS}:{sWS+3}], s{sC0} offen sc1"),
            lambda: op(("old", 3), f"buffer_load_dwordx4 v[{vOldC+4}:{vOldC+7}], v{vCon}, s[{sWS}:{sWS+3}], s{sC1} offen sc1")]
    if oldpro: late += olds
    for f in q_chunks(0, 40): f()
    assert not late
    stamp("qm")
    bar()
    q_finish(vQA)
    stamp("q")

    def softmax_chunks(br):
        S = [vSs + t for t in range(8)]
        def c_round(op_):
            return lambda: [A(op_.format(s=s)) for s in S]
        def c_max():
            A(f"v_max3_f32 v{vT}, v{S[0]}, v{S[1]}, v{S[2]}")
            A(f"v_max3_f32 v{vF}, v{S[3]}, v{S[4]}, v{S[5]}")
            A(f"v_max3_f32 v{vT}, v{vT}, v{S[6]}, v{S[7]}")
            A(f"v_max_f32 v{vT}, v{vT}, v{vF}")
            for ctl in RED64: A(f"v_max_f32_dpp v{vT}, v{vT}, v{vT} {ctl}")
            A(f"v_readlane_b32 s{sM}, v{vT}, 63")
        def c_exp():
            for s in S: A(f"v_subrev_f32 v{s}, s{sM}, v{s}")
            for s in S: A(f"v_mul_f32 v{s}, {hex(f2u(LOG2E))}, v{s}")
            for s in S: A(f"v_exp_f32 v{s}, v{s}")
        def c_sum():
            A(f"v_mov_b32 v{vM}, s{sM}")
            A(f"v_add_f32 v{vL}, v{S[0]}, v{S[1]}")
            A(f"v_add_f32 v{vT}, v{S[2]}, v{S[3]}")
            A(f"v_add_f32 v{vF}, v{S[4]}, v{S[5]}")
            A(f"v_add_f32 v{vE1}, v{S[6]}, v{S[7]}")
            A(f"v_add_f32 v{vL}, v{vL}, v{vT}")
            A(f"v_add_f32 v{vF}, v{vF}, v{vE1}")
            A(f"v_add_f32 v{vL}, v{vL}, v{vF}")
            for ctl in RED64: A(f"v_add_f32_dpp v{vL}, v{vL}, v{vL} {ctl}")
            A(f"s_lshl_b32 s{sTmp}, s3, 3")
            A(f"v_mov_b32 v{vE1}, s{sTmp}")
            A("s_mov_b32 exec_lo, 0")
            A("s_mov_b32 exec_hi, 0x80000000")
            A(f"ds_write_b64 v{vE1}, v[{vM}:{vM+1}] offset:{ST}")
            A("s_mov_b64 exec, -1")
        def c_norm():
            bar()
            A(f"ds_read_b64 v[{vTA}:{vTA+1}], v{vLdsS} offset:{ST}")
            A("s_waitcnt lgkmcnt(0)")
            Mx, Lx = vStat[br], vStat[br] + 1
            A(f"v_max_f32_dpp v{Mx}, v{vTA}, v{vTA} quad_perm:[1,0,3,2] {DPPF}")
            A(f"v_max_f32_dpp v{Mx}, v{Mx}, v{Mx} quad_perm:[2,3,0,1] {DPPF}")
            A(f"v_sub_f32 v{vTA}, v{vTA}, v{Mx}")
            A(f"v_sub_f32 v{vM}, v{vM}, v{Mx}")
            A(f"v_mul_f32 v{vTA}, {hex(f2u(LOG2E))}, v{vTA}")
            A(f"v_mul_f32 v{vM}, {hex(f2u(LOG2E))}, v{vM}")
            A(f"v_exp_f32 v{vTA}, v{vTA}")
            A(f"v_exp_f32 v{vM}, v{vM}")
            A(f"v_mul_f32 v{Lx}, v{vTA+1}, v{vTA}")
            A(f"v_add_f32_dpp v{Lx}, v{Lx}, v{Lx} quad_perm:[1,0,3,2] {DPPF}")
            A(f"v_add_f32_dpp v{Lx}, v{Lx}, v{Lx} quad_perm:[2,3,0,1] {DPPF}")
            A(f"v_rcp_f32 v{vF}, v{Lx}")
            A(f"v_mul_f32 v{vF}, v{vF}, v{vM}")
        def c_pack():
            for s in S: A(f"v_mul_f32 v{s}, v{s}, v{vF}")
            for s in S: A(f"v_cvt_pk_bf16_f32 v{s}, v{s}, v{s}")
        def c_r1():
            for o in ("v_cvt_pk_bf16_f32 v{s}, v{s}, v{s}", "v_and_b32 v{s}, 0xffff0000, v{s}", "v_mul_f32 v{s}, " + hex(f2u(128 ** -0.5)) + ", v{s}"):
                c_round(o)()
        def c_r2():
            for o in ("v_cvt_pk_bf16_f32 v{s}, v{s}, v{s}", "v_and_b32 v{s}, 0xffff0000, v{s}"):
                c_round(o)()
        ch = [c_r1, lambda: (c_r2(), c_max()), c_exp, c_sum, c_norm, c_pack]
        if br == 0: ch[-1] = lambda: (c_pack(), q_finish(vQB))
        return ch
    def proj_chunks(br, res, per):
        def c_w(): ldsw(576, [OP], [vAcc])
        def c_r():
            bar()
            A(f"ds_read_b32 v{vU}, v{vLdsO} offset:{OP}")
            A(f"ds_read_b32 v{vU+1}, v{vLdsO} offset:{OP+64}")
            if br == 1: stamp('bar')
            A("s_waitcnt lgkmcnt(0)")
            for q in ("quad_perm:[1,0,3,2]", "quad_perm:[2,3,0,1]"):
                for r in (vU, vU + 1):
                    A(f"v_add_f32_dpp v{r}, v{r}, v{r} {q} {DPPF}")
            A(f"v_cvt_pk_bf16_f32 v{vU}, v{vU}, v{vU}")
            A(f"v_cvt_pk_bf16_f32 v{vU+1}, v{vU+1}, v{vU+1}")
            need(("wo", br, 39))
            ands(vA0, vU, 0)
        def mm(q0, q1):
            def f():
                for tq in range(q0, q1):
                    cur = vA0 if tq % 2 == 0 else vA1; nxt = vA1 if tq % 2 == 0 else vA0
                    for cb in range(5):
                        i = tq * 5 + cb
                        c = "0" if tq == 0 else f"v[{vO+4*cb}:{vO+4*cb+3}]"
                        A(f"v_mfma_f32_16x16x32_bf16 v[{vO+4*cb}:{vO+4*cb+3}], v[{cur}:{cur+3}], a[{4*i}:{4*i+3}], {c}")
                        if cb == 0 and tq < 7: ands(nxt, vU + ((tq + 1) >> 2), 4 * ((tq + 1) & 3))
            return f
        def c_w2():
            ldsw(2560, [OUTP + 512 * cb for cb in range(5)], [vO + 4 * cb for cb in range(5)])
        def c_sum():
            bar()
            for w in range(4):
                A(f"ds_read_b128 v[{vSc+4*w}:{vSc+4*w+3}], v{vLdsP} offset:{OUTP+2560*w}")
            for w in range(1, 4):
                A(f"s_waitcnt lgkmcnt({3-w})" if not diag else "s_waitcnt lgkmcnt(0)")
                for e in range(4):
                    A(f"v_add_f32 v{vSc+e}, v{vSc+e}, v{vSc+4*w+e}")
            A(f"v_cndmask_b32 v{vSc}, v{vSc}, v{vStat[br]}, s[{sP5}:{sP5+1}]")
            A(f"v_cndmask_b32 v{vSc+1}, v{vSc+1}, v{vStat[br]+1}, s[{sP5}:{sP5+1}]")
            for e in range(4):
                A(f"v_bfi_b32 v{res+e}, 1, v{vOldP[br]+e}, v{vSc+e}")
        return [c_w, c_r] + [mm(q, q + per) for q in range(0, 8, per)] + [c_w2, c_sum]
    def poll(key):
        op((key, 0), f"buffer_load_dwordx4 v[{vD}:{vD+3}], v{vCon}, s[{sWS}:{sWS+3}], s{sC0} offen sc1")
        op((key, 1), f"buffer_load_dwordx4 v[{vD+4}:{vD+7}], v{vCon}, s[{sWS}:{sWS+3}], s{sC1} offen sc1")
    def notold():
        need(("old", 1))
        for br in range(2):
            for e in range(4): A(f"v_not_b32 v{vOldP[br]+e}, v{vOldP[br]+e}")

    extras = {T: [] for T in range(32)}
    fills = {T: [] for T in range(32)}
    def spread(rng, fn):
        Ts = list(range(rng[0], rng[1])); n = len(Ts)
        for a, T in enumerate(Ts):
            extras[T] += [(lambda i=i: fn(i)) for i in range(40 * a // n, 40 * (a + 1) // n)]
    if noex:
        for i in range(40): st.pos[("wq", 1, i)] = st.pos[("wo", 0, i)] = st.pos[("wo", 1, i)] = 0
        spread = lambda a, b: None
    spread(wqB, lambda i: wqload(1, i))
    spread(woA, lambda i: woload(0, i))
    spread(woB, lambda i: woload(1, i))
    if not oldpro:
        for a, f in enumerate(olds): extras[oldT + a].insert(0, f)
    fills[qB] = q_chunks(1, 3)
    pa = proj_chunks(0, vRes, 1)
    fills[epA] = [pa[0], pa[1]] + pa[2:6]
    fills[epA + 1] = pa[6:10] + [pa[10], pa[11]]
    if nofill: fills = {T: [] for T in range(32)}
    fills[15].append(notold)
    assert wqB[1] <= qB < 7 and woA[0] > qB and woA[1] <= epA and woB[0] > epA + 1 and oldT + 5 < 15 and epA > 15

    def body(T):
        ph, t = T >> 3, T & 7
        br = ph >> 1; isK = (ph & 1) == 0
        issue = T < 31 and not (deep and T == 0) and not (pv and T == 8)
        Tn = 9 if (pv and T == 7) else T + 1
        ex = list(extras[T]); nx = len(ex)
        fl = list(fills[T]); nf = len(fl)
        w = WB if nx >= 3 else W
        if Wlast and T >= 31 - nlast: w = Wlast
        if issue:
            if t == 7:
                setbase(sS, (pV[br] if isK else pK[1]))
                A(f"s_mov_b32 s{sO0}, s{sBase}")
                A(f"s_add_u32 s{sO1}, s{sBase}, 0x40000")
                if Tn == 9: nexttask()
            else:
                nexttask()
        if WF and (nf > 1 or (isK and t == 7)): w = max(w, WF)
        if W0 and T <= 1: w = W0
        wk = WX if (WX and nx >= 3) else W
        if Wlast and T >= 31 - nlast: wk = Wlast
        if WF and (nf > 1 or (isK and t == 7)): wk = max(wk, WF)
        def iss(n):
            if issue:
                if kvw: thrkv(wk)
                else: thr(w)
                kvload(Tn, n)
            for _ in range((n + 1) * nx // 16 - n * nx // 16):
                if not kvw: thr(w)
                ex.pop(0)()
            for _ in range((n + 1) * nf // 16 - n * nf // 16):
                fl.pop(0)()
        if isK:
            vQ = vQA if br == 0 else vQB
            def dots(tr, base):
                need(("kv", T, base + 3))
                for k in range(4):
                    for j in range(4):
                        c = "0" if k == 0 else f"v{tr+j}"
                        A(f"v_dot2_f32_bf16 v{tr+j}, v{slot(T, base+j)+k}, v{vQ+k}, {c}")
            def red():
                for (d, s, ctl, bm) in ((0, 0, "row_ror:8", 3), (1, 1, "row_ror:8", 3), (0, 2, "row_ror:8", 12), (1, 3, "row_ror:8", 12),
                                        (0, 0, "row_half_mirror", 5), (0, 1, "row_half_mirror", 10),
                                        (0, 0, "quad_perm:[1,0,3,2]", 15), (0, 0, "quad_perm:[2,3,0,1]", 15)):
                    for tr in (vTA, vTB):
                        A(f"v_add_f32_dpp v{tr+d}, v{tr+s}, v{tr+s} {ctl} row_mask:0xf bank_mask:{hex(bm)}")
            S = vSs + t
            if t < 7:
                dots(vTA, 0); iss(0); iss(1)
                dots(vTB, 4); iss(2); iss(3)
                red(); iss(4); iss(5)
                A(f"v_cndmask_b32 v{S}, v{vTA}, v{vTB}, s[{sM1}:{sM1+1}]")
                iss(6); iss(7)
                dots(vTA, 8); iss(8); iss(9)
                dots(vTB, 12); iss(10); iss(11)
                red(); iss(12); iss(13)
                A(f"v_cndmask_b32 v{S}, v{S}, v{vTA}, s[{sM2}:{sM2+1}]")
                A(f"v_cndmask_b32 v{S}, v{S}, v{vTB}, s[{sM3}:{sM3+1}]")
                iss(14); iss(15)
            else:
                assert nf == 0
                dots(vTA, 0); iss(0); iss(1)
                dots(vTB, 4); iss(2); iss(3)
                red(); iss(4)
                A(f"v_cndmask_b32 v{S}, v{vTA}, v{vTB}, s[{sM1}:{sM1+1}]")
                dots(vTA, 8); iss(5); iss(6)
                dots(vTB, 12); iss(7); iss(8)
                red(); iss(9)
                A(f"v_cndmask_b32 v{S}, v{S}, v{vTA}, s[{sM2}:{sM2+1}]")
                A(f"v_cndmask_b32 v{S}, v{S}, v{vTB}, s[{sM3}:{sM3+1}]")
                for a, f in enumerate(softmax_chunks(br)):
                    f(); iss(10 + a)
        else:
            lane = lambda n: 4 * (n & 3) + (n >> 2)
            Pk = vSs + t
            if T == 31:
                op(("pub", 0), f"buffer_store_dwordx4 v[{vRes}:{vRes+3}], v{vPub}, s[{sWS}:{sWS+3}], 0 offen {pubf}")
            ands(vA0, Pk, lane(0))
            for n in range(16):
                cur = vA0 if n % 2 == 0 else vA1; nxt = vA1 if n % 2 == 0 else vA0
                if n < 15: ands(nxt, Pk, lane(n + 1))
                need(("kv", T, n))
                c = "0" if (t == 0 and n == 0) else f"v[{vAcc}:{vAcc+3}]"
                A(f"v_mfma_f32_16x16x32_bf16 v[{vAcc}:{vAcc+3}], v[{cur}:{cur+3}], {reg4(T, n)}, {c}")
                iss(n)
        assert not ex and not fl
    for T in range(32):
        stamp(f'T{T}')
        body(T)
    stamp("end")
    pb = proj_chunks(1, vSc + 16, 8)
    pb[0]()
    if earlypoll: poll("p0")
    A(f"s_mov_b32 s{sTmp2}, {4*64*ROW}")
    A(f"s_mov_b32 s{sSpin}, 0")
    for f in pb[1:-1]: f()
    stamp("mm")
    pb[-1]()
    op(("pub", 1), f"buffer_store_dwordx4 v[{vSc+16}:{vSc+19}], v{vPub}, s[{sWS}:{sWS+3}], s{sTmp2} offen {pubf}")
    stamp("pub")
    need(("old", 3))
    A("s_mov_b32 exec_lo, 0x3f3f3f3f")
    A("s_mov_b32 exec_hi, 0x3f3f3f3f")
    if sl0: A(f"s_sleep {sl0}")
    if not earlypoll: poll("p0")
    need(("p0", 1))
    A("L_chk:")
    for e in range(8):
        A(f"v_xor_b32 v{vSc+e}, v{vD+e}, v{vOldC+e}")
    for (a, b) in ((0, 1), (2, 3), (4, 5), (6, 7), (0, 2), (4, 6), (0, 4)):
        A(f"v_and_b32 v{vSc+a}, v{vSc+a}, v{vSc+b}")
    A(f"v_and_b32 v{vSc}, 1, v{vSc}")
    A(f"v_cmp_eq_u32 vcc, 0, v{vSc}")
    A("s_and_b64 exec, exec, vcc")
    A("s_cbranch_execz L_got")
    A(f"s_add_u32 s{sSpin}, s{sSpin}, 1")
    A(f"s_cmp_ge_u32 s{sSpin}, 0x40000")
    A("s_cbranch_scc1 L_got")
    A(f"s_bcnt1_i32_b64 s{sTmp}, exec")
    A(f"s_cmp_le_u32 s{sTmp}, {nB}")
    A("s_cbranch_scc1 L_pc")
    A(f"s_cmp_le_u32 s{sTmp}, {nA}")
    A("s_cbranch_scc1 L_pb")
    if slA: A(f"s_sleep {slA}")
    A("L_pb:")
    if slB: A(f"s_sleep {slB}")
    A("L_pc:")
    if slC: A(f"s_sleep {slC}")
    poll("p1")
    A("s_waitcnt vmcnt(0)")
    A("s_branch L_chk")
    A("L_got:")
    stamp("got")
    A("s_mov_b64 exec, -1")
    Mw, Lw, Tw, Fw = (vSc, vSc + 1), (vSc + 2, vSc + 3), (vSc + 4, vSc + 5), (vSc + 6, vSc + 7)
    for i in range(2):
        for dst, src in ((Mw[i], vD + 4 * i), (Lw[i], vD + 4 * i + 1)):
            A(f"v_mov_b32_dpp v{dst}, v{src} row_newbcast:5 row_mask:0xf bank_mask:0x3")
    for i in range(2):
        for dst, src in ((Mw[i], vD + 4 * i), (Lw[i], vD + 4 * i + 1)):
            A(f"v_mov_b32_dpp v{dst}, v{src} row_newbcast:13 row_mask:0xf bank_mask:0xc")
    A(f"v_lshrrev_b32 v{vTmp}, 4, v0")
    A(f"v_mul_u32_u24 v{vTmp}, 144, v{vTmp}")
    for i in range(2): A(f"v_max_f32_dpp v{Tw[i]}, v{Mw[i]}, v{Mw[i]} row_ror:8 {DPPF}")
    A(f"v_and_b32 v{vTmp2}, 7, v0")
    for i in range(2): A(f"v_sub_f32 v{Tw[i]}, v{Mw[i]}, v{Tw[i]}")
    for i in range(2): A(f"v_mul_f32 v{Tw[i]}, {hex(f2u(LOG2E))}, v{Tw[i]}")
    for i in range(2): A(f"v_exp_f32 v{Tw[i]}, v{Tw[i]}")
    A(f"v_lshl_add_u32 v{vTmp}, v{vTmp2}, 4, v{vTmp}")
    for i in range(2): A(f"v_mul_f32 v{Tw[i]}, v{Tw[i]}, v{Lw[i]}")
    A(f"v_mul_u32_u24 v{vTmp2}, 144, v{vC}")
    A(f"s_lshl_b32 s{sTmp}, s3, 4")
    for i in range(2): A(f"v_add_f32_dpp v{Fw[i]}, v{Tw[i]}, v{Tw[i]} row_ror:8 {DPPF}")
    for i in range(2): A(f"v_rcp_f32 v{Fw[i]}, v{Fw[i]}")
    A(f"v_mov_b32 v{vT}, s{sTmp}")
    for i in range(2): A(f"v_mul_f32 v{Tw[i]}, v{Tw[i]}, v{Fw[i]}")
    A(f"v_cmp_gt_u32 vcc, 16, v{vLane}")
    for e in range(4): A(f"v_mul_f32 v{vD+e}, v{vD+e}, v{Tw[0]}")
    A(f"v_cndmask_b32 v{vT}, 64, v{vT}, vcc")
    for e in range(4): A(f"v_fmac_f32 v{vD+e}, v{vD+4+e}, v{Tw[1]}")
    A(f"v_add_u32 v{vTmp2}, v{vTmp2}, v{vT}")
    for e in range(4): A(f"v_add_f32_dpp v{vD+e}, v{vD+e}, v{vD+e} row_ror:8 {DPPF}")
    A("s_mov_b32 exec_lo, 0x001f001f")
    A("s_mov_b32 exec_hi, 0x001f001f")
    A(f"ds_write_b128 v{vTmp}, v[{vD}:{vD+3}] offset:{QP}")
    A("s_mov_b64 exec, -1")
    A(f"v_lshrrev_b32 v{vT}, 1, v{vT}")
    A(f"v_add_u32 v{vOutO}, v{vOutO}, v{vT}")
    bar()
    A(f"ds_read_b128 v[{vD}:{vD+3}], v{vTmp2} offset:{QP}")
    A("s_cmp_eq_u32 s3, 0")
    A(f"s_cselect_b32 s{sTmp}, 0x10001, 1")
    A("s_waitcnt lgkmcnt(0)")
    for ctl in RED64[:4]:
        for e in range(4):
            A(f"v_add_f32_dpp v{vD+e}, v{vD+e}, v{vD+e} {ctl}")
    A(f"v_cvt_pk_bf16_f32 v{vD}, v{vD}, v{vD+1}")
    A(f"v_cvt_pk_bf16_f32 v{vD+1}, v{vD+2}, v{vD+3}")
    A(f"s_mov_b32 exec_lo, s{sTmp}")
    A("s_mov_b32 exec_hi, 0")
    A(f"buffer_store_dwordx2 v[{vD}:{vD+1}], v{vOutO}, s[{sOUT}:{sOUT+3}], 0 offen {outf}")
    if diag == 3:
        stamp()
        A("s_waitcnt lgkmcnt(0)")
        A(f"s_sub_u32 s{sTmp}, s{sST+2*ampk}, s{sST}")
        A(f"s_mul_i32 s{sTmp}, s{sTmp}, {amp}")
        A(f"s_add_u32 s{sTmp}, s{sTmp}, {fix}")
        A("L_hold:")
        A(f"s_memrealtime s[{sM1}:{sM1+1}]")
        A("s_waitcnt lgkmcnt(0)")
        A(f"s_sub_u32 s{sTmp2}, s{sM1}, s{sST}")
        A(f"s_cmp_lt_u32 s{sTmp2}, s{sTmp}")
        A("s_cbranch_scc1 L_hold")
    if diag == 1:
        stamp()
        A("s_mov_b64 exec, -1")
        A(f"s_getreg_b32 s{sTmp}, hwreg(HW_REG_XCC_ID)")
        A("s_waitcnt lgkmcnt(0)")
        A(f"v_mov_b32 v{vStamp}, 0")
        for k in range(nstamp[0]):
            A(f"v_writelane_b32 v{vStamp}, s{sST+2*k}, {k}")
        A(f"v_writelane_b32 v{vStamp}, s{sTmp}, 14")
        A(f"v_writelane_b32 v{vStamp}, s{sSpin}, 15")
        A(f"s_add_u32 s{sE}, s28, 0x200000")
        A(f"s_addc_u32 s{sE+1}, s29, 0")
        A(f"s_mov_b32 s{sE+2}, 0x10000")
        A(f"s_lshl_b32 s{sTmp}, s2, 2")
        A(f"s_add_u32 s{sTmp}, s{sTmp}, s3")
        A(f"s_lshl_b32 s{sTmp}, s{sTmp}, 6")
        A(f"v_lshlrev_b32 v{vTmp}, 2, v{vLane}")
        A("s_mov_b64 exec, 0xffff")
        A(f"buffer_store_dword v{vStamp}, v{vTmp}, s[{sE}:{sE+3}], s{sTmp} offen")
        assert nstamp[0] == NSTAMP, nstamp
    A("L_end:")
    A("s_endpgm")
    code = A.finish()
    txt = HEADER + "; Override launch geometry by editing the next line (default: block=256,\n; grid=ceil(out_elems/256), lds=0). Harness parses it; keep it on one line.\n"
    txt += f"; @launch grid=(256,1,1) block=(256,1,1) lds={lds}\n"
    txt += f'''.amdgcn_target "amdgcn-amd-amdhsa--gfx950"
.text
.globl {name}
.p2align 8
.type {name},@function
''' + code + f'''.section .rodata,"a"
.p2align 6
.amdhsa_kernel {name}
  .amdhsa_next_free_vgpr {nv}
  .amdhsa_next_free_sgpr {ns}
  .amdhsa_accum_offset 256
  .amdhsa_group_segment_fixed_size 0
  .amdhsa_kernarg_size 104
  .amdhsa_user_sgpr_count 2
  .amdhsa_user_sgpr_kernarg_segment_ptr 1
  .amdhsa_system_sgpr_workgroup_id_x 1
  .amdhsa_float_denorm_mode_32 3
.end_amdhsa_kernel
'''
    return txt
DIAG_OFF = 0x200000

if __name__ == "__main__":
    import json
    kw = json.loads(sys.argv[1]) if len(sys.argv) > 1 else {}
    sys.stdout.write(gen(**kw))
```

```python
import re

TRANS = ("v_exp_f32", "v_log_f32", "v_rcp_f32", "v_rsq_f32", "v_sqrt_f32", "v_sin_f32", "v_cos_f32")

def regs_of(tok):
    tok = tok.strip()
    neg = tok.lstrip("-")
    if neg.startswith("abs(") or neg.startswith("|"):
        neg = neg.replace("abs(", "").replace(")", "").replace("|", "")
    m = re.fullmatch(r"([vas])\[(\d+):(\d+)\]", neg)
    if m:
        return [(m.group(1), i) for i in range(int(m.group(2)), int(m.group(3)) + 1)]
    m = re.fullmatch(r"([vas])(\d+)", neg)
    if m:
        return [(m.group(1), int(m.group(2)))]
    if neg in ("vcc", "vcc_lo", "vcc_hi"):
        return [("s", "vcc")]
    if neg in ("exec", "exec_lo", "exec_hi"):
        return [("s", "exec")]
    if neg == "m0":
        return [("s", "m0")]
    return []

class Ins:
    def __init__(self, text):
        self.text = text
        t = text.split(";")[0].strip()
        self.label = t.endswith(":")
        self.directive = t.startswith(".") or t == ""
        if self.label or self.directive:
            self.op = ""; self.w = []; self.r = []; self.kind = "none"; return
        parts = t.split(None, 1)
        self.op = parts[0]
        rest = parts[1] if len(parts) > 1 else ""
        ops = [o.strip() for o in re.split(r",(?![^\[]*\])", rest)] if rest else []
        self.mods = ""
        if ops:
            last = ops[-1].split(None, 1)
            ops[-1] = last[0]
            self.mods = last[1] if len(last) > 1 else ""
        self.ops = ops
        op = self.op
        self.dpp = "_dpp" in op
        self.w = []; self.r = []
        R = lambda i: regs_of(ops[i]) if i < len(ops) else []
        allr = lambda a: [x for i in range(a, len(ops)) for x in R(i)]
        if op.startswith("v_mfma"):
            self.kind = "mfma"; self.w = R(0); self.a = R(1) + R(2); self.c = R(3); self.r = self.a + self.c
        elif op.startswith("v_smfmac"):
            self.kind = "mfma"; self.w = R(0); self.a = R(1) + R(2) + R(3); self.c = R(0); self.r = self.a + self.c
        elif op.startswith("v_dot2"):
            self.kind = "dot"; self.w = R(0); self.a = R(1) + R(2); self.c = R(3); self.r = self.a + self.c
        elif op.startswith("v_cmp"):
            self.kind = "valu"; self.w = R(0); self.r = allr(1)
        elif op.startswith("v_readlane") or op.startswith("v_readfirstlane"):
            self.kind = "valu"; self.w = R(0); self.r = allr(1)
        elif op.startswith("v_permlane"):
            self.kind = "valu"; self.w = R(0) + R(1); self.r = R(0) + R(1)
        elif op.startswith("v_"):
            self.kind = "valu"; self.w = R(0); self.r = allr(1)
            if self.dpp or op.startswith("v_fmac") or op.startswith("v_writelane"):
                self.r = self.r + R(0)
            if op.startswith("v_cndmask") and len(ops) == 3:
                self.r = self.r + [("s", "vcc")]
        elif op.startswith("buffer_load"):
            self.kind = "vmem"; self.w = R(0); self.r = allr(1)
        elif op.startswith("buffer_store") or op.startswith("buffer_atomic"):
            self.kind = "vmem"; self.r = allr(0); self.data = R(0)
            if "sc0" in self.mods and op.startswith("buffer_atomic"): self.w = R(0)
        elif op.startswith("ds_read"):
            self.kind = "ds"; self.w = R(0); self.r = allr(1)
        elif op.startswith("ds_write") or op.startswith("ds_add"):
            self.kind = "ds"; self.r = allr(0)
        elif op.startswith("s_"):
            self.kind = "salu"
            if op.startswith("s_cmp") or op.startswith("s_bitcmp") or op.startswith("s_atomic") or op.startswith("s_cbranch") or op in ("s_branch", "s_waitcnt", "s_nop", "s_barrier", "s_endpgm", "s_sleep", "s_setprio"):
                self.r = allr(0)
            else:
                self.w = R(0); self.r = allr(1)
        else:
            raise ValueError("unknown op " + text)
    def states(self):
        if self.kind == "none": return 0
        if self.op == "s_nop": return int(self.ops[0]) + 1
        return 1

def need(prod, cons):
    n = 0
    pw = set(prod.w); cr = set(cons.r); cw = set(cons.w)
    raw = pw & cr
    valu_p = prod.kind in ("valu", "dot")
    valu_c = cons.kind in ("valu", "dot")
    if valu_p:
        vraw = {x for x in raw if x[0] in "va"}
        sraw = {x for x in raw if x[0] == "s"}
        if vraw and valu_c and getattr(cons, "dpp", False): n = max(n, 2)
        if vraw and (cons.op.startswith("v_readlane") or cons.op.startswith("v_readfirstlane")): n = max(n, 1)
        if vraw and cons.op.startswith("v_permlane"): n = max(n, 2)
        if vraw and cons.kind == "mfma": n = max(n, 2)
        if sraw and valu_c: n = max(n, 2)
        if sraw and (cons.op.startswith("v_readlane") or cons.op.startswith("v_writelane")): n = max(n, 4)
        if sraw and cons.kind == "vmem": n = max(n, 5)
        if sraw and cons.kind == "salu": n = max(n, 1)
        if prod.op.replace("_e32", "") in TRANS and vraw and (valu_c or cons.kind == "mfma"): n = max(n, 1)
        if prod.op.replace("_e32", "") in TRANS and vraw and cons.kind in ("ds", "vmem"): n = max(n, 1)
    if prod.kind == "dot":
        if cons.kind == "dot" and cons.op == prod.op:
            if pw & set(cons.a): n = max(n, 3)
        elif (pw & (cr | cw)): n = max(n, 3)
    if prod.kind == "mfma":
        if cons.kind == "mfma":
            if pw & set(cons.a): n = max(n, 8)
            if pw & set(cons.c) and prod.w != cons.c: n = max(n, 6)
            if pw & cw and prod.w != cons.c: n = max(n, 8)
        elif pw & (cr | cw): n = max(n, 8)
        if valu_c and set(prod.c) & cw: n = max(n, 3)
    if prod.kind == "vmem" and ("x4" in prod.op or "x3" in prod.op) and prod.op.startswith("buffer_store"):
        if set(prod.data) & cw: n = max(n, 2)
    if prod.kind == "salu" and ("s", "m0") in pw and cons.kind != "salu" and ("s", "m0") in cr: n = max(n, 1)
    return n

class Asm:
    def __init__(self):
        self.ins = []
    def __call__(self, text):
        for line in text.split("\n"):
            self.ins.append(Ins(line))
    def finish(self):
        pend = set()
        for i in self.ins:
            if i.label:
                pend.discard(i.text.split(":")[0].strip())
            i.skippable = bool(pend)
            if i.op.startswith("s_cbranch") and i.ops[0].startswith("L_t"):
                pend.add(i.ops[0])
        out = []
        for i in self.ins:
            if i.kind != "none":
                dist = 0; req = 0
                for p in reversed(out):
                    if dist >= 10: break
                    if p.kind == "none": continue
                    k = need(p, i)
                    if k > dist: req = max(req, k - dist)
                    if not getattr(p, "skippable", False): dist += p.states()
                if req:
                    out.append(Ins(f"s_nop {req-1}"))
            out.append(i)
        self.out = out
        self.check_backedges()
        return "\n".join(("" if (x.label or x.directive) else "    ") + x.text for x in out) + "\n"
    def check_backedges(self):
        out = self.out
        labels = {x.text.split(":")[0].strip(): n for n, x in enumerate(out) if x.label}
        for n, x in enumerate(out):
            if x.op.startswith("s_cbranch") or x.op == "s_branch":
                tgt = labels[x.ops[0]]
                before = [p for p in out[max(0, n-14):n+1] if p.kind != "none"]
                after = [p for p in out[tgt:tgt+14] if p.kind != "none"]
                seq = before + after
                for ci in range(len(before), len(seq)):
                    dist = 0
                    for pi in range(ci-1, -1, -1):
                        if pi < len(before) and need(seq[pi], seq[ci]) > dist:
                            raise RuntimeError(f"hazard across branch: {seq[pi].text} -> {seq[ci].text} dist {dist}")
                        dist += seq[pi].states()
```

```python
import sys, struct
from asmlib import Asm

NAME = "concat_heads__mha_block_cached__gqa_block_cached__decode_kernel"
HEADER = open("concat_heads__mha_block_cached__gqa_block_cached__decode.s.ref").read().split("; Override launch")[0]
NSTAMP = 10
LOG2E = 1.4426950408889634
ROW = 3072

def f2u(x): return struct.unpack("<I", struct.pack("<f", x))[0]

def gen(W=5, WB=8, kvf="nt", wf="", pubf="sc1", diag=0, kper=2, swz=31, deep=1, W0=None, pv=0, oldpro=1, WF=None, noex=0, nofill=0, kvw=1, WP=None, hmap=0, rotw=1, cps=(), gp=0.22, gn=0.15, mid=15.5, xtab=None, tlb=0, pvn=0, preb=0, prio=0, npeer=32, noat=0, nold=0, wid=0, WL=None, lateat=0, WX=None, outf='', lds=16384, nv=512, ns=102, stl=('karg','issue','q','T8','T16','T24','end','bar'), earlypoll=0, sl0=0,
        wqB=(1, 6), qB=6, woA=(7, 16), epA=16, woB=(18, 31), oldT=2, Wlast=None, nlast=0,
        slA=24, slB=6, slC=0, nA=24, nB=12, amp=0, ampk=0, ampj=0, fix=15000, name=NAME):
    A = Asm()
    pX, pK, pV, pWQ, pWO = (4, 14), (6, 16), (8, 18), (10, 20), (12, 22)
    sS, sE, sWS, sOUT = 32, 36, 40, 44
    sB, sH, sHf, sO0, sO1, sBase, sTmp, sTmp2, sM, sSpin, sEo, sWQo, sWOo, sC0, sC1, sR = range(48, 64)
    sJ, sK8, sK5, sW = 72, 73, 74, 75
    sKk, sFl = 96, 98
    FLAGS = 8 * 64 * ROW
    sM1, sM2, sM3, sP5 = 64, 66, 68, 70
    sST = 76
    vLane, vWQo, vWOo, vXo, vPub, vCon, vOutO, vTmp, vTmp2, vC, vLdsA, vLdsO, vLdsS, vStamp, vLdsP = range(1, 16)
    vMk = 16; vQA = 20; vQB = 24; vA0 = 28; vA1 = 32; vAcc = 36; vAq = 40
    vTA, vTB = 44, 48
    vM, vL = 52, 53; vT, vF = 54, 55
    vX = 56
    vXo3 = (vXo, vQB, vQB + 1)
    vRing = 64
    vOff = 128
    vSs = 136
    vSc = 144
    vRing2 = 176
    vO = 176
    vOldP = (240, 244)
    vOldC = 248
    vD = 212
    vRes = 220
    vStat = (224, 226)
    vU = 228
    vE1, vE2 = 62, 63
    vFo, vFold, vFcur, vKk = 230, 232, 236, 231
    QP, OP, ST, OUTP, KK = 0, 2048, 4352, 4608, 4400
    DPPF = "row_mask:0xf bank_mask:0xf"
    RED64 = ("row_ror:8 " + DPPF, "row_ror:4 " + DPPF, "row_ror:2 " + DPPF, "row_ror:1 " + DPPF,
             "row_bcast:15 row_mask:0xa bank_mask:0xf", "row_bcast:31 row_mask:0xc bank_mask:0xf")
    nstamp = [0]
    def stamp(kind=None):
        if kind is not None and kind not in stl: return
        if diag:
            A(f"s_memrealtime s[{sST+2*nstamp[0]}:{sST+2*nstamp[0]+1}]")
            nstamp[0] += 1
    class St: pass
    st = St(); st.issued = 0; st.landed = 0; st.pos = {}
    def op(key, text):
        A(text); st.pos[key] = st.issued; st.issued += 1
        assert st.issued - st.landed <= 63
    def wait(n):
        A(f"s_waitcnt vmcnt({n})"); st.landed = max(st.landed, st.issued - n)
    def need(key):
        if st.landed <= st.pos[key]: wait(st.issued - st.pos[key] - 1)
    def thr(w):
        if st.issued - st.landed > w - 1: wait(w - 1)
    st.kv = []; st.err = 0.0
    def thrkv(wf_):
        st.err += wf_; w = int(st.err + 1e-9); st.err -= w
        if len(st.kv) >= w:
            p = st.kv[len(st.kv) - w]
            if st.landed <= p: wait(st.issued - p - 1)
    lbl = [0]
    def thrdyn():
        def cnt(w):
            p = st.kv[len(st.kv) - w]; return st.issued - p - 1, p
        n6, p6 = cnt(6)
        if st.landed <= p6: wait(n6)
        lbl[0] += 1
        A(f"s_cmp_gt_u32 s{sW}, 5")
        A(f"s_cbranch_scc1 L_t{lbl[0]}")
        A(f"s_waitcnt vmcnt({cnt(5)[0]})")
        A(f"s_cmp_gt_u32 s{sW}, 4")
        A(f"s_cbranch_scc1 L_t{lbl[0]}")
        A(f"s_waitcnt vmcnt({cnt(4)[0]})")
        A(f"L_t{lbl[0]}:")
    def setbase(s, p): A(f"s_mov_b64 s[{s}:{s+1}], s[{p}:{p+1}]")

    A(f"{name}:")
    stamp()
    A("s_cmp_ge_u32 s2, 256")
    A("s_cbranch_scc1 L_end")
    A("s_load_dwordx16 s[4:19], s[0:1], 0")
    A("s_load_dwordx8 s[20:27], s[0:1], 64")
    A("s_load_dwordx2 s[28:29], s[0:1], 96")
    A(f"v_lshrrev_b32 v{vTmp}, 6, v0")
    A(f"v_and_b32 v{vLane}, 63, v0")
    A(f"v_readfirstlane_b32 s3, v{vTmp}")
    if prio:
        for k in range(1, 4):
            A(f"s_cmp_lt_u32 s3, {k}")
            A(f"s_cbranch_scc1 L_tp")
            A(f"s_setprio {k}")
        A("L_tp:")
    A(f"s_lshr_b32 s{sB}, s2, 6")
    if hmap:
        A(f"s_and_b32 s{sH}, s2, 7")
        A(f"s_lshl_b32 s{sH}, s{sH}, 2")
        A(f"s_bfe_u32 s{sTmp}, s2, 0x20003")
        A(f"s_or_b32 s{sH}, s{sH}, s{sTmp}")
    else:
        A(f"s_and_b32 s{sH}, s2, 31")
    A(f"s_bfe_u32 s{sHf}, s2, 0x10005")
    A(f"v_and_b32 v{vC}, 15, v0")
    A(f"v_lshrrev_b32 v{vTmp}, 4, v{vLane}")
    A(f"v_lshlrev_b32 v{vTmp2}, 4, v{vC}")
    A(f"v_lshl_add_u32 v{vWQo}, v{vTmp}, 13, v{vTmp2}")
    A(f"v_mul_u32_u24 v{vWOo}, 1280, v{vTmp}")
    A(f"v_add_u32 v{vWOo}, v{vWOo}, v{vTmp2}")
    A(f"s_lshr_b32 s{sJ}, s2, 5" if rotw else f"s_mov_b32 s{sJ}, 0")
    A(f"s_mul_i32 s{sTmp}, s3, 320")
    A(f"s_mul_i32 s{sTmp2}, s{sB}, 1280")
    A(f"s_add_u32 s{sTmp}, s{sTmp}, s{sTmp2}")
    A(f"v_lshl_add_u32 v{vTmp2}, v{vTmp}, 1, s{sTmp}")
    A(f"s_mul_i32 s{sTmp}, s{sJ}, 5")
    for i in range(3):
        A(f"v_add_u32 v{vXo3[i]}, s{sTmp}, v{vC}")
        if i < 2: A(f"s_add_u32 s{sTmp}, s{sTmp}, 16")
    for i in range(3): A(f"v_subrev_u32 v{vTA+i}, 40, v{vXo3[i]}")
    for i in range(3): A(f"v_min_u32 v{vXo3[i]}, v{vXo3[i]}, v{vTA+i}")
    for i in range(3): A(f"v_lshl_add_u32 v{vXo3[i]}, v{vXo3[i]}, 3, v{vTmp2}")
    A(f"s_mul_i32 s{sWQo}, s3, {160*8192}")
    A(f"s_lshl_b32 s{sTmp}, s{sH}, 8")
    A(f"s_add_u32 s{sWQo}, s{sWQo}, s{sTmp}")
    A(f"s_mul_i32 s{sTmp}, s{sJ}, {5*32768}")
    A(f"s_add_u32 s{sWQo}, s{sWQo}, s{sTmp}")
    A(f"s_lshr_b32 s{sR}, s2, 3")
    A(f"s_add_u32 s{sR}, s{sR}, s2")
    A(f"s_and_b32 s{sR}, s{sR}, {swz}")
    A(f"v_lshlrev_b32 v{vTmp2}, 4, v{vLane}")
    for j in range(8):
        A(f"s_add_u32 s{sTmp}, s{sR}, {j}")
        A(f"s_and_b32 s{sTmp}, s{sTmp}, 7")
        A(f"v_lshl_add_u32 v{vOff+j}, s{sTmp}, 10, v{vTmp2}")
    A(f"s_lshr_b32 s{sTmp}, s{sR}, 3")
    A(f"s_xor_b32 s{sTmp}, s{sTmp}, s3")
    A(f"s_lshl_b32 s{sTmp}, s{sTmp}, 13")
    A(f"s_lshl_b32 s{sBase}, s{sB}, 6")
    A(f"s_lshl_b32 s{sTmp2}, s{sH}, 1")
    A(f"s_add_u32 s{sBase}, s{sBase}, s{sTmp2}")
    A(f"s_add_u32 s{sBase}, s{sBase}, s{sHf}")
    A(f"s_mul_i32 s{sC0}, s{sBase}, {ROW}")
    A(f"s_lshl_b32 s{sBase}, s{sBase}, 19")
    A(f"s_add_u32 s{sBase}, s{sBase}, s{sTmp}")
    A(f"s_mov_b32 s{sO0}, s{sBase}")
    A(f"s_add_u32 s{sO1}, s{sBase}, 0x40000")
    A(f"s_mov_b32 s{sS+2}, {128 << 20}")
    A(f"s_mov_b32 s{sS+3}, 0x20000")
    A(f"s_mov_b32 s{sE+2}, 5120")
    A(f"s_mov_b32 s{sE+3}, 0x20000")
    A(f"s_mov_b32 s{sEo}, s{sWQo}")
    A(f"s_mov_b32 s{sK8}, 0x8000")
    A(f"s_movk_i32 s{sK5}, 5120")
    A("s_waitcnt lgkmcnt(0)")
    stamp("karg")
    setbase(sE, pX[0])
    setbase(sS, pK[0])
    for i in range(3):
        op(("x", 0, i), f"buffer_load_ushort v{vX+i}, v{vXo3[i]}, s[{sE}:{sE+3}], 0 offen")
    setbase(sE, pWQ[0])
    A(f"s_mov_b32 s{sE+2}, 5242880")
    def slot(T, n): return (vRing2 if (deep and T == 0) else vRing) + 4 * n
    def reg4(T, n):
        if (pv and T == 8) or (T == 8 and n < pvn): return f"a[{160+4*n}:{163+4*n}]"
        return f"v[{slot(T, n)}:{slot(T, n)+3}]"
    def kvload(T, n):
        st.kv.append(st.issued)
        op(("kv", T, n), f"buffer_load_dwordx4 {reg4(T, n)}, v{vOff + n % 8}, s[{sS}:{sS+3}], s{sO0 if n < 8 else sO1} offen {kvf}")
    def wqload(br, t):
        op(("wq", br, t), f"buffer_load_dwordx4 a[{4*t}:{4*t+3}], v{vWQo}, s[{sE}:{sE+3}], s{sEo} offen {wf}")
        if t < 39:
            if rotw and t % 5 == 4:
                A(f"s_cmp_eq_u32 s{sJ}, {8 - (t + 1) // 5}")
                A(f"s_cselect_b32 s{sR}, {hex((0x8000 - 40 * 0x8000) & 0xffffffff)}, s{sK8}")
                A(f"s_add_u32 s{sEo}, s{sEo}, s{sR}")
            else:
                A(f"s_add_u32 s{sEo}, s{sEo}, 0x8000")
    def woload(br, i):
        if i == 0:
            setbase(sE, pWO[br]); A(f"s_mov_b32 s{sEo}, s{sWOo}")
        op(("wo", br, i), f"buffer_load_dwordx4 a[{4*i}:{4*i+3}], v{vWOo}, s[{sE}:{sE+3}], s{sEo} offen offset:{(i%5)*256} {wf}")
        if i % 5 == 4 and i < 39:
            if rotw:
                A(f"s_cmp_eq_u32 s{sJ}, {8 - (i + 1) // 5}")
                A(f"s_cselect_b32 s{sR}, {hex((5120 - 40960) & 0xffffffff)}, s{sK5}")
                A(f"s_add_u32 s{sEo}, s{sEo}, s{sR}")
            else:
                A(f"s_add_u32 s{sEo}, s{sEo}, 5120")
    def xB():
        setbase(sE, pX[1])
        A(f"s_mov_b32 s{sE+2}, 5120")
        for i in range(3):
            op(("x", 1, i), f"buffer_load_ushort v{vX+3+i}, v{vXo3[i]}, s[{sE}:{sE+3}], 0 offen")
        setbase(sE, pWQ[1])
        A(f"s_mov_b32 s{sE+2}, 5242880")
        A(f"s_mov_b32 s{sEo}, s{sWQo}")
    def nexttask():
        A(f"s_add_u32 s{sO0}, s{sO0}, 0x8000")
        A(f"s_add_u32 s{sO1}, s{sO1}, 0x8000")
    nkv = 0
    for t in range(40):
        if WP: thr(WP)
        wqload(0, t)
        while kper and nkv < 16 and (nkv + 1) * kper <= t + 1:
            if WP: thr(WP)
            kvload(0, nkv); nkv += 1
    for n in range(nkv, 16): kvload(0, n)
    late = []
    if deep:
        nexttask()
        def k1(n):
            if WL: thrkv(WL)
            kvload(1, n)
        n0 = 4 if not WL else 0
        for n in range(n0): kvload(1, n)
        late = [(lambda n=n: k1(n)) for n in range(n0, 16)]
        if pv:
            def pvload(n):
                if n == 0:
                    setbase(sS, pV[0]); A(f"s_mov_b32 s{sO0}, s{sBase}"); A(f"s_add_u32 s{sO1}, s{sBase}, 0x40000")
                kvload(8, n)
                if n == 15:
                    setbase(sS, pK[0]); nexttask()
            late += [(lambda n=n: pvload(n)) for n in range(16)]
        late += [xB]
    else:
        xB()
    stamp("issue")
    setbase(sOUT, 24); A(f"s_mov_b32 s{sOUT+2}, 10240"); A(f"s_mov_b32 s{sOUT+3}, 0x20000")
    setbase(sWS, 28); A(f"s_mov_b32 s{sWS+2}, {8*64*ROW + 256*128}"); A(f"s_mov_b32 s{sWS+3}, 0x20000")
    for m, v in ((sM1, 0x22222222), (sM2, 0x44444444), (sM3, 0x88888888)):
        A(f"s_mov_b32 s{m}, {hex(v)}"); A(f"s_mov_b32 s{m+1}, {hex(v)}")
    A(f"s_lshl_b32 s{sWOo}, s{sH}, 2")
    A(f"s_add_u32 s{sWOo}, s{sWOo}, s3")
    A(f"s_lshl_b32 s{sWOo}, s{sWOo}, 3")
    A(f"s_add_u32 s{sWOo}, s{sWOo}, s{sJ}")
    A(f"s_mul_i32 s{sWOo}, s{sWOo}, {4*1280}")
    if tlb:
        for p in (pV[0], pK[1], pV[1]):
            A(f"s_load_dword s101, s[{p}:{p+1}], s{sBase}")
        if tlb > 1:
            for p in pWO:
                A(f"s_load_dword s101, s[{p}:{p+1}], s{sWOo}")
            A(f"s_load_dword s101, s[{pWQ[1]}:{pWQ[1]+1}], s{sWQo}")
    A(f"v_mov_b32 v{vTmp2}, 0x7fffffff")
    A(f"v_cmp_gt_u32 vcc, 192, v0")
    A(f"v_lshlrev_b32 v{vPub}, 4, v0")
    A(f"v_add_u32 v{vPub}, s{sC0}, v{vPub}")
    A(f"v_cndmask_b32 v{vPub}, v{vTmp2}, v{vPub}, vcc")
    A(f"v_mul_u32_u24 v{vTmp}, 171, v0")
    A(f"v_lshrrev_b32 v{vTmp}, 10, v{vTmp}")
    A(f"v_sub_u32 v{vLdsP}, v0, v{vTmp}")
    A(f"v_mul_u32_u24 v{vTmp}, 6, v{vTmp}")
    A(f"v_sub_u32 v{vTmp}, v0, v{vTmp}")
    A(f"v_cmp_eq_u32 s[{sP5}:{sP5+1}], 5, v{vTmp}")
    A(f"v_lshlrev_b32 v{vLdsP}, 4, v{vLdsP}")
    A(f"s_lshl_b32 s{sTmp}, s{sHf}, 2")
    A(f"s_add_u32 s{sTmp}, s{sTmp}, s{sB}")
    A(f"s_lshl_b32 s{sTmp}, s{sTmp}, 2")
    A(f"s_add_u32 s{sTmp}, s{sTmp}, s3")
    A(f"s_mul_i32 s{sC0}, s{sTmp}, {16*ROW}")
    A(f"s_mul_i32 s{sTmp}, s{sH}, 96")
    A(f"s_add_u32 s{sC0}, s{sC0}, s{sTmp}")
    A(f"s_add_u32 s{sC1}, s{sC0}, {8*ROW}")
    A(f"v_lshrrev_b32 v{vCon}, 3, v{vLane}")
    A(f"v_mul_u32_u24 v{vCon}, {ROW}, v{vCon}")
    A(f"v_and_b32 v{vTmp}, 7, v{vLane}")
    A(f"v_lshl_add_u32 v{vCon}, v{vTmp}, 4, v{vCon}")
    A(f"v_cmp_gt_u32 vcc, 6, v{vTmp}")
    A(f"v_cndmask_b32 v{vCon}, v{vTmp2}, v{vCon}, vcc")
    A(f"s_mul_i32 s{sTmp}, s{sB}, 2560")
    A(f"s_mul_i32 s{sTmp2}, s{sHf}, 1280")
    A(f"s_add_u32 s{sTmp}, s{sTmp}, s{sTmp2}")
    A(f"s_mul_i32 s{sTmp2}, s{sH}, 40")
    A(f"s_add_u32 s{sTmp}, s{sTmp}, s{sTmp2}")
    A(f"v_mov_b32 v{vOutO}, s{sTmp}")
    A(f"v_and_b32 v{vTmp}, 1, v{vC}")
    A(f"v_lshlrev_b32 v{vTmp}, 4, v{vTmp}")
    A(f"v_mov_b32 v{vTmp2}, 0xffff")
    A(f"v_lshlrev_b32 v{vTmp2}, v{vTmp}, v{vTmp2}")
    A(f"v_lshrrev_b32 v{vTmp}, 1, v{vC}")
    for k in range(4):
        A(f"v_cmp_eq_u32 vcc, {k}, v{vTmp}")
        A(f"v_cndmask_b32 v{vMk+k}, 0, v{vTmp2}, vcc")
    A(f"v_lshrrev_b32 v{vTmp}, 4, v{vLane}")
    A(f"v_lshlrev_b32 v{vLdsA}, 5, v{vC}")
    A(f"v_lshl_add_u32 v{vLdsA}, v{vTmp}, 4, v{vLdsA}")
    A(f"v_and_b32 v{vTmp2}, 3, v{vC}")
    A(f"v_lshlrev_b32 v{vLdsS}, 3, v{vTmp2}")
    A(f"v_mul_u32_u24 v{vTmp2}, 576, v{vTmp2}")
    A(f"v_lshl_add_u32 v{vTmp2}, v{vTmp}, 2, v{vTmp2}")
    A(f"s_lshl_b32 s{sTmp}, s3, 7")
    A(f"v_add_u32 v{vTmp2}, s{sTmp}, v{vTmp2}")
    A(f"v_lshrrev_b32 v{vTmp}, 2, v{vC}")
    A(f"v_add_u32 v{vTmp}, s{sJ}, v{vTmp}")
    A(f"v_and_b32 v{vTmp}, 7, v{vTmp}")
    A(f"v_lshl_add_u32 v{vLdsO}, v{vTmp}, 4, v{vTmp2}")
    A(f"v_xor_b32 v{vTmp}, 4, v{vTmp}")
    A(f"v_lshl_add_u32 v{vE2}, v{vTmp}, 4, v{vTmp2}")

    dyn0 = (min(cps) + 1) if cps else (1 if xtab else 99)
    if xtab:
        A(f"s_getreg_b32 s{sTmp}, hwreg(HW_REG_XCC_ID, 0, 3)")
        A(f"s_lshl_b32 s{sTmp}, s{sTmp}, 2")
        A(f"s_lshr_b32 s{sKk}, {hex(sum(((k + 8) & 15) << (4 * i) for i, k in enumerate(xtab)))}, s{sTmp}")
        A(f"s_and_b32 s{sKk}, s{sKk}, 15")
        A(f"s_sub_i32 s{sKk}, s{sKk}, 8")
    else:
        A(f"s_mov_b32 s{sKk}, 0")
    if cps:
        A(f"s_lshl_b32 s{sTmp}, s2, 7")
        A(f"s_add_u32 s{sTmp}, s{sTmp}, {FLAGS}")
        A(f"s_add_u32 s{sFl}, s28, s{sTmp}")
        A(f"s_addc_u32 s{sFl+1}, s29, 0")
        A("s_mov_b32 s100, 1")
    def flagsetup():
        A(f"v_mul_u32_u24 v{vFo}, 9, v{vLane}")
        A(f"v_add_u32 v{vFo}, s2, v{vFo}")
        A(f"v_and_b32 v{vFo}, 255, v{vFo}")
        A(f"v_lshlrev_b32 v{vFo}, 7, v{vFo}")
        A(f"v_mov_b32 v{vTmp2}, 0x7fffffff")
        A(f"v_cmp_gt_u32 vcc, {npeer if not nold else 0}, v0")
        A(f"v_mov_b32 v{vKk}, 0")
        A(f"v_cndmask_b32 v{vFo}, v{vTmp2}, v{vFo}, vcc")
        A(f"v_mov_b32 v{vTmp}, {KK}")
        A(f"ds_write_b32 v{vTmp}, v{vKk}")
        A(f"s_mov_b32 s{sTmp}, {FLAGS}")
        op(("fold",), f"buffer_load_dwordx4 v[{vFold}:{vFold+3}], v{vFo}, s[{sWS}:{sWS+3}], s{sTmp} offen sc1")
    def ands(dst, src, lane):
        for k in range(4):
            A(f"v_and_b32_dpp v{dst+k}, v{src}, v{vMk+k} row_newbcast:{lane} {DPPF}")
    def bar():
        A("s_waitcnt lgkmcnt(0)"); A("s_barrier")
    def ldsw(scale, off, reg):
        A(f"s_mul_i32 s{sTmp}, s3, {scale}")
        A(f"v_add_u32 v{vE1}, s{sTmp}, v{vLdsA}")
        A("s_mov_b32 exec_hi, 0")
        for o, r in zip(off, reg):
            A(f"ds_write_b128 v{vE1}, v[{r}:{r+3}] offset:{o}")
        A("s_mov_b32 exec_hi, -1")
    def q_chunks(br, per):
        xs = vX + 3 * br
        def head():
            need(("x", br, 2))
            for i in range(3):
                A(f"v_lshl_or_b32 v{xs+i}, v{xs+i}, 16, v{xs+i}")
            ands(vA0, xs, 0)
        def mm(t0, t1):
            def f():
                for t in range(t0, t1):
                    cur = vA0 if t % 2 == 0 else vA1; nxt = vA1 if t % 2 == 0 else vA0
                    if t < 39: ands(nxt, xs + (t + 1) // 16, (t + 1) % 16)
                    need(("wq", br, t))
                    c = "0" if t == 0 else f"v[{vAq}:{vAq+3}]"
                    A(f"v_mfma_f32_16x16x32_bf16 v[{vAq}:{vAq+3}], v[{cur}:{cur+3}], a[{4*t}:{4*t+3}], {c}")
                    if br == 0 and late and t >= lateat and (t >= 2 or len(late) > 1): late.pop(0)()
            return f
        return [head] + [mm(t, min(40, t + per)) for t in range(0, 40, per)] + [lambda: ldsw(512, [QP if br == 0 else OUTP], [vAq])]
    def q_finish(dst):
        QP = 0 if dst == vQA else OUTP
        A(f"v_lshlrev_b32 v{vE1}, 5, v{vC}")
        for w in range(4):
            for hf in range(2):
                r = vSc + 8 * w + 4 * hf
                A(f"ds_read_b128 v[{r}:{r+3}], v{vE1} offset:{QP + 512*w + 16*hf}")
        for w in range(1, 4):
            A(f"s_waitcnt lgkmcnt({6-2*w})" if not diag else "s_waitcnt lgkmcnt(0)")
            for e in range(8):
                A(f"v_add_f32 v{vSc+e}, v{vSc+e}, v{vSc+8*w+e}")
        for k in range(4):
            A(f"v_cvt_pk_bf16_f32 v{dst+k}, v{vSc+2*k}, v{vSc+2*k+1}")
    olds = [lambda: op(("old", 0), f"buffer_load_dwordx4 v[{vOldP[0]}:{vOldP[0]+3}], v{vPub}, s[{sWS}:{sWS+3}], 0 offen sc1"),
            lambda: (A(f"s_mov_b32 s{sTmp}, {4*64*ROW}"),
                     op(("old", 1), f"buffer_load_dwordx4 v[{vOldP[1]}:{vOldP[1]+3}], v{vPub}, s[{sWS}:{sWS+3}], s{sTmp} offen sc1")),
            lambda: op(("old", 2), f"buffer_load_dwordx4 v[{vOldC}:{vOldC+3}], v{vCon}, s[{sWS}:{sWS+3}], s{sC0} offen sc1"),
            lambda: op(("old", 3), f"buffer_load_dwordx4 v[{vOldC+4}:{vOldC+7}], v{vCon}, s[{sWS}:{sWS+3}], s{sC1} offen sc1")]
    if oldpro: late += olds
    for f in q_chunks(0, 40): f()
    while late: late.pop(0)()
    if pvn:
        setbase(sS, pV[0])
        A(f"s_add_u32 s{sTmp}, s{sBase}, 0x40000")
        for n in range(pvn):
            op(("kv", 8, n), f"buffer_load_dwordx4 {reg4(8, n)}, v{vOff + n % 8}, s[{sS}:{sS+3}], s{sBase if n < 8 else sTmp} offen {kvf}")
        setbase(sS, pK[0])
    stamp("qm")
    bar()
    if prio: A("s_setprio 0")
    q_finish(vQA)
    stamp("q")

    def softmax_chunks(br):
        S = [vSs + t for t in range(8)]
        def c_round(op_):
            return lambda: [A(op_.format(s=s)) for s in S]
        def c_max():
            A(f"v_max3_f32 v{vT}, v{S[0]}, v{S[1]}, v{S[2]}")
            A(f"v_max3_f32 v{vF}, v{S[3]}, v{S[4]}, v{S[5]}")
            A(f"v_max3_f32 v{vT}, v{vT}, v{S[6]}, v{S[7]}")
            A(f"v_max_f32 v{vT}, v{vT}, v{vF}")
            for ctl in RED64: A(f"v_max_f32_dpp v{vT}, v{vT}, v{vT} {ctl}")
            A(f"v_readlane_b32 s{sM}, v{vT}, 63")
        def c_exp():
            for s in S: A(f"v_subrev_f32 v{s}, s{sM}, v{s}")
            for s in S: A(f"v_mul_f32 v{s}, {hex(f2u(LOG2E))}, v{s}")
            for s in S: A(f"v_exp_f32 v{s}, v{s}")
        def c_sum():
            A(f"v_mov_b32 v{vM}, s{sM}")
            A(f"v_add_f32 v{vL}, v{S[0]}, v{S[1]}")
            A(f"v_add_f32 v{vT}, v{S[2]}, v{S[3]}")
            A(f"v_add_f32 v{vF}, v{S[4]}, v{S[5]}")
            A(f"v_add_f32 v{vE1}, v{S[6]}, v{S[7]}")
            A(f"v_add_f32 v{vL}, v{vL}, v{vT}")
            A(f"v_add_f32 v{vF}, v{vF}, v{vE1}")
            A(f"v_add_f32 v{vL}, v{vL}, v{vF}")
            for ctl in RED64: A(f"v_add_f32_dpp v{vL}, v{vL}, v{vL} {ctl}")
            A(f"s_lshl_b32 s{sTmp}, s3, 3")
            A(f"v_mov_b32 v{vE1}, s{sTmp}")
            A("s_mov_b32 exec_lo, 0")
            A("s_mov_b32 exec_hi, 0x80000000")
            A(f"ds_write_b64 v{vE1}, v[{vM}:{vM+1}] offset:{ST}")
            A("s_mov_b64 exec, -1")
        def c_norm():
            bar()
            A(f"ds_read_b64 v[{vTA}:{vTA+1}], v{vLdsS} offset:{ST}")
            A("s_waitcnt lgkmcnt(0)")
            Mx, Lx = vStat[br], vStat[br] + 1
            A(f"v_max_f32_dpp v{Mx}, v{vTA}, v{vTA} quad_perm:[1,0,3,2] {DPPF}")
            A(f"v_max_f32_dpp v{Mx}, v{Mx}, v{Mx} quad_perm:[2,3,0,1] {DPPF}")
            A(f"v_sub_f32 v{vTA}, v{vTA}, v{Mx}")
            A(f"v_sub_f32 v{vM}, v{vM}, v{Mx}")
            A(f"v_mul_f32 v{vTA}, {hex(f2u(LOG2E))}, v{vTA}")
            A(f"v_mul_f32 v{vM}, {hex(f2u(LOG2E))}, v{vM}")
            A(f"v_exp_f32 v{vTA}, v{vTA}")
            A(f"v_exp_f32 v{vM}, v{vM}")
            A(f"v_mul_f32 v{Lx}, v{vTA+1}, v{vTA}")
            A(f"v_add_f32_dpp v{Lx}, v{Lx}, v{Lx} quad_perm:[1,0,3,2] {DPPF}")
            A(f"v_add_f32_dpp v{Lx}, v{Lx}, v{Lx} quad_perm:[2,3,0,1] {DPPF}")
            A(f"v_rcp_f32 v{vF}, v{Lx}")
            A(f"v_mul_f32 v{vF}, v{vF}, v{vM}")
        def c_pack():
            for s in S: A(f"v_mul_f32 v{s}, v{s}, v{vF}")
            for s in S: A(f"v_cvt_pk_bf16_f32 v{s}, v{s}, v{s}")
        def c_r1():
            for o in ("v_cvt_pk_bf16_f32 v{s}, v{s}, v{s}", "v_and_b32 v{s}, 0xffff0000, v{s}", "v_mul_f32 v{s}, " + hex(f2u(128 ** -0.5)) + ", v{s}"):
                c_round(o)()
        def c_r2():
            for o in ("v_cvt_pk_bf16_f32 v{s}, v{s}, v{s}", "v_and_b32 v{s}, 0xffff0000, v{s}"):
                c_round(o)()
        ch = [c_r1, lambda: (c_r2(), c_max()), c_exp, c_sum, c_norm, c_pack]
        if br == 0: ch[-1] = lambda: (c_pack(), q_finish(vQB))
        return ch
    def proj_chunks(br, res, per):
        def c_w(): ldsw(576, [OP], [vAcc])
        def c_r():
            bar()
            A(f"ds_read_b32 v{vU}, v{vLdsO} offset:{OP}")
            A(f"ds_read_b32 v{vU+1}, v{vE2} offset:{OP}")
            if br == 1: stamp('bar')
            A("s_waitcnt lgkmcnt(0)")
            for q in ("quad_perm:[1,0,3,2]", "quad_perm:[2,3,0,1]"):
                for r in (vU, vU + 1):
                    A(f"v_add_f32_dpp v{r}, v{r}, v{r} {q} {DPPF}")
            A(f"v_cvt_pk_bf16_f32 v{vU}, v{vU}, v{vU}")
            A(f"v_cvt_pk_bf16_f32 v{vU+1}, v{vU+1}, v{vU+1}")
            need(("wo", br, 39))
            ands(vA0, vU, 0)
        def mm(q0, q1):
            def f():
                for tq in range(q0, q1):
                    cur = vA0 if tq % 2 == 0 else vA1; nxt = vA1 if tq % 2 == 0 else vA0
                    for cb in range(5):
                        i = tq * 5 + cb
                        c = "0" if tq == 0 else f"v[{vO+4*cb}:{vO+4*cb+3}]"
                        A(f"v_mfma_f32_16x16x32_bf16 v[{vO+4*cb}:{vO+4*cb+3}], v[{cur}:{cur+3}], a[{4*i}:{4*i+3}], {c}")
                        if cb == 0 and tq < 7: ands(nxt, vU + ((tq + 1) >> 2), 4 * ((tq + 1) & 3))
            return f
        def c_w2():
            ldsw(2560, [OUTP + 512 * cb for cb in range(5)], [vO + 4 * cb for cb in range(5)])
        def c_sum():
            bar()
            for w in range(4):
                A(f"ds_read_b128 v[{vSc+4*w}:{vSc+4*w+3}], v{vLdsP} offset:{OUTP+2560*w}")
            for w in range(1, 4):
                A(f"s_waitcnt lgkmcnt({3-w})" if not diag else "s_waitcnt lgkmcnt(0)")
                for e in range(4):
                    A(f"v_add_f32 v{vSc+e}, v{vSc+e}, v{vSc+4*w+e}")
            A(f"v_cndmask_b32 v{vSc}, v{vSc}, v{vStat[br]}, s[{sP5}:{sP5+1}]")
            A(f"v_cndmask_b32 v{vSc+1}, v{vSc+1}, v{vStat[br]+1}, s[{sP5}:{sP5+1}]")
            for e in range(4):
                A(f"v_bfi_b32 v{res+e}, 1, v{vOldP[br]+e}, v{vSc+e}")
        return [c_w, c_r] + [mm(q, q + per) for q in range(0, 8, per)] + [c_w2, c_sum]
    def poll(key):
        op((key, 0), f"buffer_load_dwordx4 v[{vD}:{vD+3}], v{vCon}, s[{sWS}:{sWS+3}], s{sC0} offen sc1")
        op((key, 1), f"buffer_load_dwordx4 v[{vD+4}:{vD+7}], v{vCon}, s[{sWS}:{sWS+3}], s{sC1} offen sc1")
    def notold():
        need(("old", 1))
        for br in range(2):
            for e in range(4): A(f"v_not_b32 v{vOldP[br]+e}, v{vOldP[br]+e}")

    extras = {T: [] for T in range(32)}
    fills = {T: [] for T in range(32)}
    def spread(rng, fn):
        Ts = list(range(rng[0], rng[1])); n = len(Ts)
        for a, T in enumerate(Ts):
            extras[T] += [(lambda i=i: fn(i)) for i in range(40 * a // n, 40 * (a + 1) // n)]
    if noex:
        for i in range(40): st.pos[("wq", 1, i)] = st.pos[("wo", 0, i)] = st.pos[("wo", 1, i)] = 0
        spread = lambda a, b: None
    spread(wqB, lambda i: wqload(1, i))
    spread(woA, lambda i: woload(0, i))
    spread(woB, lambda i: woload(1, i))
    if not oldpro:
        for a, f in enumerate(olds): extras[oldT + a].insert(0, f)
    fills[qB] = q_chunks(1, 3)
    pa = proj_chunks(0, vRes, 1)
    fills[epA] = [pa[0], pa[1]] + pa[2:6]
    fills[epA + 1] = pa[6:10] + [pa[10], pa[11]]
    if nofill: fills = {T: [] for T in range(32)}
    fills[15].append(notold)
    assert wqB[1] <= qB < 7 and woA[0] > qB and woA[1] <= epA and woB[0] > epA + 1 and oldT + 5 < 15 and epA > 15

    def body(T):
        ph, t = T >> 3, T & 7
        br = ph >> 1; isK = (ph & 1) == 0
        issue = T < 31 and not (deep and T == 0) and not (pv and T == 8)
        Tn = 9 if (pv and T == 7) else T + 1
        ex = list(extras[T]); nx = len(ex)
        fl = list(fills[T]); nf = len(fl); post = {}; nothr = set()
        w = WB if nx >= 3 else W
        if Wlast and T >= 31 - nlast: w = Wlast
        if issue:
            if t == 7:
                setbase(sS, (pV[br] if isK else pK[1]))
                A(f"s_mov_b32 s{sO0}, s{sBase}")
                A(f"s_add_u32 s{sO1}, s{sBase}, 0x40000")
                if Tn == 9: nexttask()
            else:
                nexttask()
        if WF and (nf > 1 or (isK and t == 7)): w = max(w, WF)
        if W0 and T <= 1: w = W0
        if cps and T == 1: flagsetup()
        if T in cps:
            ci = list(cps).index(T)
            lbl[0] += 1
            A("s_cmp_lg_u32 s3, 0")
            A(f"s_cbranch_scc1 L_t{lbl[0]}")
            A(f"s_atomic_xor s100, s[{sFl}:{sFl+1}], {hex(4*ci)}" if not noat else "s_nop 0")
            A(f"L_t{lbl[0]}:")
            A(f"s_mov_b32 s{sTmp2}, {FLAGS + 4*ci}")
            op(("fcur", ci), f"buffer_load_dword v{vFcur}, v{vFo}, s[{sWS}:{sWS+3}], s{sTmp2} offen sc1")
            def evalf(ci=ci):
                need(("fcur", ci))
                A(f"v_xor_b32 v{vFcur}, v{vFcur}, v{vFold+ci}")
                A(f"v_and_b32 v{vFcur}, 1, v{vFcur}")
                A(f"v_cmp_eq_u32 vcc, 1, v{vFcur}")
                A(f"s_and_b32 s{sTmp}, vcc_lo, -2")
                A(f"s_bcnt1_i32_b32 s{sTmp}, s{sTmp}")
                A(f"s_lshl_b32 s{sTmp}, s{sTmp}, 1")
                A(f"s_sub_i32 s{sTmp}, s{sTmp}, {int(2*mid)}")
                A(f"s_cmp_gt_i32 s{sTmp}, 0")
                A(f"s_cselect_b32 s{sTmp2}, {int(round(gp*64))}, {int(round(gn*64))}")
                A(f"s_mul_i32 s{sTmp}, s{sTmp}, s{sTmp2}")
                A(f"s_add_i32 s{sTmp}, s{sTmp}, 64")
                A(f"s_ashr_i32 s{sTmp}, s{sTmp}, 7")
                A(f"v_mov_b32 v{vKk}, s{sTmp}")
                A(f"v_mov_b32 v{vFcur}, {KK}")
                lbl[0] += 1
                A("s_cmp_lg_u32 s3, 0")
                A(f"s_cbranch_scc1 L_t{lbl[0]}")
                A(f"ds_write_b32 v{vFcur}, v{vKk}")
                A(f"L_t{lbl[0]}:")
            post[13] = evalf
        if T - 1 in cps:
            A(f"v_mov_b32 v{vFcur}, {KK}")
            A(f"ds_read_b32 v{vKk}, v{vFcur}")
            A("s_waitcnt lgkmcnt(0)")
            A(f"v_readfirstlane_b32 s{sKk}, v{vKk}")
        if T >= dyn0 and issue:
            A(f"s_cmp_gt_i32 s{sKk}, 0")
            A(f"s_cselect_b32 s{sW}, 1, 0")
            A(f"s_cmp_lt_i32 s{sKk}, 0")
            A(f"s_cselect_b32 s{sW}, -1, s{sW}")
            A(f"s_sub_i32 s{sKk}, s{sKk}, s{sW}")
            A(f"s_add_i32 s{sW}, s{sW}, 5")
        wk = WX if (WX and nx >= 3) else W
        if Wlast and T >= 31 - nlast: wk = Wlast
        if WF and (nf > 1 or (isK and t == 7)): wk = max(wk, WF)
        def iss(n):
            if issue and not (Tn == 8 and n < pvn):
                if n in nothr: pass
                elif T in cps and wid and 4 <= n < 4 + wid: pass
                elif T >= dyn0: thrdyn()
                elif kvw: thrkv(wk)
                else: thr(w)
                kvload(Tn, n)
            for _ in range((n + 1) * nx // 16 - n * nx // 16):
                if not kvw: thr(w)
                ex.pop(0)()
            for _ in range((n + 1) * nf // 16 - n * nf // 16):
                fl.pop(0)()
            if n in post: post[n]()
        if isK:
            vQ = vQA if br == 0 else vQB
            def dots(tr, base):
                need(("kv", T, base + 3))
                for k in range(4):
                    for j in range(4):
                        c = "0" if k == 0 else f"v{tr+j}"
                        A(f"v_dot2_f32_bf16 v{tr+j}, v{slot(T, base+j)+k}, v{vQ+k}, {c}")
            def red():
                for (d, s, ctl, bm) in ((0, 0, "row_ror:8", 3), (1, 1, "row_ror:8", 3), (0, 2, "row_ror:8", 12), (1, 3, "row_ror:8", 12),
                                        (0, 0, "row_half_mirror", 5), (0, 1, "row_half_mirror", 10),
                                        (0, 0, "quad_perm:[1,0,3,2]", 15), (0, 0, "quad_perm:[2,3,0,1]", 15)):
                    for tr in (vTA, vTB):
                        A(f"v_add_f32_dpp v{tr+d}, v{tr+s}, v{tr+s} {ctl} row_mask:0xf bank_mask:{hex(bm)}")
            S = vSs + t
            if t < 7:
                dots(vTA, 0); iss(0); iss(1)
                dots(vTB, 4); iss(2); iss(3)
                red(); iss(4); iss(5)
                A(f"v_cndmask_b32 v{S}, v{vTA}, v{vTB}, s[{sM1}:{sM1+1}]")
                iss(6); iss(7)
                dots(vTA, 8); iss(8); iss(9)
                dots(vTB, 12); iss(10); iss(11)
                red(); iss(12); iss(13)
                A(f"v_cndmask_b32 v{S}, v{S}, v{vTA}, s[{sM2}:{sM2+1}]")
                A(f"v_cndmask_b32 v{S}, v{S}, v{vTB}, s[{sM3}:{sM3+1}]")
                iss(14); iss(15)
            else:
                assert nf == 0
                dots(vTA, 0); iss(0); iss(1)
                dots(vTB, 4); iss(2); iss(3)
                red(); iss(4)
                A(f"v_cndmask_b32 v{S}, v{vTA}, v{vTB}, s[{sM1}:{sM1+1}]")
                dots(vTA, 8); iss(5); iss(6)
                dots(vTB, 12); iss(7); iss(8)
                red(); iss(9)
                A(f"v_cndmask_b32 v{S}, v{S}, v{vTA}, s[{sM2}:{sM2+1}]")
                A(f"v_cndmask_b32 v{S}, v{S}, v{vTB}, s[{sM3}:{sM3+1}]")
                sm = softmax_chunks(br)
                if preb:
                    for a in range(4): sm[a](); iss(10 + a)
                    nothr.update((14, 15)); iss(14); iss(15)
                    sm[4](); sm[5]()
                else:
                    for a, f in enumerate(sm):
                        f(); iss(10 + a)
        else:
            lane = lambda n: 4 * (n & 3) + (n >> 2)
            Pk = vSs + t
            if T == 31:
                op(("pub", 0), f"buffer_store_dwordx4 v[{vRes}:{vRes+3}], v{vPub}, s[{sWS}:{sWS+3}], 0 offen {pubf}")
            ands(vA0, Pk, lane(0))
            for n in range(16):
                cur = vA0 if n % 2 == 0 else vA1; nxt = vA1 if n % 2 == 0 else vA0
                if n < 15: ands(nxt, Pk, lane(n + 1))
                need(("kv", T, n))
                c = "0" if (t == 0 and n == 0) else f"v[{vAcc}:{vAcc+3}]"
                A(f"v_mfma_f32_16x16x32_bf16 v[{vAcc}:{vAcc+3}], v[{cur}:{cur+3}], {reg4(T, n)}, {c}")
                iss(n)
        assert not ex and not fl
    for T in range(32):
        stamp(f'T{T}')
        body(T)
    stamp("end")
    pb = proj_chunks(1, vSc + 16, 8)
    pb[0]()
    if earlypoll: poll("p0")
    A(f"s_mov_b32 s{sTmp2}, {4*64*ROW}")
    A(f"s_mov_b32 s{sSpin}, 0")
    for f in pb[1:-1]: f()
    stamp("mm")
    pb[-1]()
    op(("pub", 1), f"buffer_store_dwordx4 v[{vSc+16}:{vSc+19}], v{vPub}, s[{sWS}:{sWS+3}], s{sTmp2} offen {pubf}")
    stamp("pub")
    need(("old", 3))
    A("s_mov_b32 exec_lo, 0x3f3f3f3f")
    A("s_mov_b32 exec_hi, 0x3f3f3f3f")
    if sl0: A(f"s_sleep {sl0}")
    if not earlypoll: poll("p0")
    need(("p0", 1))
    A("L_chk:")
    for e in range(8):
        A(f"v_xor_b32 v{vSc+e}, v{vD+e}, v{vOldC+e}")
    for (a, b) in ((0, 1), (2, 3), (4, 5), (6, 7), (0, 2), (4, 6), (0, 4)):
        A(f"v_and_b32 v{vSc+a}, v{vSc+a}, v{vSc+b}")
    A(f"v_and_b32 v{vSc}, 1, v{vSc}")
    A(f"v_cmp_eq_u32 vcc, 0, v{vSc}")
    A("s_and_b64 exec, exec, vcc")
    A("s_cbranch_execz L_got")
    A(f"s_add_u32 s{sSpin}, s{sSpin}, 1")
    A(f"s_cmp_ge_u32 s{sSpin}, 0x40000")
    A("s_cbranch_scc1 L_got")
    A(f"s_bcnt1_i32_b64 s{sTmp}, exec")
    A(f"s_cmp_le_u32 s{sTmp}, {nB}")
    A("s_cbranch_scc1 L_pc")
    A(f"s_cmp_le_u32 s{sTmp}, {nA}")
    A("s_cbranch_scc1 L_pb")
    if slA: A(f"s_sleep {slA}")
    A("L_pb:")
    if slB: A(f"s_sleep {slB}")
    A("L_pc:")
    if slC: A(f"s_sleep {slC}")
    poll("p1")
    A("s_waitcnt vmcnt(0)")
    A("s_branch L_chk")
    A("L_got:")
    stamp("got")
    A("s_mov_b64 exec, -1")
    Mw, Lw, Tw, Fw = (vSc, vSc + 1), (vSc + 2, vSc + 3), (vSc + 4, vSc + 5), (vSc + 6, vSc + 7)
    for i in range(2):
        for dst, src in ((Mw[i], vD + 4 * i), (Lw[i], vD + 4 * i + 1)):
            A(f"v_mov_b32_dpp v{dst}, v{src} row_newbcast:5 row_mask:0xf bank_mask:0x3")
    for i in range(2):
        for dst, src in ((Mw[i], vD + 4 * i), (Lw[i], vD + 4 * i + 1)):
            A(f"v_mov_b32_dpp v{dst}, v{src} row_newbcast:13 row_mask:0xf bank_mask:0xc")
    A(f"v_lshrrev_b32 v{vTmp}, 4, v0")
    A(f"v_mul_u32_u24 v{vTmp}, 144, v{vTmp}")
    for i in range(2): A(f"v_max_f32_dpp v{Tw[i]}, v{Mw[i]}, v{Mw[i]} row_ror:8 {DPPF}")
    A(f"v_and_b32 v{vTmp2}, 7, v0")
    for i in range(2): A(f"v_sub_f32 v{Tw[i]}, v{Mw[i]}, v{Tw[i]}")
    for i in range(2): A(f"v_mul_f32 v{Tw[i]}, {hex(f2u(LOG2E))}, v{Tw[i]}")
    for i in range(2): A(f"v_exp_f32 v{Tw[i]}, v{Tw[i]}")
    A(f"v_lshl_add_u32 v{vTmp}, v{vTmp2}, 4, v{vTmp}")
    for i in range(2): A(f"v_mul_f32 v{Tw[i]}, v{Tw[i]}, v{Lw[i]}")
    A(f"v_mul_u32_u24 v{vTmp2}, 144, v{vC}")
    A(f"s_lshl_b32 s{sTmp}, s3, 4")
    for i in range(2): A(f"v_add_f32_dpp v{Fw[i]}, v{Tw[i]}, v{Tw[i]} row_ror:8 {DPPF}")
    for i in range(2): A(f"v_rcp_f32 v{Fw[i]}, v{Fw[i]}")
    A(f"v_mov_b32 v{vT}, s{sTmp}")
    for i in range(2): A(f"v_mul_f32 v{Tw[i]}, v{Tw[i]}, v{Fw[i]}")
    A(f"v_cmp_gt_u32 vcc, 16, v{vLane}")
    for e in range(4): A(f"v_mul_f32 v{vD+e}, v{vD+e}, v{Tw[0]}")
    A(f"v_cndmask_b32 v{vT}, 64, v{vT}, vcc")
    for e in range(4): A(f"v_fmac_f32 v{vD+e}, v{vD+4+e}, v{Tw[1]}")
    A(f"v_add_u32 v{vTmp2}, v{vTmp2}, v{vT}")
    for e in range(4): A(f"v_add_f32_dpp v{vD+e}, v{vD+e}, v{vD+e} row_ror:8 {DPPF}")
    A("s_mov_b32 exec_lo, 0x001f001f")
    A("s_mov_b32 exec_hi, 0x001f001f")
    A(f"ds_write_b128 v{vTmp}, v[{vD}:{vD+3}] offset:{QP}")
    A("s_mov_b64 exec, -1")
    A(f"v_lshrrev_b32 v{vT}, 1, v{vT}")
    A(f"v_add_u32 v{vOutO}, v{vOutO}, v{vT}")
    bar()
    A(f"ds_read_b128 v[{vD}:{vD+3}], v{vTmp2} offset:{QP}")
    A("s_cmp_eq_u32 s3, 0")
    A(f"s_cselect_b32 s{sTmp}, 0x10001, 1")
    A("s_waitcnt lgkmcnt(0)")
    for ctl in RED64[:4]:
        for e in range(4):
            A(f"v_add_f32_dpp v{vD+e}, v{vD+e}, v{vD+e} {ctl}")
    A(f"v_cvt_pk_bf16_f32 v{vD}, v{vD}, v{vD+1}")
    A(f"v_cvt_pk_bf16_f32 v{vD+1}, v{vD+2}, v{vD+3}")
    A(f"s_mov_b32 exec_lo, s{sTmp}")
    A("s_mov_b32 exec_hi, 0")
    A(f"buffer_store_dwordx2 v[{vD}:{vD+1}], v{vOutO}, s[{sOUT}:{sOUT+3}], 0 offen {outf}")
    if diag == 3:
        stamp()
        A("s_waitcnt lgkmcnt(0)")
        A(f"s_sub_u32 s{sTmp}, s{sST+2*ampk}, s{sST+2*ampj}")
        A(f"s_mul_i32 s{sTmp}, s{sTmp}, {amp}")
        A(f"s_add_u32 s{sTmp}, s{sTmp}, {fix}")
        A("L_hold:")
        A(f"s_memrealtime s[{sM1}:{sM1+1}]")
        A("s_waitcnt lgkmcnt(0)")
        A(f"s_sub_u32 s{sTmp2}, s{sM1}, s{sST}")
        A(f"s_cmp_lt_u32 s{sTmp2}, s{sTmp}")
        A("s_cbranch_scc1 L_hold")
    if diag == 1:
        stamp()
        A("s_mov_b64 exec, -1")
        A(f"s_getreg_b32 s{sTmp}, hwreg(HW_REG_XCC_ID)")
        A("s_waitcnt lgkmcnt(0)")
        A(f"v_mov_b32 v{vStamp}, 0")
        for k in range(nstamp[0]):
            A(f"v_writelane_b32 v{vStamp}, s{sST+2*k}, {k}")
        A(f"v_writelane_b32 v{vStamp}, s{sTmp}, 14")
        A(f"v_writelane_b32 v{vStamp}, s{sSpin}, 15")
        A(f"s_add_u32 s{sE}, s28, 0x200000")
        A(f"s_addc_u32 s{sE+1}, s29, 0")
        A(f"s_mov_b32 s{sE+2}, 0x10000")
        A(f"s_lshl_b32 s{sTmp}, s2, 2")
        A(f"s_add_u32 s{sTmp}, s{sTmp}, s3")
        A(f"s_lshl_b32 s{sTmp}, s{sTmp}, 6")
        A(f"v_lshlrev_b32 v{vTmp}, 2, v{vLane}")
        A("s_mov_b64 exec, 0xffff")
        A(f"buffer_store_dword v{vStamp}, v{vTmp}, s[{sE}:{sE+3}], s{sTmp} offen")
        assert nstamp[0] == NSTAMP, nstamp
    A("L_end:")
    A("s_endpgm")
    code = A.finish()
    txt = HEADER + "; Override launch geometry by editing the next line (default: block=256,\n; grid=ceil(out_elems/256), lds=0). Harness parses it; keep it on one line.\n"
    txt += f"; @launch grid=(256,1,1) block=(256,1,1) lds={lds}\n"
    txt += f'''.amdgcn_target "amdgcn-amd-amdhsa--gfx950"
.text
.globl {name}
.p2align 8
.type {name},@function
''' + code + f'''.section .rodata,"a"
.p2align 6
.amdhsa_kernel {name}
  .amdhsa_next_free_vgpr {nv}
  .amdhsa_next_free_sgpr {ns}
  .amdhsa_accum_offset 256
  .amdhsa_group_segment_fixed_size 0
  .amdhsa_kernarg_size 104
  .amdhsa_user_sgpr_count 2
  .amdhsa_user_sgpr_kernarg_segment_ptr 1
  .amdhsa_system_sgpr_workgroup_id_x 1
  .amdhsa_float_denorm_mode_32 3
.end_amdhsa_kernel
'''
    return txt
DIAG_OFF = 0x200000

if __name__ == "__main__":
    import json
    kw = json.loads(sys.argv[1]) if len(sys.argv) > 1 else {}
    sys.stdout.write(gen(**kw))
```

```python
import sys, struct
from asmlib import Asm

NAME = "concat_heads__mha_block_cached__gqa_block_cached__decode_kernel"
HEADER = open("concat_heads__mha_block_cached__gqa_block_cached__decode.s.ref").read().split("; Override launch")[0]
NSTAMP = 10
DIAG_OFF = 0x200000
LOG2E = 1.4426950408889634
ROW = 2560
FLAGS = 8 * 64 * ROW

DOC = """;
; Structure
"""

def f2u(x): return struct.unpack("<I", struct.pack("<f", x))[0]

def gen(W=5, kvf="nt", wf="", pubf="sc1", diag=0, kper=2, swz=31,
        wqB=(1, 6), qB=6, woA=(7, 16), epA=16, woB=(18, 28), Wlast=9, nlast=2, pubT=31, stT=(10, 26),
        cps=(8, 20), npeer=8, mid=4, gp=1.6, gn=0.6,
        slA=8, slB=3, nA=32, nB=16, stl=('karg', 'issue', 'q', 'T8', 'T16', 'T24', 'end', 'bar'),
        amp=0, ampk=0, ampj=0, fix=15000, name=NAME):
    A = Asm()
    pX, pK, pV, pWQ, pWO = (4, 14), (6, 16), (8, 18), (10, 20), (12, 22)
    sS, sE, sWS, sOUT = 32, 36, 40, 44
    sB, sH, sHf, sO0, sO1, sBase, sTmp, sTmp2, sM, sSpin, sEo, sWQo, sWOo, sC0, sC1, sR = range(48, 64)
    sM1, sM2, sM3 = 64, 66, 68
    sTg = 70
    sJ, sK8, sK5, sW, sKk = 71, 72, 73, 74, 75
    sST = 76
    sFl, sOne, sPo = 96, 98, 99
    sSt = (100, 30)
    vLane, vWQo, vWOo, vXo, vPub, vCon, vOutO, vTmp, vTmp2, vC, vLdsA, vLdsO, vLdsS, vStamp, vZero = range(1, 16)
    vMk = 16; vQA = 20; vQB = 24; vA0 = 28; vA1 = 32; vAcc = 36; vAq = 40
    vTA, vTB = 44, 48
    vM, vL = 52, 53; vT, vF = 54, 55
    vX = 56
    vXo3 = (vXo, vQB, vQB + 1)
    vE1, vE2 = 62, 63
    vRing = 64
    vOff = 128
    vSs = 136
    vSc = 144
    vRing2 = 176
    vO = 176
    vPst = 196
    vFac = 198
    vOldS = 200
    vOwnS = 204
    vD = 212
    vRes = 220
    vStat = (224, 226)
    vU = 228
    vFo, vKk, vFold, vFcur = 230, 231, 232, 236
    vOldP = (240, 244)
    vOldC = 248
    QP, OP, ST, KK, OUTP = 0, 2048, 4352, 4400, 4608
    DPPF = "row_mask:0xf bank_mask:0xf"
    RED64 = ("row_ror:8 " + DPPF, "row_ror:4 " + DPPF, "row_ror:2 " + DPPF, "row_ror:1 " + DPPF,
             "row_bcast:15 row_mask:0xa bank_mask:0xf", "row_bcast:31 row_mask:0xc bank_mask:0xf")
    nstamp = [0]
    def stamp(kind=None):
        if kind is not None and kind not in stl: return
        if diag:
            A(f"s_memrealtime s[{sST+2*nstamp[0]}:{sST+2*nstamp[0]+1}]")
            nstamp[0] += 1
    class St: pass
    st = St(); st.issued = 0; st.landed = 0; st.pos = {}; st.kv = []
    lbl = [0]
    def newlbl():
        lbl[0] += 1; return f"L_t{lbl[0]}"
    def op(key, text):
        A(text); st.pos[key] = st.issued; st.issued += 1
        assert st.issued - st.landed <= 63
    def wait(n):
        A(f"s_waitcnt vmcnt({n})"); st.landed = max(st.landed, st.issued - n)
    def need(key):
        if st.landed <= st.pos[key]: wait(st.issued - st.pos[key] - 1)
    def thr(w):
        p = st.kv[len(st.kv) - w]
        if st.landed <= p: wait(st.issued - p - 1)
    def thrdyn():
        cnt = lambda w: st.issued - st.kv[len(st.kv) - w] - 1
        thr(W + 1)
        L = newlbl()
        A(f"s_cmp_gt_i32 s{sW}, 0")
        A(f"s_cbranch_scc1 {L}")
        A(f"s_waitcnt vmcnt({cnt(W)})")
        A(f"s_cmp_eq_u32 s{sW}, 0")
        A(f"s_cbranch_scc1 {L}")
        A(f"s_waitcnt vmcnt({cnt(W - 1)})")
        A(f"{L}:")
    def setbase(s, p): A(f"s_mov_b64 s[{s}:{s+1}], s[{p}:{p+1}]")
    def srd(s, p, n):
        setbase(s, p); A(f"s_mov_b32 s{s+2}, {n}"); A(f"s_mov_b32 s{s+3}, 0x20000")

    A(f"{name}:")
    stamp()
    A("s_cmp_ge_u32 s2, 256")
    A("s_cbranch_scc1 L_end")
    A("s_load_dwordx16 s[4:19], s[0:1], 0")
    A("s_load_dwordx8 s[20:27], s[0:1], 64")
    A("s_load_dwordx2 s[28:29], s[0:1], 96")
    A(f"v_lshrrev_b32 v{vTmp}, 6, v0")
    A(f"v_and_b32 v{vLane}, 63, v0")
    A(f"v_readfirstlane_b32 s3, v{vTmp}                    ; wave")
    A(f"s_lshr_b32 s{sB}, s2, 6")
    A(f"s_and_b32 s{sH}, s2, 31")
    A(f"s_bfe_u32 s{sHf}, s2, 0x10005")
    A(f"v_and_b32 v{vC}, 15, v0                            ; c = lane & 15")
    A(f"v_lshrrev_b32 v{vTmp}, 4, v{vLane}                 ; g = lane >> 4")
    A(f"v_lshlrev_b32 v{vTmp2}, 4, v{vC}")
    A(f"v_lshl_add_u32 v{vWQo}, v{vTmp}, 13, v{vTmp2}      ; g*8192 + c*16")
    A(f"s_lshr_b32 s{sJ}, s2, 5")
    A(f"s_mul_i32 s{sWQo}, s3, {160*8192}")
    A(f"s_lshl_b32 s{sTmp}, s{sH}, 8")
    A(f"s_add_u32 s{sWQo}, s{sWQo}, s{sTmp}")
    A(f"s_mul_i32 s{sTmp}, s{sJ}, {5*32768}")
    A(f"s_add_u32 s{sWQo}, s{sWQo}, s{sTmp}")
    A(f"s_mov_b32 s{sE+2}, 5242880")
    A(f"s_mov_b32 s{sE+3}, 0x20000")
    A(f"s_mov_b32 s{sEo}, s{sWQo}")
    A(f"s_lshr_b32 s{sM}, s2, 3")
    A(f"s_add_u32 s{sM}, s{sM}, s2")
    A(f"s_and_b32 s{sM}, s{sM}, {swz}")
    A(f"v_lshlrev_b32 v{vE1}, 4, v{vLane}")
    def voff(j):
        A(f"s_add_u32 s{sTmp}, s{sM}, {j}")
        A(f"s_and_b32 s{sTmp}, s{sTmp}, 7")
        A(f"v_lshl_add_u32 v{vOff+j}, s{sTmp}, 10, v{vE1}")
    voff(0)
    A(f"s_lshr_b32 s{sTmp}, s{sM}, 3")
    A(f"s_xor_b32 s{sTmp}, s{sTmp}, s3")
    A(f"s_lshl_b32 s{sTmp}, s{sTmp}, 13")
    A(f"s_lshl_b32 s{sBase}, s{sB}, 6")
    A(f"s_lshl_b32 s{sTmp2}, s{sH}, 1")
    A(f"s_add_u32 s{sBase}, s{sBase}, s{sTmp2}")
    A(f"s_add_u32 s{sBase}, s{sBase}, s{sHf}")
    A(f"s_mul_i32 s{sC0}, s{sBase}, {ROW}")
    A(f"s_lshl_b32 s{sBase}, s{sBase}, 19")
    A(f"s_add_u32 s{sBase}, s{sBase}, s{sTmp}")
    A(f"s_mov_b32 s{sO0}, s{sBase}")
    A(f"s_mov_b32 s{sS+2}, {128 << 20}")
    A(f"s_mov_b32 s{sS+3}, 0x20000")
    A("s_waitcnt lgkmcnt(0)")
    stamp("karg")
    setbase(sE, pWQ[0])
    setbase(sS, pK[0])
    def slot(T, n): return (vRing2 if T == 0 else vRing) + 4 * n
    def kvload(T, n):
        st.kv.append(st.issued); r = slot(T, n)
        op(("kv", T, n), f"buffer_load_dwordx4 v[{r}:{r+3}], v{vOff + n % 8}, s[{sS}:{sS+3}], s{sO0 if n < 8 else sO1} offen {kvf}")
    def step(i, wrap, k):
        A(f"s_cmp_eq_u32 s{sJ}, {8 - (i + 1) // 5}")
        A(f"s_cselect_b32 s{sR}, {hex(wrap & 0xffffffff)}, s{k}")
        A(f"s_add_u32 s{sEo}, s{sEo}, s{sR}")
    def wqload(br, t):
        op(("wq", br, t), f"buffer_load_dwordx4 a[{4*t}:{4*t+3}], v{vWQo}, s[{sE}:{sE+3}], s{sEo} offen {wf}")
        if t < 39:
            if t % 5 == 4: step(t, -39 * 0x8000, sK8)
            else: A(f"s_add_u32 s{sEo}, s{sEo}, 0x8000")
    def woload(br, i):
        if i == 0:
            setbase(sE, pWO[br]); A(f"s_mov_b32 s{sEo}, s{sWOo}")
        op(("wo", br, i), f"buffer_load_dwordx4 a[{4*i}:{4*i+3}], v{vWOo}, s[{sE}:{sE+3}], s{sEo} offen offset:{(i%5)*256} {wf}")
        if i % 5 == 4 and i < 39: step(i, -7 * 5120, sK5)
    def xload(br):
        srd(sOUT, pX[br], 5120)
        for i in range(3):
            op(("x", br, i), f"buffer_load_ushort v{vX+3*br+i}, v{vXo3[i]}, s[{sOUT}:{sOUT+3}], 0 offen")
    def xA():
        A(f"v_mul_u32_u24 v{vWOo}, 1280, v{vTmp}")
        A(f"v_add_u32 v{vWOo}, v{vWOo}, v{vTmp2}               ; g*1280 + c*16")
        A(f"s_mul_i32 s{sTmp}, s3, 320")
        A(f"s_mul_i32 s{sTmp2}, s{sB}, 1280")
        A(f"s_add_u32 s{sTmp}, s{sTmp}, s{sTmp2}")
        A(f"v_lshl_add_u32 v{vTmp2}, v{vTmp}, 1, s{sTmp}")
        A(f"s_mul_i32 s{sTmp}, s{sJ}, 5")
        for i in range(3):
            A(f"v_add_u32 v{vXo3[i]}, s{sTmp}, v{vC}")
            if i < 2: A(f"s_add_u32 s{sTmp}, s{sTmp}, 16")
        for i in range(3): A(f"v_subrev_u32 v{vTA+i}, 40, v{vXo3[i]}")
        for i in range(3): A(f"v_min_u32 v{vXo3[i]}, v{vXo3[i]}, v{vTA+i}")
        for i in range(3): A(f"v_lshl_add_u32 v{vXo3[i]}, v{vXo3[i]}, 3, v{vTmp2}")
        xload(0)
    def nexttask():
        A(f"s_add_u32 s{sO0}, s{sO0}, 0x8000")
        A(f"s_add_u32 s{sO1}, s{sO1}, 0x8000")
    nkv = 0
    for t in range(40):
        wqload(0, t)
        if t == 0:
            A(f"s_mov_b32 s{sK8}, 0x8000")
            A(f"s_movk_i32 s{sK5}, 5120")
            A(f"s_add_u32 s{sO1}, s{sBase}, 0x40000")
        while nkv < 16 and (nkv + 1) * kper <= t + 1:
            kvload(0, nkv); nkv += 1
            if nkv < 8: voff(nkv)
        if t == 4: xA()
    assert nkv >= 8
    for n in range(nkv, 16): kvload(0, n)
    nexttask()
    for n in range(4): kvload(1, n)
    stamp("issue")
    srd(sWS, 28, FLAGS + 256 * 128)
    for m, v in ((sM1, 0x22222222), (sM2, 0x44444444), (sM3, 0x88888888)):
        A(f"s_mov_b32 s{m}, {hex(v)}"); A(f"s_mov_b32 s{m+1}, {hex(v)}")
    A(f"s_lshl_b32 s{sWOo}, s{sH}, 2")
    A(f"s_add_u32 s{sWOo}, s{sWOo}, s3")
    A(f"s_lshl_b32 s{sWOo}, s{sWOo}, 3")
    A(f"s_add_u32 s{sWOo}, s{sWOo}, s{sJ}")
    A(f"s_mul_i32 s{sWOo}, s{sWOo}, {4*1280}               ; (h*128 + 32w + 4j)*1280")
    A(f"v_mov_b32 v{vTmp2}, 0x7fffffff")
    A(f"v_cmp_gt_u32 vcc, 160, v0")
    A(f"v_lshlrev_b32 v{vPub}, 4, v0")
    A(f"v_add_u32 v{vPub}, s{sC0}, v{vPub}")
    A(f"v_cndmask_b32 v{vPub}, v{vTmp2}, v{vPub}, vcc")
    A(f"s_lshl_b32 s{sTmp}, s{sHf}, 2")
    A(f"s_add_u32 s{sTmp}, s{sTmp}, s{sB}")
    A(f"s_lshl_b32 s{sTmp}, s{sTmp}, 2")
    A(f"s_add_u32 s{sTmp}, s{sTmp}, s3")
    A(f"s_mul_i32 s{sC0}, s{sTmp}, {16*ROW}")
    A(f"s_lshl_b32 s{sTmp}, s{sH}, 7")
    A(f"s_add_u32 s{sC0}, s{sC0}, s{sTmp}")
    A(f"s_cmp_lt_u32 s{sH}, 20")
    A(f"s_cselect_b32 s{sC0}, s{sC0}, 0x40000000")
    A(f"s_add_u32 s{sC1}, s{sC0}, {8*ROW}")
    A(f"v_lshrrev_b32 v{vCon}, 3, v{vLane}")
    A(f"v_mul_u32_u24 v{vCon}, {ROW}, v{vCon}")
    A(f"v_and_b32 v{vTmp}, 7, v{vLane}")
    A(f"v_lshl_add_u32 v{vCon}, v{vTmp}, 4, v{vCon}        ; lane = (row 16w + lane/8 (+8), piece lane%8)")
    A(f"s_mul_i32 s{sTmp}, s{sB}, 2560")
    A(f"s_mul_i32 s{sTmp2}, s{sHf}, 1280")
    A(f"s_add_u32 s{sTmp}, s{sTmp}, s{sTmp2}")
    A(f"s_lshl_b32 s{sTmp2}, s{sH}, 6")
    A(f"s_add_u32 s{sTmp}, s{sTmp}, s{sTmp2}")
    A(f"s_lshl_b32 s{sTmp2}, s3, 4")
    A(f"s_add_u32 s{sTmp}, s{sTmp}, s{sTmp2}")
    A(f"v_lshrrev_b32 v{vOutO}, 4, v{vLane}")
    A(f"v_lshl_add_u32 v{vOutO}, v{vOutO}, 3, s{sTmp}")
    A(f"v_and_b32 v{vTmp}, 1, v{vC}")
    A(f"v_lshlrev_b32 v{vTmp}, 4, v{vTmp}")
    A(f"v_mov_b32 v{vTmp2}, 0xffff")
    A(f"v_lshlrev_b32 v{vTmp2}, v{vTmp}, v{vTmp2}")
    A(f"v_lshrrev_b32 v{vTmp}, 1, v{vC}")
    for k in range(4):
        A(f"v_cmp_eq_u32 vcc, {k}, v{vTmp}")
        A(f"v_cndmask_b32 v{vMk+k}, 0, v{vTmp2}, vcc")
    A(f"v_lshrrev_b32 v{vTmp}, 4, v{vLane}")
    A(f"v_lshlrev_b32 v{vLdsA}, 5, v{vC}")
    A(f"v_lshl_add_u32 v{vLdsA}, v{vTmp}, 4, v{vLdsA}")
    A(f"v_and_b32 v{vTmp2}, 3, v{vC}")
    A(f"v_lshlrev_b32 v{vLdsS}, 3, v{vTmp2}")
    A(f"v_mul_u32_u24 v{vTmp2}, 576, v{vTmp2}")
    A(f"v_lshl_add_u32 v{vTmp2}, v{vTmp}, 2, v{vTmp2}")
    A(f"s_lshl_b32 s{sTmp}, s3, 7")
    A(f"v_add_u32 v{vTmp2}, s{sTmp}, v{vTmp2}")
    A(f"v_lshrrev_b32 v{vTmp}, 2, v{vC}")
    A(f"v_add_u32 v{vTmp}, s{sJ}, v{vTmp}")
    A(f"v_and_b32 v{vTmp}, 7, v{vTmp}")
    A(f"v_lshl_add_u32 v{vLdsO}, v{vTmp}, 4, v{vTmp2}")
    A(f"v_xor_b32 v{vTmp}, 4, v{vTmp}")
    A(f"v_lshl_add_u32 v{vE2}, v{vTmp}, 4, v{vTmp2}")
    A(f"v_mov_b32 v{vZero}, 0")
    A(f"s_mov_b32 s{sKk}, 0")
    A(f"s_mov_b32 s{sOne}, 1")
    A(f"s_lshl_b32 s{sTmp}, s2, 7")
    A(f"s_add_u32 s{sTmp}, s{sTmp}, {FLAGS}")
    A(f"s_add_u32 s{sFl}, s28, s{sTmp}")
    A(f"s_addc_u32 s{sFl+1}, s29, 0")
    A(f"s_xor_b32 s{sPo}, s2, 32")
    A(f"s_lshl_b32 s{sPo}, s{sPo}, 7")
    A(f"s_add_u32 s{sPo}, s{sPo}, {FLAGS}")

    def ands(dst, src, lane):
        for k in range(4):
            A(f"v_and_b32_dpp v{dst+k}, v{src}, v{vMk+k} row_newbcast:{lane} {DPPF}")
    def bar():
        A("s_waitcnt lgkmcnt(0)"); A("s_barrier")
    def ldsw(scale, off, reg):
        A(f"s_mul_i32 s{sTmp}, s3, {scale}")
        A(f"v_add_u32 v{vE1}, s{sTmp}, v{vLdsA}")
        A("s_mov_b32 exec_hi, 0")
        for o, r in zip(off, reg):
            A(f"ds_write_b128 v{vE1}, v[{r}:{r+3}] offset:{o}")
        A("s_mov_b32 exec_hi, -1")
    def wsld(key, n, dst, v, so, extra=""):
        w = {1: "dword", 2: "dwordx2", 4: "dwordx4"}[n]
        d = f"v{dst}" if n == 1 else f"v[{dst}:{dst+n-1}]"
        op(key, f"buffer_load_{w} {d}, v{v}, s[{sWS}:{sWS+3}], {so} offen {extra}sc1")
    def xB():
        xload(1)
        srd(sOUT, 24, 10240)
        setbase(sE, pWQ[1])
        A(f"s_mov_b32 s{sEo}, s{sWQo}")
    late = [(lambda n=n: kvload(1, n)) for n in range(4, 16)] + [xB,
            lambda: wsld(("old", 0), 4, vOldP[0], vPub, "0"),
            lambda: (A(f"s_mov_b32 s{sTmp}, {4*64*ROW}"), wsld(("old", 1), 4, vOldP[1], vPub, f"s{sTmp}")),
            lambda: wsld(("old", 2), 4, vOldC, vCon, f"s{sC0}"),
            lambda: wsld(("old", 3), 4, vOldC + 4, vCon, f"s{sC1}")]
    def q_chunks(br, per):
        xs = vX + 3 * br
        def head():
            need(("x", br, 2))
            for i in range(3):
                A(f"v_lshl_or_b32 v{xs+i}, v{xs+i}, 16, v{xs+i}")
            ands(vA0, xs, 0)
        def mm(t0, t1):
            def f():
                for t in range(t0, t1):
                    cur = vA0 if t % 2 == 0 else vA1; nxt = vA1 if t % 2 == 0 else vA0
                    if t < 39: ands(nxt, xs + (t + 1) // 16, (t + 1) % 16)
                    need(("wq", br, t))
                    c = "0" if t == 0 else f"v[{vAq}:{vAq+3}]"
                    A(f"v_mfma_f32_16x16x32_bf16 v[{vAq}:{vAq+3}], v[{cur}:{cur+3}], a[{4*t}:{4*t+3}], {c}")
                    if br == 0 and late: late.pop(0)()
            return f
        return [head] + [mm(t, min(40, t + per)) for t in range(0, 40, per)] + [lambda: ldsw(512, [QP if br == 0 else OUTP], [vAq])]
    def q_finish(br):
        dst = (vQA, vQB)[br]; base = (QP, OUTP)[br]
        A(f"v_lshlrev_b32 v{vE1}, 5, v{vC}")
        for w in range(4):
            for hf in range(2):
                r = vSc + 8 * w + 4 * hf
                A(f"ds_read_b128 v[{r}:{r+3}], v{vE1} offset:{base + 512*w + 16*hf}")
        for w in range(1, 4):
            A(f"s_waitcnt lgkmcnt({6-2*w})" if (br == 0 and not diag) else "s_waitcnt lgkmcnt(0)")
            for e in range(8):
                A(f"v_add_f32 v{vSc+e}, v{vSc+e}, v{vSc+8*w+e}")
        for k in range(4):
            A(f"v_cvt_pk_bf16_f32 v{dst+k}, v{vSc+2*k}, v{vSc+2*k+1}")
    for f in q_chunks(0, 40): f()
    assert not late
    stamp("qm")
    bar()
    q_finish(0)
    stamp("q")

    def linesetup():
        A(f"v_mul_u32_u24 v{vFo}, 9, v{vLane}")
        A(f"v_add_u32 v{vFo}, s2, v{vFo}")
        A(f"v_and_b32 v{vFo}, 255, v{vFo}")
        A(f"v_lshlrev_b32 v{vFo}, 7, v{vFo}")
        A(f"v_mov_b32 v{vTmp2}, 0x7fffffff")
        A(f"v_cmp_gt_u32 vcc, {npeer}, v0")
        A(f"v_mov_b32 v{vTmp}, {KK}")
        A(f"v_cndmask_b32 v{vFo}, v{vTmp2}, v{vFo}, vcc")
        A(f"ds_write_b32 v{vTmp}, v{vZero}")
        if cps:
            A(f"s_mov_b32 s{sTmp}, {FLAGS}")
            wsld(("fold",), 4, vFold, vFo, f"s{sTmp}")
        wsld(("olds",), 4, vOldS, vZero, f"s{sPo}", "offset:16 ")
        A(f"s_xor_b32 s{sTmp}, s{sPo}, {32 << 7}" if (FLAGS & (32 << 7)) == 0 else "bad")
        wsld(("owns",), 4, vOwnS, vZero, f"s{sTmp}", "offset:16 ")
    def notold():
        need(("old", 1)); need(("owns",))
        for br in range(2):
            for e in range(4): A(f"v_not_b32 v{vOldP[br]+e}, v{vOldP[br]+e}")
        for e in range(4): A(f"v_and_b32 v{vOwnS+e}, 1, v{vOwnS+e}")
        A(f"v_lshl_or_b32 v{vOwnS}, v{vOwnS+1}, 1, v{vOwnS}")
        A(f"v_lshl_or_b32 v{vOwnS+2}, v{vOwnS+3}, 1, v{vOwnS+2}")
        A(f"v_lshl_or_b32 v{vOwnS}, v{vOwnS+2}, 2, v{vOwnS}")
        A(f"v_not_b32 v{vOwnS}, v{vOwnS}")
        A(f"v_readfirstlane_b32 s{sTg}, v{vOwnS}")

    def softmax_chunks(br):
        S = [vSs + t for t in range(8)]
        Mx, Lx = vStat[br], vStat[br] + 1
        def each(*ops):
            for o in ops:
                for s in S: A(o.format(s=s))
        def c_r1(): each("v_cvt_pk_bf16_f32 v{s}, v{s}, v{s}", "v_and_b32 v{s}, 0xffff0000, v{s}", "v_mul_f32 v{s}, " + hex(f2u(128 ** -0.5)) + ", v{s}")
        def c_max():
            each("v_cvt_pk_bf16_f32 v{s}, v{s}, v{s}", "v_and_b32 v{s}, 0xffff0000, v{s}")
            A(f"v_max3_f32 v{vT}, v{S[0]}, v{S[1]}, v{S[2]}")
            A(f"v_max3_f32 v{vF}, v{S[3]}, v{S[4]}, v{S[5]}")
            A(f"v_max3_f32 v{vT}, v{vT}, v{S[6]}, v{S[7]}")
            A(f"v_max_f32 v{vT}, v{vT}, v{vF}")
            for ctl in RED64: A(f"v_max_f32_dpp v{vT}, v{vT}, v{vT} {ctl}")
            A(f"v_readlane_b32 s{sM}, v{vT}, 63")
        def c_exp(): each("v_subrev_f32 v{s}, s" + str(sM) + ", v{s}", "v_mul_f32 v{s}, " + hex(f2u(LOG2E)) + ", v{s}", "v_exp_f32 v{s}, v{s}")
        def c_sum():
            A(f"v_mov_b32 v{vM}, s{sM}")
            A(f"v_add_f32 v{vL}, v{S[0]}, v{S[1]}")
            A(f"v_add_f32 v{vT}, v{S[2]}, v{S[3]}")
            A(f"v_add_f32 v{vF}, v{S[4]}, v{S[5]}")
            A(f"v_add_f32 v{vE1}, v{S[6]}, v{S[7]}")
            A(f"v_add_f32 v{vL}, v{vL}, v{vT}")
            A(f"v_add_f32 v{vF}, v{vF}, v{vE1}")
            A(f"v_add_f32 v{vL}, v{vL}, v{vF}")
            for ctl in RED64: A(f"v_add_f32_dpp v{vL}, v{vL}, v{vL} {ctl}")
            A(f"s_lshl_b32 s{sTmp}, s3, 3")
            A(f"v_mov_b32 v{vE1}, s{sTmp}")
            A("s_mov_b32 exec_lo, 0")
            A("s_mov_b32 exec_hi, 0x80000000")
            A(f"ds_write_b64 v{vE1}, v[{vM}:{vM+1}] offset:{ST}")
            A("s_mov_b64 exec, -1")
        def c_norm():
            bar()
            A(f"ds_read_b64 v[{vTA}:{vTA+1}], v{vLdsS} offset:{ST}")
            A("s_waitcnt lgkmcnt(0)")
            A(f"v_max_f32_dpp v{Mx}, v{vTA}, v{vTA} quad_perm:[1,0,3,2] {DPPF}")
            A(f"v_max_f32_dpp v{Mx}, v{Mx}, v{Mx} quad_perm:[2,3,0,1] {DPPF}")
            A(f"v_sub_f32 v{vTA}, v{vTA}, v{Mx}")
            A(f"v_sub_f32 v{vM}, v{vM}, v{Mx}")
            A(f"v_mul_f32 v{vTA}, {hex(f2u(LOG2E))}, v{vTA}")
            A(f"v_mul_f32 v{vM}, {hex(f2u(LOG2E))}, v{vM}")
            A(f"v_exp_f32 v{vTA}, v{vTA}")
            A(f"v_exp_f32 v{vM}, v{vM}")
            A(f"v_mul_f32 v{Lx}, v{vTA+1}, v{vTA}")
            A(f"v_add_f32_dpp v{Lx}, v{Lx}, v{Lx} quad_perm:[1,0,3,2] {DPPF}")
            A(f"v_add_f32_dpp v{Lx}, v{Lx}, v{Lx} quad_perm:[2,3,0,1] {DPPF}")
            A(f"v_rcp_f32 v{vF}, v{Lx}")
            A(f"v_mul_f32 v{vF}, v{vF}, v{vM}")
        def c_pack():
            each("v_mul_f32 v{s}, v{s}, v" + str(vF), "v_cvt_pk_bf16_f32 v{s}, v{s}, v{s}")
            if br == 0: q_finish(1)
            p = sSt[br]
            A(f"v_readfirstlane_b32 s{p}, v{Mx}")
            A(f"v_readfirstlane_b32 s{p+1}, v{Lx}")
            for e in range(2):
                A(f"s_bitcmp1_b32 s{sTg}, {2*br+e}")
                A(f"s_cselect_b32 s{sTmp}, 1, 0")
                A(f"s_and_b32 s{p+e}, s{p+e}, -2")
                A(f"s_or_b32 s{p+e}, s{p+e}, s{sTmp}")
            L = newlbl()
            A("s_cmp_lg_u32 s3, 0")
            A(f"s_cbranch_scc1 {L}")
            A(f"s_atomic_swap_x2 s[{p}:{p+1}], s[{sFl}:{sFl+1}], {hex(16 + 8*br)}")
            A(f"{L}:")
        return [c_r1, c_max, c_exp, c_sum, c_norm, c_pack]
    def partner(br):
        def ld(): wsld(("pst", br), 2, vPst, vZero, f"s{sPo}", f"offset:{16 + 8*br} ")
        def ev():
            need(("pst", br))
            L0, L1 = f"L_ps{br}", f"L_pd{br}"
            A(f"s_mov_b32 s{sSpin}, 0")
            A(f"{L0}:")
            A(f"v_xor_b32 v{vT}, v{vPst}, v{vOldS+2*br}")
            A(f"v_xor_b32 v{vF}, v{vPst+1}, v{vOldS+2*br+1}")
            A(f"v_and_b32 v{vT}, v{vT}, v{vF}")
            A(f"v_readfirstlane_b32 s{sTmp}, v{vT}")
            A(f"s_bitcmp1_b32 s{sTmp}, 0")
            A(f"s_cbranch_scc1 {L1}")
            A(f"s_add_u32 s{sSpin}, s{sSpin}, 1")
            A(f"s_cmp_ge_u32 s{sSpin}, 0x40000")
            A(f"s_cbranch_scc1 {L1}")
            A(f"buffer_load_dwordx2 v[{vPst}:{vPst+1}], v{vZero}, s[{sWS}:{sWS+3}], s{sPo} offen offset:{16 + 8*br} sc1")
            A("s_waitcnt vmcnt(0)")
            A(f"s_branch {L0}")
            A(f"{L1}:")
            Mx, Lx = vStat[br], vStat[br] + 1
            A(f"v_max_f32 v{vT}, v{Mx}, v{vPst}")
            A(f"v_sub_f32 v{vF}, v{Mx}, v{vT}")
            A(f"v_sub_f32 v{vT}, v{vPst}, v{vT}")
            A(f"v_mul_f32 v{vF}, {hex(f2u(LOG2E))}, v{vF}")
            A(f"v_mul_f32 v{vT}, {hex(f2u(LOG2E))}, v{vT}")
            A(f"v_exp_f32 v{vF}, v{vF}")
            A(f"v_exp_f32 v{vT}, v{vT}")
            A(f"v_mul_f32 v{vF}, v{vF}, v{Lx}")
            A(f"v_fma_f32 v{vT}, v{vT}, v{vPst+1}, v{vF}")
            A(f"v_rcp_f32 v{vT}, v{vT}")
            A(f"v_mul_f32 v{vFac+br}, v{vF}, v{vT}")
        return ld, ev
    def proj_chunks(br, res):
        def c_w(): ldsw(576, [OP], [vAcc])
        def c_r():
            bar()
            A(f"ds_read_b32 v{vU}, v{vLdsO} offset:{OP}")
            A(f"ds_read_b32 v{vU+1}, v{vE2} offset:{OP}")
            if br == 1: stamp('bar')
            A("s_waitcnt lgkmcnt(0)")
            for q in ("quad_perm:[1,0,3,2]", "quad_perm:[2,3,0,1]"):
                for r in (vU, vU + 1):
                    A(f"v_add_f32_dpp v{r}, v{r}, v{r} {q} {DPPF}")
            for r in (vU, vU + 1): A(f"v_mul_f32 v{r}, v{r}, v{vFac+br}")
            A(f"v_cvt_pk_bf16_f32 v{vU}, v{vU}, v{vU}")
            A(f"v_cvt_pk_bf16_f32 v{vU+1}, v{vU+1}, v{vU+1}")
            need(("wo", br, 39))
            ands(vA0, vU, 0)
        def mf(cb, tq, a):
            i = tq * 5 + cb
            c = "0" if tq == 0 else f"v[{vO+4*cb}:{vO+4*cb+3}]"
            A(f"v_mfma_f32_16x16x32_bf16 v[{vO+4*cb}:{vO+4*cb+3}], v[{a}:{a+3}], a[{4*i}:{4*i+3}], {c}")
        def mm(tq):
            def f():
                cur = vA0 if tq % 2 == 0 else vA1; nxt = vA1 if tq % 2 == 0 else vA0
                for cb in range(5):
                    mf(cb, tq, cur)
                    if cb == 0 and tq < 7: ands(nxt, vU + ((tq + 1) >> 2), 4 * ((tq + 1) & 3))
            return f
        def c_w2(): ldsw(2560, [OUTP + 512 * cb for cb in range(5)], [vO + 4 * cb for cb in range(5)])
        def mmcb():
            Aq = [vA0] + [vRing + 4 * q for q in range(1, 8)]
            def wr(cb):
                A("s_mov_b32 exec_hi, 0")
                A(f"ds_write_b128 v{vE1}, v[{vO+4*cb}:{vO+4*cb+3}] offset:{OUTP + 512*cb}")
                A("s_mov_b32 exec_hi, -1")
            for tq in range(8):
                mf(0, tq, Aq[tq])
                if tq < 7: ands(Aq[tq + 1], vU + ((tq + 1) >> 2), 4 * ((tq + 1) & 3))
                mf(1, tq, Aq[tq])
            A(f"s_mul_i32 s{sTmp}, s3, 2560")
            A(f"v_add_u32 v{vE1}, s{sTmp}, v{vLdsA}")
            for cb in (2, 3, 4):
                for tq in range(8): mf(cb, tq, Aq[tq])
                if cb == 2: wr(0)
                wr(cb - 1)
            wr(4)
        def c_sum():
            A(f"v_lshlrev_b32 v{vE1}, 4, v0")
            bar()
            for w in range(4):
                A(f"ds_read_b128 v[{vSc+4*w}:{vSc+4*w+3}], v{vE1} offset:{OUTP+2560*w}")
            for w in range(1, 4):
                A(f"s_waitcnt lgkmcnt({3-w})" if (br == 1 and not diag) else "s_waitcnt lgkmcnt(0)")
                for e in range(4):
                    A(f"v_add_f32 v{vSc+e}, v{vSc+e}, v{vSc+4*w+e}")
            for e in range(4):
                A(f"v_bfi_b32 v{res+e}, 1, v{vOldP[br]+e}, v{vSc+e}")
        if br == 1: return [c_w, c_r, mmcb, c_sum]
        return [c_w, c_r] + [mm(q) for q in range(8)] + [c_w2, c_sum]
    def poll(key):
        wsld((key, 0), 4, vD, vCon, f"s{sC0}")
        wsld((key, 1), 4, vD + 4, vCon, f"s{sC1}")

    extras = {T: [] for T in range(32)}
    fills = {T: [] for T in range(32)}
    def spread(rng, fn):
        Ts = list(range(rng[0], rng[1])); n = len(Ts)
        for a, T in enumerate(Ts):
            extras[T] += [(lambda i=i: fn(i)) for i in range(40 * a // n, 40 * (a + 1) // n)]
    spread(wqB, lambda i: wqload(1, i))
    spread(woA, lambda i: woload(0, i))
    spread(woB, lambda i: woload(1, i))
    fills[qB] = q_chunks(1, 3)
    pa = proj_chunks(0, vRes)
    fills[epA] = pa[:6]
    fills[epA + 1] = pa[6:]
    fills[3].append(notold)
    assert wqB[1] <= qB < 7 and woA[0] > qB and woA[1] <= epA and woB[0] > epA + 1 and 7 < stT[0] < 15 and 23 < stT[1] < 30
    dyn0 = (min(cps) + 1) if cps else 99
    stT = list(stT)

    def body(T):
        ph, t = T >> 3, T & 7
        br = ph >> 1; isK = (ph & 1) == 0
        issue = 0 < T < 31
        ex = list(extras[T]); nx = len(ex)
        fl = list(fills[T]); nf = len(fl); post = {}
        if issue:
            if t == 7:
                setbase(sS, (pV[br] if isK else pK[1]))
                A(f"s_mov_b32 s{sO0}, s{sBase}")
                A(f"s_add_u32 s{sO1}, s{sBase}, 0x40000")
            else:
                nexttask()
        if T == 1: linesetup()
        if T in stT:
            ld, ev = partner(stT.index(T)); ld(); post[12] = ev
        if T in cps:
            ci = list(cps).index(T)
            L = newlbl()
            A("s_cmp_lg_u32 s3, 0")
            A(f"s_cbranch_scc1 {L}")
            A(f"s_atomic_xor s{sOne}, s[{sFl}:{sFl+1}], {hex(4*ci)}")
            A(f"{L}:")
            A(f"s_mov_b32 s{sTmp2}, {FLAGS + 4*ci}")
            wsld(("fcur", ci), 1, vFcur, vFo, f"s{sTmp2}")
            def evalf():
                need(("fcur", ci))
                A(f"v_xor_b32 v{vFcur}, v{vFcur}, v{vFold+ci}")
                A(f"v_and_b32 v{vFcur}, 1, v{vFcur}")
                A(f"v_cmp_eq_u32 vcc, 1, v{vFcur}")
                A(f"s_and_b32 s{sTmp}, vcc_lo, -2")
                A(f"s_bcnt1_i32_b32 s{sTmp}, s{sTmp}")
                A(f"s_lshl_b32 s{sTmp}, s{sTmp}, 1")
                A(f"s_sub_i32 s{sTmp}, s{sTmp}, {int(2*mid)}")
                A(f"s_cmp_gt_i32 s{sTmp}, 0")
                A(f"s_cselect_b32 s{sTmp2}, {int(round(gp*32))}, {int(round(gn*32))}")
                A(f"s_mul_i32 s{sTmp}, s{sTmp}, s{sTmp2}")
                A(f"s_add_i32 s{sTmp}, s{sTmp}, 32")
                A(f"s_ashr_i32 s{sTmp}, s{sTmp}, 6")
                A(f"v_mov_b32 v{vKk}, s{sTmp}")
                A(f"v_mov_b32 v{vFcur}, {KK}")
                L2 = newlbl()
                A("s_cmp_lg_u32 s3, 0")
                A(f"s_cbranch_scc1 {L2}")
                A(f"ds_write_b32 v{vFcur}, v{vKk}")
                A(f"{L2}:")
            assert 9 not in post
            post[9] = evalf
        if T - 1 in cps:
            A(f"v_mov_b32 v{vFcur}, {KK}")
            A(f"ds_read_b32 v{vKk}, v{vFcur}")
            A("s_waitcnt lgkmcnt(0)")
            A(f"v_readfirstlane_b32 s{sKk}, v{vKk}")
        last = Wlast and T >= 31 - nlast
        dyn = T >= dyn0 and issue and not last
        if dyn:
            A(f"s_max_i32 s{sW}, s{sKk}, -1")
            A(f"s_min_i32 s{sW}, s{sW}, 1")
            A(f"s_sub_i32 s{sKk}, s{sKk}, s{sW}")
        def iss(n):
            if issue:
                if dyn: thrdyn()
                else: thr(Wlast if last else W)
                kvload(T + 1, n)
            for _ in range((n + 1) * nx // 16 - n * nx // 16): ex.pop(0)()
            for _ in range((n + 1) * nf // 16 - n * nf // 16): fl.pop(0)()
            if n in post: post[n]()
        if T == pubT:
            op(("pub", 0), f"buffer_store_dwordx4 v[{vRes}:{vRes+3}], v{vPub}, s[{sWS}:{sWS+3}], 0 offen {pubf}")
        if isK:
            vQ = vQA if br == 0 else vQB
            def dots(tr, base):
                need(("kv", T, base + 3))
                for k in range(4):
                    for j in range(4):
                        c = "0" if k == 0 else f"v{tr+j}"
                        A(f"v_dot2_f32_bf16 v{tr+j}, v{slot(T, base+j)+k}, v{vQ+k}, {c}")
            def red():
                for (d, s, ctl, bm) in ((0, 0, "row_ror:8", 3), (1, 1, "row_ror:8", 3), (0, 2, "row_ror:8", 12), (1, 3, "row_ror:8", 12),
                                        (0, 0, "row_half_mirror", 5), (0, 1, "row_half_mirror", 10),
                                        (0, 0, "quad_perm:[1,0,3,2]", 15), (0, 0, "quad_perm:[2,3,0,1]", 15)):
                    for tr in (vTA, vTB):
                        A(f"v_add_f32_dpp v{tr+d}, v{tr+s}, v{tr+s} {ctl} row_mask:0xf bank_mask:{hex(bm)}")
            S = vSs + t
            m1 = lambda: A(f"v_cndmask_b32 v{S}, v{vTA}, v{vTB}, s[{sM1}:{sM1+1}]")
            def m2():
                A(f"v_cndmask_b32 v{S}, v{S}, v{vTA}, s[{sM2}:{sM2+1}]")
                A(f"v_cndmask_b32 v{S}, v{S}, v{vTB}, s[{sM3}:{sM3+1}]")
            if t < 7:
                dots(vTA, 0); iss(0); iss(1)
                dots(vTB, 4); iss(2); iss(3)
                red(); iss(4); iss(5)
                m1(); iss(6); iss(7)
                dots(vTA, 8); iss(8); iss(9)
                dots(vTB, 12); iss(10); iss(11)
                red(); iss(12); iss(13)
                m2(); iss(14); iss(15)
            else:
                assert nf == 0
                dots(vTA, 0); iss(0); iss(1)
                dots(vTB, 4); iss(2); iss(3)
                red(); iss(4)
                m1()
                dots(vTA, 8); iss(5); iss(6)
                dots(vTB, 12); iss(7); iss(8)
                red(); iss(9)
                m2()
                for a, f in enumerate(softmax_chunks(br)):
                    f(); iss(10 + a)
        else:
            lane = lambda n: 4 * (n & 3) + (n >> 2)
            Pk = vSs + t
            ands(vA0, Pk, lane(0))
            for n in range(16):
                cur = vA0 if n % 2 == 0 else vA1; nxt = vA1 if n % 2 == 0 else vA0
                if n < 15: ands(nxt, Pk, lane(n + 1))
                need(("kv", T, n))
                r = vRing + 4 * n
                c = "0" if (t == 0 and n == 0) else f"v[{vAcc}:{vAcc+3}]"
                A(f"v_mfma_f32_16x16x32_bf16 v[{vAcc}:{vAcc+3}], v[{cur}:{cur+3}], v[{r}:{r+3}], {c}")
                iss(n)
        assert not ex and not fl
    for T in range(32):
        A(f"; ---- task {T}")
        stamp(f"T{T}")
        body(T)
    stamp("end")
    pb = proj_chunks(1, vSc + 16)
    pb[0]()
    A(f"s_mov_b32 s{sTmp2}, {4*64*ROW}")
    A(f"s_mov_b32 s{sSpin}, 0")
    A(f"v_lshrrev_b32 v{vTmp}, 4, v0")
    A(f"v_mul_u32_u24 v{vTmp}, 144, v{vTmp}")
    A(f"v_and_b32 v{vTmp2}, 7, v0")
    A(f"v_lshl_add_u32 v{vTmp}, v{vTmp2}, 4, v{vTmp}")
    A(f"v_lshrrev_b32 v{vTmp2}, 4, v{vLane}")
    A(f"v_lshl_add_u32 v{vTmp2}, s3, 1, v{vTmp2}")
    A(f"v_lshlrev_b32 v{vTmp2}, 4, v{vTmp2}")
    A(f"v_mul_u32_u24 v{vT}, 144, v{vC}")
    A(f"v_add_u32 v{vTmp2}, v{vTmp2}, v{vT}")
    for f in pb[1:-1]: f()
    stamp("mm")
    pb[-1]()
    op(("pub", 1), f"buffer_store_dwordx4 v[{vSc+16}:{vSc+19}], v{vPub}, s[{sWS}:{sWS+3}], s{sTmp2} offen {pubf}")
    stamp("pub")
    A(f"s_cmp_ge_u32 s{sH}, 20")
    A("s_cbranch_scc1 L_fin")
    need(("old", 3))
    poll("p0")
    need(("p0", 1))
    A("L_chk:")
    for e in range(8):
        A(f"v_xor_b32 v{vSc+e}, v{vD+e}, v{vOldC+e}")
    for (a, b) in ((0, 1), (2, 3), (4, 5), (6, 7), (0, 2), (4, 6), (0, 4)):
        A(f"v_and_b32 v{vSc+a}, v{vSc+a}, v{vSc+b}")
    A(f"v_and_b32 v{vSc}, 1, v{vSc}")
    A(f"v_cmp_eq_u32 vcc, 0, v{vSc}")
    A("s_and_b64 exec, exec, vcc")
    A("s_cbranch_execz L_got")
    A(f"s_add_u32 s{sSpin}, s{sSpin}, 1")
    A(f"s_cmp_ge_u32 s{sSpin}, 0x40000")
    A("s_cbranch_scc1 L_got")
    A(f"s_bcnt1_i32_b64 s{sTmp}, exec")
    A(f"s_cmp_le_u32 s{sTmp}, {nB}")
    A("s_cbranch_scc1 L_pc")
    A(f"s_cmp_le_u32 s{sTmp}, {nA}")
    A("s_cbranch_scc1 L_pb")
    if slA: A(f"s_sleep {slA}")
    A("L_pb:")
    if slB: A(f"s_sleep {slB}")
    A("L_pc:")
    poll("p1")
    A("s_waitcnt vmcnt(0)")
    A("s_branch L_chk")
    A("L_got:")
    stamp("got")
    A("s_mov_b64 exec, -1")
    for e in range(4): A(f"v_add_f32 v{vD+e}, v{vD+e}, v{vD+4+e}")
    for e in range(4): A(f"v_add_f32_dpp v{vD+e}, v{vD+e}, v{vD+e} row_ror:8 {DPPF}")
    A("s_mov_b32 exec_lo, 0x00ff00ff")
    A("s_mov_b32 exec_hi, 0x00ff00ff")
    A(f"ds_write_b128 v{vTmp}, v[{vD}:{vD+3}] offset:{QP}")
    A("s_mov_b64 exec, -1")
    bar()
    A(f"ds_read_b128 v[{vD}:{vD+3}], v{vTmp2} offset:{QP}")
    A("s_waitcnt lgkmcnt(0)")
    for ctl in RED64[:4]:
        for e in range(4):
            A(f"v_add_f32_dpp v{vD+e}, v{vD+e}, v{vD+e} {ctl}")
    A(f"v_cvt_pk_bf16_f32 v{vD}, v{vD}, v{vD+1}")
    A(f"v_cvt_pk_bf16_f32 v{vD+1}, v{vD+2}, v{vD+3}")
    A("s_mov_b32 exec_lo, 0x10001")
    A("s_mov_b32 exec_hi, 0")
    A(f"buffer_store_dwordx2 v[{vD}:{vD+1}], v{vOutO}, s[{sOUT}:{sOUT+3}], 0 offen")
    A("L_fin:")
    if diag == 3:
        stamp()
        A("s_waitcnt lgkmcnt(0)")
        A(f"s_sub_u32 s{sTmp}, s{sST+2*ampk}, s{sST+2*ampj}")
        A(f"s_mul_i32 s{sTmp}, s{sTmp}, {amp}")
        A(f"s_add_u32 s{sTmp}, s{sTmp}, {fix}")
        A("L_hold:")
        A(f"s_memrealtime s[{sM1}:{sM1+1}]")
        A("s_waitcnt lgkmcnt(0)")
        A(f"s_sub_u32 s{sTmp2}, s{sM1}, s{sST}")
        A(f"s_cmp_lt_u32 s{sTmp2}, s{sTmp}")
        A("s_cbranch_scc1 L_hold")
    if diag == 1:
        stamp()
        A("s_mov_b64 exec, -1")
        A(f"s_getreg_b32 s{sTmp}, hwreg(HW_REG_XCC_ID)")
        A("s_waitcnt lgkmcnt(0)")
        A(f"v_mov_b32 v{vStamp}, 0")
        for k in range(nstamp[0]):
            A(f"v_writelane_b32 v{vStamp}, s{sST+2*k}, {k}")
        A(f"v_writelane_b32 v{vStamp}, s{sTmp}, 14")
        A(f"v_writelane_b32 v{vStamp}, s{sSpin}, 15")
        A(f"s_add_u32 s{sE}, s28, {DIAG_OFF}")
        A(f"s_addc_u32 s{sE+1}, s29, 0")
        A(f"s_mov_b32 s{sE+2}, 0x10000")
        A(f"s_lshl_b32 s{sTmp}, s2, 2")
        A(f"s_add_u32 s{sTmp}, s{sTmp}, s3")
        A(f"s_lshl_b32 s{sTmp}, s{sTmp}, 6")
        A(f"v_lshlrev_b32 v{vTmp}, 2, v{vLane}")
        A("s_mov_b64 exec, 0xffff")
        A(f"buffer_store_dword v{vStamp}, v{vTmp}, s[{sE}:{sE+3}], s{sTmp} offen")
        A(f"; nstamp={nstamp[0]}")
    A("L_end:")
    A("s_endpgm")
    code = A.finish()
    txt = HEADER + "; Override launch geometry by editing the next line (default: block=256,\n; grid=ceil(out_elems/256), lds=0). Harness parses it; keep it on one line.\n"
    txt += "; @launch grid=(256,1,1) block=(256,1,1) lds=16384\n" + DOC
    txt += f""".amdgcn_target "amdgcn-amd-amdhsa--gfx950"
.text
.globl {name}
.p2align 8
.type {name},@function
""" + code + f""".section .rodata,"a"
.p2align 6
.amdhsa_kernel {name}
  .amdhsa_next_free_vgpr 416
  .amdhsa_next_free_sgpr 102
  .amdhsa_accum_offset 256
  .amdhsa_group_segment_fixed_size 0
  .amdhsa_kernarg_size 104
  .amdhsa_user_sgpr_count 2
  .amdhsa_user_sgpr_kernarg_segment_ptr 1
  .amdhsa_system_sgpr_workgroup_id_x 1
  .amdhsa_float_denorm_mode_32 3
.end_amdhsa_kernel
"""
    return txt

if __name__ == "__main__":
    import json
    kw = json.loads(sys.argv[1]) if len(sys.argv) > 1 else {}
    sys.stdout.write(gen(**kw))
```

```python
import sys, struct
from asmlib import Asm

NAME = "concat_heads__mha_block_cached__gqa_block_cached__decode_kernel"
HEADER = open("concat_heads__mha_block_cached__gqa_block_cached__decode.s.ref").read().split("; Override launch")[0]
NSTAMP = 10
DIAG_OFF = 0x200000
LOG2E = 1.4426950408889634
ROW = 2560
FLAGS = 8 * 64 * ROW

DOC = """;
; Structure
"""

def f2u(x): return struct.unpack("<I", struct.pack("<f", x))[0]

def gen(W=5, kvf="nt", wf="", pubf="sc1", diag=0, kper=2, swz=31,
        wqB=(1, 6), qB=6, woA=(7, 16), epA=16, woB=(18, 28), Wlast=9, nlast=2, pubT=31, stT=(10, 26),
        cps=(8, 20), npeer=8, mid=4, gp=1.5, gn=0.45, smf=1, dbl=0, dly=8, xw=0, xall=0, pro=1, lead=18, k0=5, prb=2, fake=0,
        slA=8, slB=3, nA=32, nB=16, stl=('karg', 'issue', 'q', 'T8', 'T16', 'T24', 'end', 'bar'),
        amp=0, ampk=0, ampj=0, fix=15000, name=NAME):
    A = Asm()
    pX, pK, pV, pWQ, pWO = (4, 14), (6, 16), (8, 18), (10, 20), (12, 22)
    sS, sE, sWS, sOUT = 32, 36, 40, 44
    sB, sH, sHf, sO0, sO1, sBase, sTmp, sTmp2, sM, sSpin, sEo, sWQo, sWOo, sC0, sC1, sR = range(48, 64)
    sM1, sM2, sM3 = 64, 66, 68
    sTg = 70
    sJ, sK8, sK5, sW, sKk = 71, 72, 73, 74, 75
    sST = 76
    sFl, sOne, sPo = 96, 98, 99
    sSt = (100, 30)
    vLane, vWQo, vWOo, vXo, vPub, vCon, vOutO, vTmp, vTmp2, vC, vLdsA, vLdsO, vLdsS, vStamp, vZero = range(1, 16)
    vMk = 16; vQA = 20; vQB = 24; vA0 = 28; vA1 = 32; vAcc = 36; vAq = 40
    vTA, vTB = 44, 48
    vM, vL = 52, 53; vT, vF = 54, 55
    vX = 56
    vXo3 = (vXo, vQB, vQB + 1)
    vE1, vE2 = 62, 63
    vRing = 64
    vOff = 128
    vSs = 136
    vSc = 144
    vRing2 = 176
    vO = 176
    vPst = 196
    vFac = 198
    vOldS = 200
    vOwnS = 204
    vD = 212
    vRes = 220
    vStat = (224, 226)
    vU = 228
    vFo, vKk, vFold, vFcur = 230, 231, 232, 236
    vSm = 208
    vOldP = (240, 244)
    vOldC = 248
    QP, OP, ST, KK, OUTP = 0, 2048, 4352, 4400, 4608
    DPPF = "row_mask:0xf bank_mask:0xf"
    RED64 = ("row_ror:8 " + DPPF, "row_ror:4 " + DPPF, "row_ror:2 " + DPPF, "row_ror:1 " + DPPF,
             "row_bcast:15 row_mask:0xa bank_mask:0xf", "row_bcast:31 row_mask:0xc bank_mask:0xf")
    nstamp = [0]
    def stamp(kind=None):
        if kind is not None and kind not in stl: return
        if diag:
            A(f"s_memrealtime s[{sST+2*nstamp[0]}:{sST+2*nstamp[0]+1}]")
            nstamp[0] += 1
    class St: pass
    st = St(); st.issued = 0; st.landed = 0; st.pos = {}; st.kv = []
    lbl = [0]
    def newlbl():
        lbl[0] += 1; return f"L_t{lbl[0]}"
    def op(key, text):
        A(text); st.pos[key] = st.issued; st.issued += 1
        assert st.issued - st.landed <= 63
    def wait(n):
        A(f"s_waitcnt vmcnt({n})"); st.landed = max(st.landed, st.issued - n)
    def need(key):
        if st.landed <= st.pos[key]: wait(st.issued - st.pos[key] - 1)
    def thr(w):
        p = st.kv[len(st.kv) - w]
        if st.landed <= p: wait(st.issued - p - 1)
    def thrdyn(W):
        cnt = lambda w: st.issued - st.kv[len(st.kv) - w] - 1
        thr(W + 1)
        L = newlbl()
        A(f"s_cmp_gt_i32 s{sW}, 0")
        A(f"s_cbranch_scc1 {L}")
        A(f"s_waitcnt vmcnt({cnt(W)})")
        A(f"s_cmp_eq_u32 s{sW}, 0")
        A(f"s_cbranch_scc1 {L}")
        A(f"s_waitcnt vmcnt({cnt(W - 1)})")
        A(f"{L}:")
    def setbase(s, p): A(f"s_mov_b64 s[{s}:{s+1}], s[{p}:{p+1}]")
    def srd(s, p, n):
        setbase(s, p); A(f"s_mov_b32 s{s+2}, {n}"); A(f"s_mov_b32 s{s+3}, 0x20000")

    A(f"{name}:")
    stamp()
    A("s_cmp_ge_u32 s2, 256")
    A("s_cbranch_scc1 L_end")
    A("s_load_dwordx16 s[4:19], s[0:1], 0")
    A("s_load_dwordx8 s[20:27], s[0:1], 64")
    A("s_load_dwordx2 s[28:29], s[0:1], 96")
    A(f"v_lshrrev_b32 v{vTmp}, 6, v0")
    A(f"v_and_b32 v{vLane}, 63, v0")
    A(f"v_readfirstlane_b32 s3, v{vTmp}                    ; wave")
    A(f"s_lshr_b32 s{sB}, s2, 6")
    A(f"s_and_b32 s{sH}, s2, 31")
    A(f"s_bfe_u32 s{sHf}, s2, 0x10005")
    A(f"v_and_b32 v{vC}, 15, v0                            ; c = lane & 15")
    A(f"v_lshrrev_b32 v{vTmp}, 4, v{vLane}                 ; g = lane >> 4")
    A(f"v_lshlrev_b32 v{vTmp2}, 4, v{vC}")
    A(f"v_lshl_add_u32 v{vWQo}, v{vTmp}, 13, v{vTmp2}      ; g*8192 + c*16")
    A(f"s_lshr_b32 s{sJ}, s2, 5")
    A(f"s_mul_i32 s{sWQo}, s3, {160*8192}")
    A(f"s_lshl_b32 s{sTmp}, s{sH}, 8")
    A(f"s_add_u32 s{sWQo}, s{sWQo}, s{sTmp}")
    A(f"s_mul_i32 s{sTmp}, s{sJ}, {5*32768}")
    A(f"s_add_u32 s{sWQo}, s{sWQo}, s{sTmp}")
    if fake:
        A(f"v_lshlrev_b32 v{vWQo}, 4, v{vLane}")
        A(f"s_lshl_b32 s{sWQo}, s{sH}, 2")
        A(f"s_add_u32 s{sWQo}, s{sWQo}, s3")
        A(f"s_lshl_b32 s{sWQo}, s{sWQo}, 3")
        A(f"s_add_u32 s{sWQo}, s{sWQo}, s{sJ}")
        A(f"s_mul_i32 s{sWQo}, s{sWQo}, 5120")
    A(f"s_mov_b32 s{sE+2}, 5242880")
    A(f"s_mov_b32 s{sE+3}, 0x20000")
    A(f"s_mov_b32 s{sEo}, s{sWQo}")
    A(f"s_lshr_b32 s{sM}, s2, 3")
    A(f"s_add_u32 s{sM}, s{sM}, s2")
    A(f"s_and_b32 s{sM}, s{sM}, {swz}")
    A(f"v_lshlrev_b32 v{vE1}, 4, v{vLane}")
    def voff(j):
        A(f"s_add_u32 s{sTmp}, s{sM}, {j}")
        A(f"s_and_b32 s{sTmp}, s{sTmp}, 7")
        A(f"v_lshl_add_u32 v{vOff+j}, s{sTmp}, 10, v{vE1}")
    voff(0)
    A(f"s_lshr_b32 s{sTmp}, s{sM}, 3")
    A(f"s_xor_b32 s{sTmp}, s{sTmp}, s3")
    A(f"s_lshl_b32 s{sTmp}, s{sTmp}, 13")
    A(f"s_lshl_b32 s{sBase}, s{sB}, 6")
    A(f"s_lshl_b32 s{sTmp2}, s{sH}, 1")
    A(f"s_add_u32 s{sBase}, s{sBase}, s{sTmp2}")
    A(f"s_add_u32 s{sBase}, s{sBase}, s{sHf}")
    A(f"s_mul_i32 s{sC0}, s{sBase}, {ROW}")
    A(f"s_lshl_b32 s{sBase}, s{sBase}, 19")
    A(f"s_add_u32 s{sBase}, s{sBase}, s{sTmp}")
    A(f"s_mov_b32 s{sO0}, s{sBase}")
    A(f"s_mov_b32 s{sS+2}, {128 << 20}")
    A(f"s_mov_b32 s{sS+3}, 0x20000")
    A("s_waitcnt lgkmcnt(0)")
    stamp("karg")
    setbase(sE, pWQ[0])
    setbase(sS, pK[0])
    def slot(T, n): return (vRing2 if T == 0 else vRing) + 4 * n
    def kvload(T, n):
        st.kv.append(st.issued); r = slot(T, n)
        op(("kv", T, n), f"buffer_load_dwordx4 v[{r}:{r+3}], v{vOff + n % 8}, s[{sS}:{sS+3}], s{sO0 if n < 8 else sO1} offen {kvf}")
    def step(i, wrap, k):
        A(f"s_cmp_eq_u32 s{sJ}, {8 - (i + 1) // 5}")
        A(f"s_cselect_b32 s{sR}, {hex(wrap & 0xffffffff)}, s{k}")
        A(f"s_add_u32 s{sEo}, s{sEo}, s{sR}")
    def wqload(br, t):
        op(("wq", br, t), f"buffer_load_dwordx4 a[{4*t}:{4*t+3}], v{vWQo}, s[{sE}:{sE+3}], s{sEo} offen {wf}")
        if t < 39:
            stp = 1024 if fake else 0x8000
            if t % 5 == 4: step(t, -39 * stp, sK8)
            else: A(f"s_add_u32 s{sEo}, s{sEo}, {stp}")
    def woload(br, i):
        if i == 0:
            setbase(sE, pWO[br]); A(f"s_mov_b32 s{sEo}, s{sWOo}")
        a = 4 * i if not smf else ((i // 5 & 3) * 5 + i % 5) * 8 + 4 * (i // 20)
        op(("wo", br, i), f"buffer_load_dwordx4 a[{a}:{a+3}], v{vWOo}, s[{sE}:{sE+3}], s{sEo} offen offset:{(i%5)*256} {wf}")
        if i % 5 == 4 and i < 39: step(i, -7 * 5120, sK5)
    def xload(br):
        srd(sOUT, pX[br], 5120)
        for i in range(3):
            op(("x", br, i), f"buffer_load_ushort v{vX+3*br+i}, v{vXo3[i]}, s[{sOUT}:{sOUT+3}], 0 offen")
    def xA():
        A(f"v_mul_u32_u24 v{vWOo}, 1280, v{vTmp}")
        A(f"v_add_u32 v{vWOo}, v{vWOo}, v{vTmp2}               ; g*1280 + c*16")
        A(f"s_mul_i32 s{sTmp}, s3, 320")
        A(f"s_mul_i32 s{sTmp2}, s{sB}, 1280")
        A(f"s_add_u32 s{sTmp}, s{sTmp}, s{sTmp2}")
        A(f"v_lshl_add_u32 v{vTmp2}, v{vTmp}, 1, s{sTmp}")
        A(f"s_mul_i32 s{sTmp}, s{sJ}, 5")
        for i in range(3):
            A(f"v_add_u32 v{vXo3[i]}, s{sTmp}, v{vC}")
            if i < 2: A(f"s_add_u32 s{sTmp}, s{sTmp}, 16")
        for i in range(3): A(f"v_subrev_u32 v{vTA+i}, 40, v{vXo3[i]}")
        for i in range(3): A(f"v_min_u32 v{vXo3[i]}, v{vXo3[i]}, v{vTA+i}")
        for i in range(3): A(f"v_lshl_add_u32 v{vXo3[i]}, v{vXo3[i]}, 3, v{vTmp2}")
        xload(0)
    def nexttask():
        A(f"s_add_u32 s{sO0}, s{sO0}, 0x8000")
        A(f"s_add_u32 s{sO1}, s{sO1}, 0x8000")
    km = [0]
    def knext():
        m = km[0]; km[0] += 1
        if m == 16: nexttask()
        kvload(m >> 4, m & 15)
        if m + 1 < 8: voff(m + 1)
    def wq0(t):
        wqload(0, t)
        if t == 0:
            A(f"s_mov_b32 s{sK8}, {1024 if fake else 0x8000}")
            A(f"s_movk_i32 s{sK5}, 5120")
            A(f"s_add_u32 s{sO1}, s{sBase}, 0x40000")
        if t == 4: xA()
    plist = []; widx = {}
    if pro == 2:
        nk = 0
        for t in range(40):
            widx[t] = len(plist); plist.append(lambda t=t: wq0(t))
            while t + 1 >= k0 and nk * kper <= t + 1 - k0:
                plist.append(knext); nk += 1
        pi = [0]
        def pissue(upto):
            while pi[0] < min(upto, len(plist)):
                plist[pi[0]](); pi[0] += 1
        pissue(lead)
    else:
        nkv = 0
        for t in range(40):
            wqload(0, t)
            if t == 0:
                A(f"s_mov_b32 s{sK8}, {1024 if fake else 0x8000}")
                A(f"s_movk_i32 s{sK5}, 5120")
                A(f"s_add_u32 s{sO1}, s{sBase}, 0x40000")
            while nkv < 16 and (nkv + 1) * kper <= t + 1:
                kvload(0, nkv); nkv += 1
                if nkv < 8: voff(nkv)
            if t == 4: xA()
        assert nkv >= 8
        for n in range(nkv, 16): kvload(0, n)
        nexttask()
        for n in range(4): kvload(1, n)
    stamp("issue")
    srd(sWS, 28, FLAGS + 256 * 128)
    for m, v in ((sM1, 0x22222222), (sM2, 0x44444444), (sM3, 0x88888888)):
        A(f"s_mov_b32 s{m}, {hex(v)}"); A(f"s_mov_b32 s{m+1}, {hex(v)}")
    A(f"s_lshl_b32 s{sWOo}, s{sH}, 2")
    A(f"s_add_u32 s{sWOo}, s{sWOo}, s3")
    A(f"s_lshl_b32 s{sWOo}, s{sWOo}, 3")
    A(f"s_add_u32 s{sWOo}, s{sWOo}, s{sJ}")
    A(f"s_mul_i32 s{sWOo}, s{sWOo}, {4*1280}               ; (h*128 + 32w + 4j)*1280")
    A(f"v_mov_b32 v{vTmp2}, 0x7fffffff")
    A(f"v_cmp_gt_u32 vcc, 160, v0")
    A(f"v_lshlrev_b32 v{vPub}, 4, v0")
    A(f"v_add_u32 v{vPub}, s{sC0}, v{vPub}")
    A(f"v_cndmask_b32 v{vPub}, v{vTmp2}, v{vPub}, vcc")
    A(f"s_lshl_b32 s{sTmp}, s{sHf}, 2")
    A(f"s_add_u32 s{sTmp}, s{sTmp}, s{sB}")
    A(f"s_lshl_b32 s{sTmp}, s{sTmp}, 2")
    A(f"s_add_u32 s{sTmp}, s{sTmp}, s3")
    A(f"s_mul_i32 s{sC0}, s{sTmp}, {16*ROW}")
    A(f"s_lshl_b32 s{sTmp}, s{sH}, 7")
    A(f"s_add_u32 s{sC0}, s{sC0}, s{sTmp}")
    A(f"s_cmp_lt_u32 s{sH}, 20")
    A(f"s_cselect_b32 s{sC0}, s{sC0}, 0x40000000")
    A(f"s_add_u32 s{sC1}, s{sC0}, {8*ROW}")
    A(f"v_lshrrev_b32 v{vCon}, 3, v{vLane}")
    A(f"v_mul_u32_u24 v{vCon}, {ROW}, v{vCon}")
    A(f"v_and_b32 v{vTmp}, 7, v{vLane}")
    A(f"v_lshl_add_u32 v{vCon}, v{vTmp}, 4, v{vCon}        ; lane = (row 16w + lane/8 (+8), piece lane%8)")
    A(f"s_mul_i32 s{sTmp}, s{sB}, 2560")
    A(f"s_mul_i32 s{sTmp2}, s{sHf}, 1280")
    A(f"s_add_u32 s{sTmp}, s{sTmp}, s{sTmp2}")
    A(f"s_lshl_b32 s{sTmp2}, s{sH}, 6")
    A(f"s_add_u32 s{sTmp}, s{sTmp}, s{sTmp2}")
    A(f"s_lshl_b32 s{sTmp2}, s3, 4")
    A(f"s_add_u32 s{sTmp}, s{sTmp}, s{sTmp2}")
    A(f"v_lshrrev_b32 v{vOutO}, 4, v{vLane}")
    A(f"v_lshl_add_u32 v{vOutO}, v{vOutO}, 3, s{sTmp}")
    A(f"v_and_b32 v{vTmp}, 1, v{vC}")
    A(f"v_lshlrev_b32 v{vTmp}, 4, v{vTmp}")
    A(f"v_mov_b32 v{vTmp2}, 0xffff")
    A(f"v_lshlrev_b32 v{vTmp2}, v{vTmp}, v{vTmp2}")
    A(f"v_lshrrev_b32 v{vTmp}, 1, v{vC}")
    for k in range(4):
        A(f"v_cmp_eq_u32 vcc, {k}, v{vTmp}")
        A(f"v_cndmask_b32 v{vMk+k}, 0, v{vTmp2}, vcc")
    A(f"v_lshrrev_b32 v{vTmp}, 4, v{vLane}")
    A(f"v_lshlrev_b32 v{vLdsA}, 5, v{vC}")
    A(f"v_lshl_add_u32 v{vLdsA}, v{vTmp}, 4, v{vLdsA}")
    A(f"v_and_b32 v{vTmp2}, 3, v{vC}")
    A(f"v_lshlrev_b32 v{vLdsS}, 3, v{vTmp2}")
    A(f"v_mul_u32_u24 v{vTmp2}, 576, v{vTmp2}")
    if not smf:
        A(f"v_lshl_add_u32 v{vTmp2}, v{vTmp}, 2, v{vTmp2}")
        A(f"s_lshl_b32 s{sTmp}, s3, 7")
        A(f"v_add_u32 v{vTmp2}, s{sTmp}, v{vTmp2}")
        A(f"v_lshrrev_b32 v{vTmp}, 2, v{vC}")
        A(f"v_add_u32 v{vTmp}, s{sJ}, v{vTmp}")
        A(f"v_and_b32 v{vTmp}, 7, v{vTmp}")
        A(f"v_lshl_add_u32 v{vLdsO}, v{vTmp}, 4, v{vTmp2}")
        A(f"v_xor_b32 v{vTmp}, 4, v{vTmp}")
        A(f"v_lshl_add_u32 v{vE2}, v{vTmp}, 4, v{vTmp2}")
    else:
        A(f"v_and_b32 v{vE2}, 1, v{vTmp}")
        A(f"v_lshl_add_u32 v{vTmp2}, v{vE2}, 3, v{vTmp2}")
        A(f"s_lshl_b32 s{sTmp}, s3, 7")
        A(f"v_add_u32 v{vTmp2}, s{sTmp}, v{vTmp2}              ; (c&3)*576 + (32w + 2(g&1))*4")
        A(f"v_lshlrev_b32 v{vTmp}, 1, v{vTmp}")
        A(f"v_and_b32 v{vTmp}, 4, v{vTmp}")
        A(f"v_lshrrev_b32 v{vE2}, 2, v{vC}")
        A(f"v_add3_u32 v{vTmp}, v{vTmp}, v{vE2}, s{sJ}")
        A(f"v_and_b32 v{vTmp}, 7, v{vTmp}")
        A(f"v_lshl_add_u32 v{vLdsO}, v{vTmp}, 4, v{vTmp2}")
    A(f"v_mov_b32 v{vZero}, 0")
    A(f"s_mov_b32 s{sKk}, 0")
    A(f"s_mov_b32 s{sOne}, 1")
    A(f"s_lshl_b32 s{sTmp}, s2, 7")
    A(f"s_add_u32 s{sTmp}, s{sTmp}, {FLAGS}")
    A(f"s_add_u32 s{sFl}, s28, s{sTmp}")
    A(f"s_addc_u32 s{sFl+1}, s29, 0")
    A(f"s_xor_b32 s{sPo}, s2, 32")
    A(f"s_lshl_b32 s{sPo}, s{sPo}, 7")
    A(f"s_add_u32 s{sPo}, s{sPo}, {FLAGS}")

    def ands(dst, src, lane):
        for k in range(4):
            A(f"v_and_b32_dpp v{dst+k}, v{src}, v{vMk+k} row_newbcast:{lane} {DPPF}")
    def bar():
        A("s_waitcnt lgkmcnt(0)"); A("s_barrier")
    def ldsw(scale, off, reg):
        A(f"s_mul_i32 s{sTmp}, s3, {scale}")
        A(f"v_add_u32 v{vE1}, s{sTmp}, v{vLdsA}")
        A("s_mov_b32 exec_hi, 0")
        for o, r in zip(off, reg):
            A(f"ds_write_b128 v{vE1}, v[{r}:{r+3}] offset:{o}")
        A("s_mov_b32 exec_hi, -1")
    def wsld(key, n, dst, v, so, extra=""):
        w = {1: "dword", 2: "dwordx2", 4: "dwordx4"}[n]
        d = f"v{dst}" if n == 1 else f"v[{dst}:{dst+n-1}]"
        op(key, f"buffer_load_{w} {d}, v{v}, s[{sWS}:{sWS+3}], {so} offen {extra}sc1")
    def xB():
        xload(1)
        srd(sOUT, 24, 10240)
        setbase(sE, pWQ[1])
        A(f"s_mov_b32 s{sEo}, s{sWQo}")
    late = [(lambda n=n: kvload(1, n)) for n in range(4, 16)] + [xB,
            lambda: wsld(("old", 0), 4, vOldP[0], vPub, "0"),
            lambda: (A(f"s_mov_b32 s{sTmp}, {4*64*ROW}"), wsld(("old", 1), 4, vOldP[1], vPub, f"s{sTmp}")),
            lambda: wsld(("old", 2), 4, vOldC, vCon, f"s{sC0}"),
            lambda: wsld(("old", 3), 4, vOldC + 4, vCon, f"s{sC1}")]
    def q_chunks(br, per):
        xs = vX + 3 * br
        def head():
            need(("x", br, 2))
            for i in range(3):
                A(f"v_lshl_or_b32 v{xs+i}, v{xs+i}, 16, v{xs+i}")
            ands(vA0, xs, 0)
        def mm(t0, t1):
            def f():
                for t in range(t0, t1):
                    cur = vA0 if t % 2 == 0 else vA1; nxt = vA1 if t % 2 == 0 else vA0
                    if t < 39: ands(nxt, xs + (t + 1) // 16, (t + 1) % 16)
                    need(("wq", br, t))
                    c = "0" if t == 0 else f"v[{vAq}:{vAq+3}]"
                    A(f"v_mfma_f32_16x16x32_bf16 v[{vAq}:{vAq+3}], v[{cur}:{cur+3}], a[{4*t}:{4*t+3}], {c}")
                    if br == 0 and pro == 2:
                        if pi[0] < len(plist): pissue(widx[min(t + 1, 39)] + lead)
                        elif t % int(kper + 0.5) == 0: thr(W + 1); knext()
                    elif br == 0 and late: late.pop(0)()
            return f
        return [head] + [mm(t, min(40, t + per)) for t in range(0, 40, per)] + [lambda: ldsw(512, [QP if br == 0 else OUTP], [vAq])]
    def q_finish(br):
        dst = (vQA, vQB)[br]; base = (QP, OUTP)[br]
        A(f"v_lshlrev_b32 v{vE1}, 5, v{vC}")
        for w in range(4):
            for hf in range(2):
                r = vSc + 8 * w + 4 * hf
                A(f"ds_read_b128 v[{r}:{r+3}], v{vE1} offset:{base + 512*w + 16*hf}")
        for w in range(1, 4):
            A(f"s_waitcnt lgkmcnt({6-2*w})" if (br == 0 and not diag) else "s_waitcnt lgkmcnt(0)")
            for e in range(8):
                A(f"v_add_f32 v{vSc+e}, v{vSc+e}, v{vSc+8*w+e}")
        for k in range(4):
            A(f"v_cvt_pk_bf16_f32 v{dst+k}, v{vSc+2*k}, v{vSc+2*k+1}")
    if pro == 2: late0 = late[12:]; late = []
    for f in q_chunks(0, 40): f()
    assert not late
    if pro == 2:
        for _ in range(prb): knext()
        assert 16 <= km[0] <= 32, km
    stamp("qm")
    bar()
    q_finish(0)
    stamp("q")

    def linesetup():
        A(f"v_mul_u32_u24 v{vFo}, 9, v{vLane}")
        A(f"v_add_u32 v{vFo}, s2, v{vFo}")
        A(f"v_and_b32 v{vFo}, 255, v{vFo}")
        A(f"v_lshlrev_b32 v{vFo}, 7, v{vFo}")
        A(f"v_mov_b32 v{vTmp2}, 0x7fffffff")
        A(f"v_cmp_gt_u32 vcc, {npeer}, v0")
        A(f"v_mov_b32 v{vTmp}, {KK}")
        A(f"v_cndmask_b32 v{vFo}, v{vTmp2}, v{vFo}, vcc")
        A(f"ds_write_b32 v{vTmp}, v{vZero}")
        if smf:
            A(f"v_lshrrev_b32 v{vTmp}, 2, v{vC}")
            A(f"v_mov_b32 v{vTmp2}, 0xffff")
            for k in range(2):
                A(f"v_cmp_eq_u32 vcc, {k}, v{vTmp}")
                A(f"v_cndmask_b32 v{vSm+k}, 0, v{vTmp2}, vcc")
            A(f"v_and_b32 v{vTmp}, 3, v{vC}")
            A(f"v_mul_u32_u24 v{vSm+2}, 0x1111, v{vTmp}")
        if cps:
            A(f"s_mov_b32 s{sTmp}, {FLAGS}")
            wsld(("fold",), 4, vFold, vFo, f"s{sTmp}")
        wsld(("olds",), 4, vOldS, vZero, f"s{sPo}", "offset:16 ")
        A(f"s_xor_b32 s{sTmp}, s{sPo}, {32 << 7}" if (FLAGS & (32 << 7)) == 0 else "bad")
        wsld(("owns",), 4, vOwnS, vZero, f"s{sTmp}", "offset:16 ")
    def notold():
        need(("old", 1)); need(("owns",))
        for br in range(2):
            for e in range(4): A(f"v_not_b32 v{vOldP[br]+e}, v{vOldP[br]+e}")
        for e in range(4): A(f"v_and_b32 v{vOwnS+e}, 1, v{vOwnS+e}")
        A(f"v_lshl_or_b32 v{vOwnS}, v{vOwnS+1}, 1, v{vOwnS}")
        A(f"v_lshl_or_b32 v{vOwnS+2}, v{vOwnS+3}, 1, v{vOwnS+2}")
        A(f"v_lshl_or_b32 v{vOwnS}, v{vOwnS+2}, 2, v{vOwnS}")
        A(f"v_not_b32 v{vOwnS}, v{vOwnS}")
        A(f"v_readfirstlane_b32 s{sTg}, v{vOwnS}")

    def softmax_chunks(br):
        S = [vSs + t for t in range(8)]
        Mx, Lx = vStat[br], vStat[br] + 1
        def each(*ops):
            for o in ops:
                for s in S: A(o.format(s=s))
        def c_r1(): each("v_cvt_pk_bf16_f32 v{s}, v{s}, v{s}", "v_and_b32 v{s}, 0xffff0000, v{s}", "v_mul_f32 v{s}, " + hex(f2u(128 ** -0.5)) + ", v{s}")
        def c_max():
            each("v_cvt_pk_bf16_f32 v{s}, v{s}, v{s}", "v_and_b32 v{s}, 0xffff0000, v{s}")
            A(f"v_max3_f32 v{vT}, v{S[0]}, v{S[1]}, v{S[2]}")
            A(f"v_max3_f32 v{vF}, v{S[3]}, v{S[4]}, v{S[5]}")
            A(f"v_max3_f32 v{vT}, v{vT}, v{S[6]}, v{S[7]}")
            A(f"v_max_f32 v{vT}, v{vT}, v{vF}")
            for ctl in RED64: A(f"v_max_f32_dpp v{vT}, v{vT}, v{vT} {ctl}")
            A(f"v_readlane_b32 s{sM}, v{vT}, 63")
        def c_exp(): each("v_subrev_f32 v{s}, s" + str(sM) + ", v{s}", "v_mul_f32 v{s}, " + hex(f2u(LOG2E)) + ", v{s}", "v_exp_f32 v{s}, v{s}")
        def c_sum():
            A(f"v_mov_b32 v{vM}, s{sM}")
            A(f"v_add_f32 v{vL}, v{S[0]}, v{S[1]}")
            A(f"v_add_f32 v{vT}, v{S[2]}, v{S[3]}")
            A(f"v_add_f32 v{vF}, v{S[4]}, v{S[5]}")
            A(f"v_add_f32 v{vE1}, v{S[6]}, v{S[7]}")
            A(f"v_add_f32 v{vL}, v{vL}, v{vT}")
            A(f"v_add_f32 v{vF}, v{vF}, v{vE1}")
            A(f"v_add_f32 v{vL}, v{vL}, v{vF}")
            for ctl in RED64: A(f"v_add_f32_dpp v{vL}, v{vL}, v{vL} {ctl}")
            A(f"s_lshl_b32 s{sTmp}, s3, 3")
            A(f"v_mov_b32 v{vE1}, s{sTmp}")
            A("s_mov_b32 exec_lo, 0")
            A("s_mov_b32 exec_hi, 0x80000000")
            A(f"ds_write_b64 v{vE1}, v[{vM}:{vM+1}] offset:{ST}")
            A("s_mov_b64 exec, -1")
        def c_norm():
            bar()
            A(f"ds_read_b64 v[{vTA}:{vTA+1}], v{vLdsS} offset:{ST}")
            A("s_waitcnt lgkmcnt(0)")
            A(f"v_max_f32_dpp v{Mx}, v{vTA}, v{vTA} quad_perm:[1,0,3,2] {DPPF}")
            A(f"v_max_f32_dpp v{Mx}, v{Mx}, v{Mx} quad_perm:[2,3,0,1] {DPPF}")
            A(f"v_sub_f32 v{vTA}, v{vTA}, v{Mx}")
            A(f"v_sub_f32 v{vM}, v{vM}, v{Mx}")
            A(f"v_mul_f32 v{vTA}, {hex(f2u(LOG2E))}, v{vTA}")
            A(f"v_mul_f32 v{vM}, {hex(f2u(LOG2E))}, v{vM}")
            A(f"v_exp_f32 v{vTA}, v{vTA}")
            A(f"v_exp_f32 v{vM}, v{vM}")
            A(f"v_mul_f32 v{Lx}, v{vTA+1}, v{vTA}")
            A(f"v_add_f32_dpp v{Lx}, v{Lx}, v{Lx} quad_perm:[1,0,3,2] {DPPF}")
            A(f"v_add_f32_dpp v{Lx}, v{Lx}, v{Lx} quad_perm:[2,3,0,1] {DPPF}")
            A(f"v_rcp_f32 v{vF}, v{Lx}")
            A(f"v_mul_f32 v{vF}, v{vF}, v{vM}")
        def c_pack():
            each("v_mul_f32 v{s}, v{s}, v" + str(vF), "v_cvt_pk_bf16_f32 v{s}, v{s}, v{s}")
            if br == 0: q_finish(1)
            p = sSt[br]
            A(f"v_readfirstlane_b32 s{p}, v{Mx}")
            A(f"v_readfirstlane_b32 s{p+1}, v{Lx}")
            for e in range(2):
                A(f"s_bitcmp1_b32 s{sTg}, {2*br+e}")
                A(f"s_cselect_b32 s{sTmp}, 1, 0")
                A(f"s_and_b32 s{p+e}, s{p+e}, -2")
                A(f"s_or_b32 s{p+e}, s{p+e}, s{sTmp}")
            L = newlbl()
            A("s_cmp_lg_u32 s3, 0")
            A(f"s_cbranch_scc1 {L}")
            A(f"s_atomic_swap_x2 s[{p}:{p+1}], s[{sFl}:{sFl+1}], {hex(16 + 8*br)}")
            A(f"{L}:")
        return [c_r1, c_max, c_exp, c_sum, c_norm, c_pack]
    def partner(br):
        def ld(): wsld(("pst", br), 2, vPst, vZero, f"s{sPo}", f"offset:{16 + 8*br} ")
        def ev():
            need(("pst", br))
            L0, L1 = f"L_ps{br}", f"L_pd{br}"
            A(f"s_mov_b32 s{sSpin}, 0")
            A(f"{L0}:")
            A(f"v_xor_b32 v{vT}, v{vPst}, v{vOldS+2*br}")
            A(f"v_xor_b32 v{vF}, v{vPst+1}, v{vOldS+2*br+1}")
            A(f"v_and_b32 v{vT}, v{vT}, v{vF}")
            A(f"v_readfirstlane_b32 s{sTmp}, v{vT}")
            A(f"s_bitcmp1_b32 s{sTmp}, 0")
            A(f"s_cbranch_scc1 {L1}")
            A(f"s_add_u32 s{sSpin}, s{sSpin}, 1")
            A(f"s_cmp_ge_u32 s{sSpin}, 0x40000")
            A(f"s_cbranch_scc1 {L1}")
            A(f"buffer_load_dwordx2 v[{vPst}:{vPst+1}], v{vZero}, s[{sWS}:{sWS+3}], s{sPo} offen offset:{16 + 8*br} sc1")
            A("s_waitcnt vmcnt(0)")
            A(f"s_branch {L0}")
            A(f"{L1}:")
            Mx, Lx = vStat[br], vStat[br] + 1
            A(f"v_and_b32 v{vPst}, -2, v{vPst}")
            A(f"v_and_b32 v{vPst+1}, -2, v{vPst+1}")
            A(f"v_max_f32 v{vT}, v{Mx}, v{vPst}")
            A(f"v_sub_f32 v{vF}, v{Mx}, v{vT}")
            A(f"v_sub_f32 v{vT}, v{vPst}, v{vT}")
            A(f"v_mul_f32 v{vF}, {hex(f2u(LOG2E))}, v{vF}")
            A(f"v_mul_f32 v{vT}, {hex(f2u(LOG2E))}, v{vT}")
            A(f"v_exp_f32 v{vF}, v{vF}")
            A(f"v_exp_f32 v{vT}, v{vT}")
            A(f"v_mul_f32 v{vF}, v{vF}, v{Lx}")
            A(f"v_fma_f32 v{vT}, v{vT}, v{vPst+1}, v{vF}")
            A(f"v_rcp_f32 v{vT}, v{vT}")
            A(f"v_mul_f32 v{vFac+br}, v{vF}, v{vT}")
        return ld, ev
    def proj_chunks(br, res):
        def c_w(): ldsw(576, [OP], [vAcc])
        def c_r():
            bar()
            A(f"ds_read_b32 v{vU}, v{vLdsO} offset:{OP}")
            A(f"ds_read_b32 v{vU+1}, v{vE2} offset:{OP}")
            if br == 1: stamp('bar')
            A("s_waitcnt lgkmcnt(0)")
            for q in ("quad_perm:[1,0,3,2]", "quad_perm:[2,3,0,1]"):
                for r in (vU, vU + 1):
                    A(f"v_add_f32_dpp v{r}, v{r}, v{r} {q} {DPPF}")
            for r in (vU, vU + 1): A(f"v_mul_f32 v{r}, v{r}, v{vFac+br}")
            A(f"v_cvt_pk_bf16_f32 v{vU}, v{vU}, v{vU}")
            A(f"v_cvt_pk_bf16_f32 v{vU+1}, v{vU+1}, v{vU+1}")
            need(("wo", br, 39))
            ands(vA0, vU, 0)
        def mf(cb, tq, a):
            i = tq * 5 + cb
            c = "0" if tq == 0 else f"v[{vO+4*cb}:{vO+4*cb+3}]"
            A(f"v_mfma_f32_16x16x32_bf16 v[{vO+4*cb}:{vO+4*cb+3}], v[{a}:{a+3}], a[{4*i}:{4*i+3}], {c}")
        def mm(tq):
            def f():
                cur = vA0 if tq % 2 == 0 else vA1; nxt = vA1 if tq % 2 == 0 else vA0
                for cb in range(5):
                    mf(cb, tq, cur)
                    if cb == 0 and tq < 7: ands(nxt, vU + ((tq + 1) >> 2), 4 * ((tq + 1) & 3))
            return f
        def c_w2(): ldsw(2560, [OUTP + 512 * cb for cb in range(5)], [vO + 4 * cb for cb in range(5)])
        def mmcb():
            Aq = [vA0] + [vRing + 4 * q for q in range(1, 8)]
            def wr(cb):
                A("s_mov_b32 exec_hi, 0")
                A(f"ds_write_b128 v{vE1}, v[{vO+4*cb}:{vO+4*cb+3}] offset:{OUTP + 512*cb}")
                A("s_mov_b32 exec_hi, -1")
            for tq in range(8):
                mf(0, tq, Aq[tq])
                if tq < 7: ands(Aq[tq + 1], vU + ((tq + 1) >> 2), 4 * ((tq + 1) & 3))
                mf(1, tq, Aq[tq])
            A(f"s_mul_i32 s{sTmp}, s3, 2560")
            A(f"v_add_u32 v{vE1}, s{sTmp}, v{vLdsA}")
            for cb in (2, 3, 4):
                for tq in range(8): mf(cb, tq, Aq[tq])
                if cb == 2: wr(0)
                wr(cb - 1)
            wr(4)
        def c_sum():
            A(f"v_lshlrev_b32 v{vE1}, 4, v0")
            bar()
            for w in range(4):
                A(f"ds_read_b128 v[{vSc+4*w}:{vSc+4*w+3}], v{vE1} offset:{OUTP+2560*w}")
            for w in range(1, 4):
                A(f"s_waitcnt lgkmcnt({3-w})" if (br == 1 and not diag) else "s_waitcnt lgkmcnt(0)")
                for e in range(4):
                    A(f"v_add_f32 v{vSc+e}, v{vSc+e}, v{vSc+4*w+e}")
            for e in range(4):
                A(f"v_bfi_b32 v{res+e}, 1, v{vOldP[br]+e}, v{vSc+e}")
        def s_w():
            c_w()
            if br == 0:
                for k in range(20): A(f"v_mov_b32 v{vO+k}, 0")
        def sands(dst, u):
            for k in range(4):
                A(f"v_and_b32_dpp v{dst+k}, v{vU + (k >> 1)}, v{vSm + (k & 1)} row_newbcast:{4*u} {DPPF}")
        def s_r():
            bar()
            A(f"ds_read_b64 v[{vU}:{vU+1}], v{vLdsO} offset:{OP}")
            if br == 1: stamp('bar')
            A("s_waitcnt lgkmcnt(0)")
            for q in ("quad_perm:[1,0,3,2]", "quad_perm:[2,3,0,1]"):
                for r in (vU, vU + 1):
                    A(f"v_add_f32_dpp v{r}, v{r}, v{r} {q} {DPPF}")
            for r in (vU, vU + 1): A(f"v_mul_f32 v{r}, v{r}, v{vFac+br}")
            for r in (vU, vU + 1): A(f"v_cvt_pk_bf16_f32 v{r}, v{r}, v{r}")
            need(("wo", br, 39))
            sands(vA0, 0)
        def sf(cb, u, a):
            i = (u * 5 + cb) * 8
            A(f"v_smfmac_f32_16x16x64_bf16 v[{vO+4*cb}:{vO+4*cb+3}], v[{a}:{a+3}], a[{i}:{i+7}], v{vSm+2}")
        def sm(u):
            def f():
                cur = vA0 if u % 2 == 0 else vA1; nxt = vA1 if u % 2 == 0 else vA0
                for cb in range(5):
                    sf(cb, u, cur)
                    if cb == 0 and u < 3: sands(nxt, u + 1)
            return f
        def smcb():
            Aq = [vA0] + [vRing + 4 * q for q in range(1, 4)]
            def wr(cb):
                A("s_mov_b32 exec_hi, 0")
                A(f"ds_write_b128 v{vE1}, v[{vO+4*cb}:{vO+4*cb+3}] offset:{OUTP + 512*cb}")
                A("s_mov_b32 exec_hi, -1")
            for u in range(4):
                sf(0, u, Aq[u])
                if u < 3: sands(Aq[u + 1], u + 1)
                sf(1, u, Aq[u])
            A(f"s_mul_i32 s{sTmp}, s3, 2560")
            A(f"v_add_u32 v{vE1}, s{sTmp}, v{vLdsA}")
            for cb in (2, 3, 4):
                for u in range(4): sf(cb, u, Aq[u])
                if cb == 3: wr(0); wr(1)
                if cb == 4: wr(2); wr(3)
            wr(4)
        if smf and br == 1: return [s_w, s_r, smcb, c_sum]
        if smf: return [s_w, s_r] + [sm(u) for u in range(4)] + [c_w2, c_sum]
        if br == 1: return [c_w, c_r, mmcb, c_sum]
        return [c_w, c_r] + [mm(q) for q in range(8)] + [c_w2, c_sum]
    def poll(key):
        wsld((key, 0), 4, vD, vCon, f"s{sC0}")
        wsld((key, 1), 4, vD + 4, vCon, f"s{sC1}")

    def pretail():
        if smf:
            for k in range(20): A(f"v_mov_b32 v{vO+k}, 0")
        A(f"s_mov_b32 s{sTmp2}, {4*64*ROW}")
        A(f"s_mov_b32 s{sSpin}, 0")
        A(f"v_lshrrev_b32 v{vTmp}, 4, v0")
        A(f"v_mul_u32_u24 v{vTmp}, 144, v{vTmp}")
        A(f"v_and_b32 v{vTmp2}, 7, v0")
        A(f"v_lshl_add_u32 v{vTmp}, v{vTmp2}, 4, v{vTmp}")
        A(f"v_lshrrev_b32 v{vTmp2}, 4, v{vLane}")
        A(f"v_lshl_add_u32 v{vTmp2}, s3, 1, v{vTmp2}")
        A(f"v_lshlrev_b32 v{vTmp2}, 4, v{vTmp2}")
        A(f"v_mul_u32_u24 v{vT}, 144, v{vC}")
        A(f"v_add_u32 v{vTmp2}, v{vTmp2}, v{vT}")

    extras = {T: [] for T in range(32)}
    fills = {T: [] for T in range(32)}
    def spread(rng, fn):
        Ts = list(range(rng[0], rng[1])); n = len(Ts)
        for a, T in enumerate(Ts):
            extras[T] += [(lambda i=i: fn(i)) for i in range(40 * a // n, 40 * (a + 1) // n)]
    spread(wqB, lambda i: wqload(1, i))
    spread(woA, lambda i: woload(0, i))
    spread(woB, lambda i: woload(1, i))
    if pro == 2: extras[0] = late0
    fills[qB] = q_chunks(1, 3)
    pa = proj_chunks(0, vRes)
    fills[epA] = pa[:len(pa) // 2]
    fills[epA + 1] = pa[len(pa) // 2:]
    fills[3].append(notold)
    assert wqB[1] <= qB < 7 and woA[0] > qB and woA[1] <= epA and woB[0] > epA + 1 and 7 < stT[0] < 15 and 23 < stT[1] < 30
    dyn0 = (min(cps) + 1) if cps else 99
    stT = list(stT)

    def body(T):
        ph, t = T >> 3, T & 7
        br = ph >> 1; isK = (ph & 1) == 0
        issue = 0 < T < 31
        ex = list(extras[T]); nx = len(ex)
        fl = list(fills[T]); nf = len(fl); post = {}
        if issue:
            if t == 7:
                setbase(sS, (pV[br] if isK else pK[1]))
                A(f"s_mov_b32 s{sO0}, s{sBase}")
                A(f"s_add_u32 s{sO1}, s{sBase}, 0x40000")
            else:
                nexttask()
        if T == 1: linesetup()
        if T in stT:
            ld, ev = partner(stT.index(T)); ld(); post[12] = ev
        if T in cps:
            ci = list(cps).index(T)
            L = newlbl()
            A("s_cmp_lg_u32 s3, 0")
            A(f"s_cbranch_scc1 {L}")
            A(f"s_atomic_xor s{sOne}, s[{sFl}:{sFl+1}], {hex(4*ci)}")
            A(f"{L}:")
            A(f"s_mov_b32 s{sTmp2}, {FLAGS + 4*ci}")
            wsld(("fcur", ci), 1, vFcur, vFo, f"s{sTmp2}")
            def evalf():
                need(("fcur", ci))
                A(f"v_xor_b32 v{vFcur}, v{vFcur}, v{vFold+ci}")
                A(f"v_and_b32 v{vFcur}, 1, v{vFcur}")
                A(f"v_cmp_eq_u32 vcc, 1, v{vFcur}")
                A(f"s_and_b32 s{sTmp}, vcc_lo, -2")
                A(f"s_bcnt1_i32_b32 s{sTmp}, s{sTmp}")
                A(f"s_lshl_b32 s{sTmp}, s{sTmp}, 1")
                A(f"s_sub_i32 s{sTmp}, s{sTmp}, {int(2*mid)}")
                A(f"s_cmp_gt_i32 s{sTmp}, 0")
                A(f"s_cselect_b32 s{sTmp2}, {int(round(gp*32))}, {int(round(gn*32))}")
                A(f"s_mul_i32 s{sTmp}, s{sTmp}, s{sTmp2}")
                A(f"s_add_i32 s{sTmp}, s{sTmp}, 32")
                A(f"s_ashr_i32 s{sTmp}, s{sTmp}, 6")
                A(f"v_mov_b32 v{vKk}, s{sTmp}")
                A(f"v_mov_b32 v{vFcur}, {KK}")
                L2 = newlbl()
                A("s_cmp_lg_u32 s3, 0")
                A(f"s_cbranch_scc1 {L2}")
                A(f"ds_write_b32 v{vFcur}, v{vKk}")
                A(f"{L2}:")
            assert 9 not in post
            post[9] = evalf
        if T - 1 in cps:
            A(f"v_mov_b32 v{vFcur}, {KK}")
            A(f"ds_read_b32 v{vKk}, v{vFcur}")
            A("s_waitcnt lgkmcnt(0)")
            A(f"v_readfirstlane_b32 s{sKk}, v{vKk}")
        km0 = km[0]
        last = Wlast and T >= 31 - nlast
        dyn = T >= dyn0 and issue and not last
        if dyn:
            A(f"s_max_i32 s{sW}, s{sKk}, -1")
            A(f"s_min_i32 s{sW}, s{sW}, 1")
            A(f"s_sub_i32 s{sKk}, s{sKk}, s{sW}")
        def iss(n):
            if T == 0 and pro == 2 and (km[0] < 32) and (n >= 16 - (32 - km0) or True):
                thr(W); knext()
            if issue:
                w = W + (1 if (xw and (nx or xall) and n % xw == xw - 1) else 0)
                if dyn: thrdyn(w)
                else: thr(Wlast if last else w)
                kvload(T + 1, n)
            for _ in range((n + 1) * nx // 16 - n * nx // 16): ex.pop(0)()
            for _ in range((n + 1) * nf // 16 - n * nf // 16): fl.pop(0)()
            if n in post: post[n]()
        if T == 31: pretail()
        if T == pubT:
            op(("pub", 0), f"buffer_store_dwordx4 v[{vRes}:{vRes+3}], v{vPub}, s[{sWS}:{sWS+3}], 0 offen {pubf}")
        if isK:
            vQ = vQA if br == 0 else vQB
            def dots(tr, base):
                need(("kv", T, base + 3))
                for k in range(4):
                    for j in range(4):
                        c = "0" if k == 0 else f"v{tr+j}"
                        A(f"v_dot2_f32_bf16 v{tr+j}, v{slot(T, base+j)+k}, v{vQ+k}, {c}")
            def red():
                for (d, s, ctl, bm) in ((0, 0, "row_ror:8", 3), (1, 1, "row_ror:8", 3), (0, 2, "row_ror:8", 12), (1, 3, "row_ror:8", 12),
                                        (0, 0, "row_half_mirror", 5), (0, 1, "row_half_mirror", 10),
                                        (0, 0, "quad_perm:[1,0,3,2]", 15), (0, 0, "quad_perm:[2,3,0,1]", 15)):
                    for tr in (vTA, vTB):
                        A(f"v_add_f32_dpp v{tr+d}, v{tr+s}, v{tr+s} {ctl} row_mask:0xf bank_mask:{hex(bm)}")
            S = vSs + t
            m1 = lambda: A(f"v_cndmask_b32 v{S}, v{vTA}, v{vTB}, s[{sM1}:{sM1+1}]")
            def m2():
                A(f"v_cndmask_b32 v{S}, v{S}, v{vTA}, s[{sM2}:{sM2+1}]")
                A(f"v_cndmask_b32 v{S}, v{S}, v{vTB}, s[{sM3}:{sM3+1}]")
            if t < 7:
                dots(vTA, 0); iss(0); iss(1)
                dots(vTB, 4); iss(2); iss(3)
                red(); iss(4); iss(5)
                m1(); iss(6); iss(7)
                dots(vTA, 8); iss(8); iss(9)
                dots(vTB, 12); iss(10); iss(11)
                red(); iss(12); iss(13)
                m2(); iss(14); iss(15)
            else:
                assert nf == 0
                dots(vTA, 0); iss(0); iss(1)
                dots(vTB, 4); iss(2); iss(3)
                red(); iss(4)
                m1()
                dots(vTA, 8); iss(5); iss(6)
                dots(vTB, 12); iss(7); iss(8)
                red(); iss(9)
                m2()
                for a, f in enumerate(softmax_chunks(br)):
                    f(); iss(10 + a)
        else:
            lane = lambda n: 4 * (n & 3) + (n >> 2)
            Pk = vSs + t
            ands(vA0, Pk, lane(0))
            for n in range(16):
                cur = vA0 if n % 2 == 0 else vA1; nxt = vA1 if n % 2 == 0 else vA0
                if n < 15: ands(nxt, Pk, lane(n + 1))
                need(("kv", T, n))
                r = vRing + 4 * n
                c = "0" if (t == 0 and n == 0) else f"v[{vAcc}:{vAcc+3}]"
                A(f"v_mfma_f32_16x16x32_bf16 v[{vAcc}:{vAcc+3}], v[{cur}:{cur+3}], v[{r}:{r+3}], {c}")
                iss(n)
        assert not ex and not fl and (pro != 2 or km[0] == 32)
    for T in range(32):
        A(f"; ---- task {T}")
        stamp(f"T{T}")
        body(T)
    stamp("end")
    pb = proj_chunks(1, vSc + 16)
    pb[0]()
    for f in pb[1:-1]: f()
    stamp("mm")
    pb[-1]()
    op(("pub", 1), f"buffer_store_dwordx4 v[{vSc+16}:{vSc+19}], v{vPub}, s[{sWS}:{sWS+3}], s{sTmp2} offen {pubf}")
    stamp("pub")
    A(f"s_cmp_ge_u32 s{sH}, 20")
    A("s_cbranch_scc1 L_fin")
    need(("old", 3))
    poll("p0")
    need(("p0", 1))
    def missing(r):
        for e in range(8):
            A(f"v_xor_b32 v{vSc+e}, v{r+e}, v{vOldC+e}")
        for (a, b) in ((0, 1), (2, 3), (4, 5), (6, 7), (0, 2), (4, 6), (0, 4)):
            A(f"v_and_b32 v{vSc+a}, v{vSc+a}, v{vSc+b}")
        A(f"v_and_b32 v{vSc}, 1, v{vSc}")
        A(f"v_cmp_eq_u32 vcc, 0, v{vSc}")
    def rawpoll(r):
        A(f"buffer_load_dwordx4 v[{r}:{r+3}], v{vCon}, s[{sWS}:{sWS+3}], s{sC0} offen sc1")
        A(f"buffer_load_dwordx4 v[{r+4}:{r+7}], v{vCon}, s[{sWS}:{sWS+3}], s{sC1} offen sc1")
    A("L_chk:")
    missing(vD)
    A("s_and_b64 exec, exec, vcc")
    A("s_cbranch_execz L_got")
    A(f"s_add_u32 s{sSpin}, s{sSpin}, 1")
    A(f"s_cmp_ge_u32 s{sSpin}, 0x40000")
    A("s_cbranch_scc1 L_got")
    A(f"s_bcnt1_i32_b64 s{sTmp}, exec")
    A(f"s_cmp_le_u32 s{sTmp}, {nB}")
    A("s_cbranch_scc1 L_pc")
    A(f"s_cmp_le_u32 s{sTmp}, {nA}")
    A("s_cbranch_scc1 L_pb")
    if slA: A(f"s_sleep {slA}")
    A("L_pb:")
    if slB: A(f"s_sleep {slB}")
    if not dbl: A("L_pc:")
    rawpoll(vD)
    A("s_waitcnt vmcnt(0)")
    A("s_branch L_chk")
    if dbl:
        P0, P1 = vRing, vRing + 8
        A("L_pc:")
        rawpoll(P0)
        A(f"s_sleep {dly}")
        rawpoll(P1)
        A("L_f:")
        for a in (P0, P1):
            A("s_waitcnt vmcnt(2)")
            missing(a)
            A(f"s_mov_b64 s[{sM1}:{sM1+1}], vcc")
            A("s_andn2_b64 exec, exec, vcc")
            for e in range(8): A(f"v_mov_b32 v{vD+e}, v{a+e}")
            A(f"s_mov_b64 exec, s[{sM1}:{sM1+1}]")
            A("s_cbranch_execz L_got")
            rawpoll(a)
        A(f"s_add_u32 s{sSpin}, s{sSpin}, 1")
        A(f"s_cmp_lt_u32 s{sSpin}, 0x40000")
        A("s_cbranch_scc1 L_f")
    A("L_got:")
    stamp("got")
    A("s_mov_b64 exec, -1")
    for e in range(8): A(f"v_and_b32 v{vD+e}, -2, v{vD+e}" + ("                 ; drop the validity bit" if e == 0 else ""))
    for e in range(4): A(f"v_add_f32 v{vD+e}, v{vD+e}, v{vD+4+e}")
    for e in range(4): A(f"v_add_f32_dpp v{vD+e}, v{vD+e}, v{vD+e} row_ror:8 {DPPF}")
    A("s_mov_b32 exec_lo, 0x00ff00ff")
    A("s_mov_b32 exec_hi, 0x00ff00ff")
    A(f"ds_write_b128 v{vTmp}, v[{vD}:{vD+3}] offset:{QP}")
    A("s_mov_b64 exec, -1")
    bar()
    A(f"ds_read_b128 v[{vD}:{vD+3}], v{vTmp2} offset:{QP}")
    A("s_waitcnt lgkmcnt(0)")
    for ctl in RED64[:4]:
        for e in range(4):
            A(f"v_add_f32_dpp v{vD+e}, v{vD+e}, v{vD+e} {ctl}")
    A(f"v_cvt_pk_bf16_f32 v{vD}, v{vD}, v{vD+1}")
    A(f"v_cvt_pk_bf16_f32 v{vD+1}, v{vD+2}, v{vD+3}")
    A("s_mov_b32 exec_lo, 0x10001")
    A("s_mov_b32 exec_hi, 0")
    A(f"buffer_store_dwordx2 v[{vD}:{vD+1}], v{vOutO}, s[{sOUT}:{sOUT+3}], 0 offen")
    A("L_fin:")
    if diag == 3:
        stamp()
        A("s_waitcnt lgkmcnt(0)")
        A(f"s_sub_u32 s{sTmp}, s{sST+2*ampk}, s{sST+2*ampj}")
        A(f"s_mul_i32 s{sTmp}, s{sTmp}, {amp}")
        A(f"s_add_u32 s{sTmp}, s{sTmp}, {fix}")
        A("L_hold:")
        A(f"s_memrealtime s[{sM1}:{sM1+1}]")
        A("s_waitcnt lgkmcnt(0)")
        A(f"s_sub_u32 s{sTmp2}, s{sM1}, s{sST}")
        A(f"s_cmp_lt_u32 s{sTmp2}, s{sTmp}")
        A("s_cbranch_scc1 L_hold")
    if diag == 1:
        stamp()
        A("s_mov_b64 exec, -1")
        A(f"s_getreg_b32 s{sTmp}, hwreg(HW_REG_XCC_ID)")
        A("s_waitcnt lgkmcnt(0)")
        A(f"v_mov_b32 v{vStamp}, 0")
        for k in range(nstamp[0]):
            A(f"v_writelane_b32 v{vStamp}, s{sST+2*k}, {k}")
        A(f"v_writelane_b32 v{vStamp}, s{sTmp}, 14")
        A(f"v_writelane_b32 v{vStamp}, s{sSpin}, 15")
        A(f"s_add_u32 s{sE}, s28, {DIAG_OFF}")
        A(f"s_addc_u32 s{sE+1}, s29, 0")
        A(f"s_mov_b32 s{sE+2}, 0x10000")
        A(f"s_lshl_b32 s{sTmp}, s2, 2")
        A(f"s_add_u32 s{sTmp}, s{sTmp}, s3")
        A(f"s_lshl_b32 s{sTmp}, s{sTmp}, 6")
        A(f"v_lshlrev_b32 v{vTmp}, 2, v{vLane}")
        A("s_mov_b64 exec, 0xffff")
        A(f"buffer_store_dword v{vStamp}, v{vTmp}, s[{sE}:{sE+3}], s{sTmp} offen")
        A(f"; nstamp={nstamp[0]}")
    A("L_end:")
    A("s_endpgm")
    code = A.finish()
    txt = HEADER + "; Override launch geometry by editing the next line (default: block=256,\n; grid=ceil(out_elems/256), lds=0). Harness parses it; keep it on one line.\n"
    txt += "; @launch grid=(256,1,1) block=(256,1,1) lds=16384\n" + DOC
    txt += f""".amdgcn_target "amdgcn-amd-amdhsa--gfx950"
.text
.globl {name}
.p2align 8
.type {name},@function
""" + code + f""".section .rodata,"a"
.p2align 6
.amdhsa_kernel {name}
  .amdhsa_next_free_vgpr 416
  .amdhsa_next_free_sgpr 102
  .amdhsa_accum_offset 256
  .amdhsa_group_segment_fixed_size 0
  .amdhsa_kernarg_size 104
  .amdhsa_user_sgpr_count 2
  .amdhsa_user_sgpr_kernarg_segment_ptr 1
  .amdhsa_system_sgpr_workgroup_id_x 1
  .amdhsa_float_denorm_mode_32 3
.end_amdhsa_kernel
"""
    return txt

if __name__ == "__main__":
    import json
    kw = json.loads(sys.argv[1]) if len(sys.argv) > 1 else {}
    sys.stdout.write(gen(**kw))
```

```python
import sys, struct
from asmlib import Asm

NAME = "concat_heads__mha_block_cached__gqa_block_cached__decode_kernel"
HEADER = open("concat_heads__mha_block_cached__gqa_block_cached__decode.s.ref").read().split("; Override launch")[0]
NSTAMP = 10
DIAG_OFF = 0x200000
LOG2E = 1.4426950408889634
ROW = 2560
FLAGS = 8 * 64 * ROW

DOC = """;
; Structure
"""

def f2u(x): return struct.unpack("<I", struct.pack("<f", x))[0]

def gen(W=5, kvf="nt", wf="", pubf="sc1", diag=0, kper=2, swz=31,
        wqB=(1, 6), qB=6, woA=(7, 16), epA=16, woB=(18, 28), Wlast=8, nlast=1, pubT=31, stT=(10, 26),
        cps=(8, 17, 24), npeer=8, mid=2.5, gp=1.4, boost=1, smf=1, dbl=0, dly=8, xw=0, xall=0, pro=1, lead=18, k0=5, prb=2, fake=0, pref=0, outf='',
        slA=8, slB=3, nA=32, nB=16, stl=('karg', 'issue', 'q', 'T8', 'T16', 'T24', 'end', 'bar'),
        amp=0, ampk=0, ampj=0, fix=15000, name=NAME):
    A = Asm()
    pX, pK, pV, pWQ, pWO = (4, 14), (6, 16), (8, 18), (10, 20), (12, 22)
    sS, sE, sWS, sOUT = 32, 36, 40, 44
    sB, sH, sHf, sO0, sO1, sBase, sTmp, sTmp2, sM, sSpin, sEo, sWQo, sWOo, sC0, sC1, sR = range(48, 64)
    sM1, sM2, sM3 = 64, 66, 68
    sTg = 70
    sJ, sK8, sK5, sW, sKk = 71, 72, 73, 74, 75
    sST = 76
    sFl, sOne, sPo = 96, 98, 99
    sSt = (100, 30)
    vLane, vWQo, vWOo, vXo, vPub, vCon, vOutO, vTmp, vTmp2, vC, vLdsA, vLdsO, vLdsS, vStamp, vZero = range(1, 16)
    vMk = 16; vQA = 20; vQB = 24; vA0 = 28; vA1 = 32; vAcc = 36; vAq = 40
    vTA, vTB = 44, 48
    vM, vL = 52, 53; vT, vF = 54, 55
    vX = 56
    vXo3 = (vXo, vQB, vQB + 1)
    vE1, vE2 = 62, 63
    vRing = 64
    vOff = 128
    vSs = 136
    vSc = 144
    vRing2 = 176
    vO = 176
    vPst = 196
    vFac = 198
    vOldS = 200
    vOwnS = 204
    vD = 212
    vRes = 220
    vStat = (224, 226)
    vU = 228
    vFo, vKk, vFold, vFcur = 230, 231, 232, 236
    vSm = 208
    vOldP = (240, 244)
    vOldC = 248
    QP, OP, ST, KK, OUTP = 0, 2048, 4352, 4400, 4608
    DPPF = "row_mask:0xf bank_mask:0xf"
    RED64 = ("row_ror:8 " + DPPF, "row_ror:4 " + DPPF, "row_ror:2 " + DPPF, "row_ror:1 " + DPPF,
             "row_bcast:15 row_mask:0xa bank_mask:0xf", "row_bcast:31 row_mask:0xc bank_mask:0xf")
    nstamp = [0]
    def stamp(kind=None):
        if kind is not None and kind not in stl: return
        if diag:
            A(f"s_memrealtime s[{sST+2*nstamp[0]}:{sST+2*nstamp[0]+1}]")
            nstamp[0] += 1
    class St: pass
    st = St(); st.issued = 0; st.landed = 0; st.pos = {}; st.kv = []
    lbl = [0]
    def newlbl():
        lbl[0] += 1; return f"L_t{lbl[0]}"
    def op(key, text):
        A(text); st.pos[key] = st.issued; st.issued += 1
        assert st.issued - st.landed <= 63
    def wait(n):
        A(f"s_waitcnt vmcnt({n})"); st.landed = max(st.landed, st.issued - n)
    def need(key):
        if st.landed <= st.pos[key]: wait(st.issued - st.pos[key] - 1)
    def thr(w):
        p = st.kv[len(st.kv) - w]
        if st.landed <= p: wait(st.issued - p - 1)
    def thrdyn(W):
        thr(W + boost)
        L = newlbl()
        A(f"s_cbranch_vccnz {L}")
        A(f"s_waitcnt vmcnt({st.issued - st.kv[len(st.kv) - W] - 1})")
        A(f"{L}:")
    def setbase(s, p): A(f"s_mov_b64 s[{s}:{s+1}], s[{p}:{p+1}]")
    def srd(s, p, n):
        setbase(s, p); A(f"s_mov_b32 s{s+2}, {n}"); A(f"s_mov_b32 s{s+3}, 0x20000")

    A(f"{name}:")
    stamp()
    A("s_cmp_ge_u32 s2, 256")
    A("s_cbranch_scc1 L_end")
    A("s_load_dwordx16 s[4:19], s[0:1], 0")
    A("s_load_dwordx8 s[20:27], s[0:1], 64")
    A("s_load_dwordx2 s[28:29], s[0:1], 96")
    A(f"v_lshrrev_b32 v{vTmp}, 6, v0")
    A(f"v_and_b32 v{vLane}, 63, v0")
    A(f"v_readfirstlane_b32 s3, v{vTmp}                    ; wave")
    A(f"s_lshr_b32 s{sB}, s2, 6")
    A(f"s_and_b32 s{sH}, s2, 31")
    A(f"s_bfe_u32 s{sHf}, s2, 0x10005")
    A(f"v_and_b32 v{vC}, 15, v0                            ; c = lane & 15")
    A(f"v_lshrrev_b32 v{vTmp}, 4, v{vLane}                 ; g = lane >> 4")
    A(f"v_lshlrev_b32 v{vTmp2}, 4, v{vC}")
    A(f"v_lshl_add_u32 v{vWQo}, v{vTmp}, 13, v{vTmp2}      ; g*8192 + c*16")
    A(f"s_lshr_b32 s{sJ}, s2, 5")
    A(f"s_mul_i32 s{sWQo}, s3, {160*8192}")
    A(f"s_lshl_b32 s{sTmp}, s{sH}, 8")
    A(f"s_add_u32 s{sWQo}, s{sWQo}, s{sTmp}")
    A(f"s_mul_i32 s{sTmp}, s{sJ}, {5*32768}")
    A(f"s_add_u32 s{sWQo}, s{sWQo}, s{sTmp}")
    if fake:
        A(f"v_lshlrev_b32 v{vWQo}, 4, v{vLane}")
        A(f"s_lshl_b32 s{sWQo}, s{sH}, 2")
        A(f"s_add_u32 s{sWQo}, s{sWQo}, s3")
        A(f"s_lshl_b32 s{sWQo}, s{sWQo}, 3")
        A(f"s_add_u32 s{sWQo}, s{sWQo}, s{sJ}")
        A(f"s_mul_i32 s{sWQo}, s{sWQo}, 5120")
    A(f"s_mov_b32 s{sE+2}, 5242880")
    A(f"s_mov_b32 s{sE+3}, 0x20000")
    A(f"s_mov_b32 s{sEo}, s{sWQo}")
    A(f"s_lshr_b32 s{sM}, s2, 3")
    A(f"s_add_u32 s{sM}, s{sM}, s2")
    A(f"s_and_b32 s{sM}, s{sM}, {swz}")
    A(f"v_lshlrev_b32 v{vE1}, 4, v{vLane}")
    def voff(j):
        A(f"s_add_u32 s{sTmp}, s{sM}, {j}")
        A(f"s_and_b32 s{sTmp}, s{sTmp}, 7")
        A(f"v_lshl_add_u32 v{vOff+j}, s{sTmp}, 10, v{vE1}")
    voff(0)
    A(f"s_lshr_b32 s{sTmp}, s{sM}, 3")
    A(f"s_xor_b32 s{sTmp}, s{sTmp}, s3")
    A(f"s_lshl_b32 s{sTmp}, s{sTmp}, 13")
    A(f"s_lshl_b32 s{sBase}, s{sB}, 6")
    A(f"s_lshl_b32 s{sTmp2}, s{sH}, 1")
    A(f"s_add_u32 s{sBase}, s{sBase}, s{sTmp2}")
    A(f"s_add_u32 s{sBase}, s{sBase}, s{sHf}")
    A(f"s_mul_i32 s{sC0}, s{sBase}, {ROW}")
    A(f"s_lshl_b32 s{sBase}, s{sBase}, 19")
    A(f"s_add_u32 s{sBase}, s{sBase}, s{sTmp}")
    A(f"s_mov_b32 s{sO0}, s{sBase}")
    A(f"s_mov_b32 s{sS+2}, {128 << 20}")
    A(f"s_mov_b32 s{sS+3}, 0x20000")
    A("s_waitcnt lgkmcnt(0)")
    stamp("karg")
    setbase(sE, pWQ[0])
    setbase(sS, pK[0])
    def slot(T, n): return (vRing2 if T == 0 else vRing) + 4 * n
    def kvload(T, n):
        st.kv.append(st.issued); r = slot(T, n)
        op(("kv", T, n), f"buffer_load_dwordx4 v[{r}:{r+3}], v{vOff + n % 8}, s[{sS}:{sS+3}], s{sO0 if n < 8 else sO1} offen {kvf}")
    def step(i, wrap, k):
        A(f"s_cmp_eq_u32 s{sJ}, {8 - (i + 1) // 5}")
        A(f"s_cselect_b32 s{sR}, {hex(wrap & 0xffffffff)}, s{k}")
        A(f"s_add_u32 s{sEo}, s{sEo}, s{sR}")
    def wqload(br, t):
        op(("wq", br, t), f"buffer_load_dwordx4 a[{4*t}:{4*t+3}], v{vWQo}, s[{sE}:{sE+3}], s{sEo} offen {wf}")
        if t < 39:
            stp = 1024 if fake else 0x8000
            if t % 5 == 4: step(t, -39 * stp, sK8)
            else: A(f"s_add_u32 s{sEo}, s{sEo}, {stp}")
    def woload(br, i):
        if i == 0:
            setbase(sE, pWO[br]); A(f"s_mov_b32 s{sEo}, s{sWOo}")
        a = 4 * i if not smf else ((i // 5 & 3) * 5 + i % 5) * 8 + 4 * (i // 20)
        op(("wo", br, i), f"buffer_load_dwordx4 a[{a}:{a+3}], v{vWOo}, s[{sE}:{sE+3}], s{sEo} offen offset:{(i%5)*256} {wf}")
        if i % 5 == 4 and i < 39: step(i, -7 * 5120, sK5)
    def xload(br):
        srd(sOUT, pX[br], 5120)
        for i in range(3):
            op(("x", br, i), f"buffer_load_ushort v{vX+3*br+i}, v{vXo3[i]}, s[{sOUT}:{sOUT+3}], 0 offen")
    def xA():
        A(f"v_mul_u32_u24 v{vWOo}, 1280, v{vTmp}")
        A(f"v_add_u32 v{vWOo}, v{vWOo}, v{vTmp2}               ; g*1280 + c*16")
        A(f"s_mul_i32 s{sTmp}, s3, 320")
        A(f"s_mul_i32 s{sTmp2}, s{sB}, 1280")
        A(f"s_add_u32 s{sTmp}, s{sTmp}, s{sTmp2}")
        A(f"v_lshl_add_u32 v{vTmp2}, v{vTmp}, 1, s{sTmp}")
        A(f"s_mul_i32 s{sTmp}, s{sJ}, 5")
        for i in range(3):
            A(f"v_add_u32 v{vXo3[i]}, s{sTmp}, v{vC}")
            if i < 2: A(f"s_add_u32 s{sTmp}, s{sTmp}, 16")
        for i in range(3): A(f"v_subrev_u32 v{vTA+i}, 40, v{vXo3[i]}")
        for i in range(3): A(f"v_min_u32 v{vXo3[i]}, v{vXo3[i]}, v{vTA+i}")
        for i in range(3): A(f"v_lshl_add_u32 v{vXo3[i]}, v{vXo3[i]}, 3, v{vTmp2}")
        xload(0)
    def nexttask():
        A(f"s_add_u32 s{sO0}, s{sO0}, 0x8000")
        A(f"s_add_u32 s{sO1}, s{sO1}, 0x8000")
    def wooff():
        A(f"s_lshl_b32 s{sWOo}, s{sH}, 2")
        A(f"s_add_u32 s{sWOo}, s{sWOo}, s3")
        A(f"s_lshl_b32 s{sWOo}, s{sWOo}, 3")
        A(f"s_add_u32 s{sWOo}, s{sWOo}, s{sJ}")
        A(f"s_mul_i32 s{sWOo}, s{sWOo}, {4*1280}               ; (h*128 + 32w + 4j)*1280")
    km = [0]
    def knext():
        m = km[0]; km[0] += 1
        if m == 16: nexttask()
        kvload(m >> 4, m & 15)
        if m + 1 < 8: voff(m + 1)
    def wq0(t):
        wqload(0, t)
        if t == 0:
            A(f"s_mov_b32 s{sK8}, {1024 if fake else 0x8000}")
            A(f"s_movk_i32 s{sK5}, 5120")
            A(f"s_add_u32 s{sO1}, s{sBase}, 0x40000")
        if t == 4: xA()
    plist = []; widx = {}
    if pro == 2:
        nk = 0
        for t in range(40):
            widx[t] = len(plist); plist.append(lambda t=t: wq0(t))
            if pref and t == 4:
                def pf(kind, i):
                    if i == 0:
                        p = {"wqB": pWQ[1], "woA": pWO[0], "woB": pWO[1]}[kind]
                        if kind == "wqB":
                            srd(sWS, p, 5242880); A(f"s_mov_b32 s{sC1}, s{sWQo}"); wooff()
                        else: setbase(sWS, p)
                    if kind == "wqB":
                        op(("pf", kind, i), f"buffer_load_dwordx4 a[160:163], v{vWQo}, s[{sWS}:{sWS+3}], s{sC1} offen {wf}")
                        if i < 4: A(f"s_add_u32 s{sC1}, s{sC1}, 0x8000")
                    else:
                        op(("pf", kind, i), f"buffer_load_dwordx4 a[160:163], v{vWOo}, s[{sWS}:{sWS+3}], s{sWOo} offen offset:{i*256} {wf}")
                for kind in ("wqB", "woA", "woB")[:pref]:
                    for i in range(5): plist.append(lambda kind=kind, i=i: pf(kind, i))
            while t + 1 >= k0 and nk * kper <= t + 1 - k0:
                plist.append(knext); nk += 1
        pi = [0]
        def pissue(upto):
            while pi[0] < min(upto, len(plist)):
                plist[pi[0]](); pi[0] += 1
        pissue(lead)
        assert not pref or lead >= 5 + 5 * pref
    else:
        nkv = 0
        for t in range(40):
            wqload(0, t)
            if t == 0:
                A(f"s_mov_b32 s{sK8}, {1024 if fake else 0x8000}")
                A(f"s_movk_i32 s{sK5}, 5120")
                A(f"s_add_u32 s{sO1}, s{sBase}, 0x40000")
            while nkv < 16 and (nkv + 1) * kper <= t + 1:
                kvload(0, nkv); nkv += 1
                if nkv < 8: voff(nkv)
            if t == 4: xA()
        assert nkv >= 8
        for n in range(nkv, 16): kvload(0, n)
        nexttask()
        for n in range(4): kvload(1, n)
    stamp("issue")
    srd(sWS, 28, FLAGS + 256 * 128)
    for m, v in ((sM1, 0x22222222), (sM2, 0x44444444), (sM3, 0x88888888)):
        A(f"s_mov_b32 s{m}, {hex(v)}"); A(f"s_mov_b32 s{m+1}, {hex(v)}")
    if not pref: wooff()
    A(f"v_mov_b32 v{vTmp2}, 0x7fffffff")
    A(f"v_cmp_gt_u32 vcc, 160, v0")
    A(f"v_lshlrev_b32 v{vPub}, 4, v0")
    A(f"v_add_u32 v{vPub}, s{sC0}, v{vPub}")
    A(f"v_cndmask_b32 v{vPub}, v{vTmp2}, v{vPub}, vcc")
    A(f"s_lshl_b32 s{sTmp}, s{sHf}, 2")
    A(f"s_add_u32 s{sTmp}, s{sTmp}, s{sB}")
    A(f"s_lshl_b32 s{sTmp}, s{sTmp}, 2")
    A(f"s_add_u32 s{sTmp}, s{sTmp}, s3")
    A(f"s_mul_i32 s{sC0}, s{sTmp}, {16*ROW}")
    A(f"s_lshl_b32 s{sTmp}, s{sH}, 7")
    A(f"s_add_u32 s{sC0}, s{sC0}, s{sTmp}")
    A(f"s_cmp_lt_u32 s{sH}, 20")
    A(f"s_cselect_b32 s{sC0}, s{sC0}, 0x40000000")
    A(f"s_add_u32 s{sC1}, s{sC0}, {8*ROW}")
    A(f"v_lshrrev_b32 v{vCon}, 3, v{vLane}")
    A(f"v_mul_u32_u24 v{vCon}, {ROW}, v{vCon}")
    A(f"v_and_b32 v{vTmp}, 7, v{vLane}")
    A(f"v_lshl_add_u32 v{vCon}, v{vTmp}, 4, v{vCon}        ; lane = (row 16w + lane/8 (+8), piece lane%8)")
    A(f"s_mul_i32 s{sTmp}, s{sB}, 2560")
    A(f"s_mul_i32 s{sTmp2}, s{sHf}, 1280")
    A(f"s_add_u32 s{sTmp}, s{sTmp}, s{sTmp2}")
    A(f"s_lshl_b32 s{sTmp2}, s{sH}, 6")
    A(f"s_add_u32 s{sTmp}, s{sTmp}, s{sTmp2}")
    A(f"s_lshl_b32 s{sTmp2}, s3, 4")
    A(f"s_add_u32 s{sTmp}, s{sTmp}, s{sTmp2}")
    A(f"v_lshrrev_b32 v{vOutO}, 4, v{vLane}")
    A(f"v_lshl_add_u32 v{vOutO}, v{vOutO}, 3, s{sTmp}")
    A(f"v_and_b32 v{vTmp}, 1, v{vC}")
    A(f"v_lshlrev_b32 v{vTmp}, 4, v{vTmp}")
    A(f"v_mov_b32 v{vTmp2}, 0xffff")
    A(f"v_lshlrev_b32 v{vTmp2}, v{vTmp}, v{vTmp2}")
    A(f"v_lshrrev_b32 v{vTmp}, 1, v{vC}")
    for k in range(4):
        A(f"v_cmp_eq_u32 vcc, {k}, v{vTmp}")
        A(f"v_cndmask_b32 v{vMk+k}, 0, v{vTmp2}, vcc")
    A(f"v_lshrrev_b32 v{vTmp}, 4, v{vLane}")
    A(f"v_lshlrev_b32 v{vLdsA}, 5, v{vC}")
    A(f"v_lshl_add_u32 v{vLdsA}, v{vTmp}, 4, v{vLdsA}")
    A(f"v_and_b32 v{vTmp2}, 3, v{vC}")
    A(f"v_lshlrev_b32 v{vLdsS}, 3, v{vTmp2}")
    A(f"v_mul_u32_u24 v{vTmp2}, 576, v{vTmp2}")
    if not smf:
        A(f"v_lshl_add_u32 v{vTmp2}, v{vTmp}, 2, v{vTmp2}")
        A(f"s_lshl_b32 s{sTmp}, s3, 7")
        A(f"v_add_u32 v{vTmp2}, s{sTmp}, v{vTmp2}")
        A(f"v_lshrrev_b32 v{vTmp}, 2, v{vC}")
        A(f"v_add_u32 v{vTmp}, s{sJ}, v{vTmp}")
        A(f"v_and_b32 v{vTmp}, 7, v{vTmp}")
        A(f"v_lshl_add_u32 v{vLdsO}, v{vTmp}, 4, v{vTmp2}")
        A(f"v_xor_b32 v{vTmp}, 4, v{vTmp}")
        A(f"v_lshl_add_u32 v{vE2}, v{vTmp}, 4, v{vTmp2}")
    else:
        A(f"v_and_b32 v{vE2}, 1, v{vTmp}")
        A(f"v_lshl_add_u32 v{vTmp2}, v{vE2}, 3, v{vTmp2}")
        A(f"s_lshl_b32 s{sTmp}, s3, 7")
        A(f"v_add_u32 v{vTmp2}, s{sTmp}, v{vTmp2}              ; (c&3)*576 + (32w + 2(g&1))*4")
        A(f"v_lshlrev_b32 v{vTmp}, 1, v{vTmp}")
        A(f"v_and_b32 v{vTmp}, 4, v{vTmp}")
        A(f"v_lshrrev_b32 v{vE2}, 2, v{vC}")
        A(f"v_add3_u32 v{vTmp}, v{vTmp}, v{vE2}, s{sJ}")
        A(f"v_and_b32 v{vTmp}, 7, v{vTmp}")
        A(f"v_lshl_add_u32 v{vLdsO}, v{vTmp}, 4, v{vTmp2}")
    A(f"v_mov_b32 v{vZero}, 0")
    A(f"s_mov_b32 s{sKk}, 0")
    A(f"s_mov_b32 s{sOne}, 1")
    A(f"s_lshl_b32 s{sTmp}, s2, 7")
    A(f"s_add_u32 s{sTmp}, s{sTmp}, {FLAGS}")
    A(f"s_add_u32 s{sFl}, s28, s{sTmp}")
    A(f"s_addc_u32 s{sFl+1}, s29, 0")
    A(f"s_xor_b32 s{sPo}, s2, 32")
    A(f"s_lshl_b32 s{sPo}, s{sPo}, 7")
    A(f"s_add_u32 s{sPo}, s{sPo}, {FLAGS}")

    def ands(dst, src, lane):
        for k in range(4):
            A(f"v_and_b32_dpp v{dst+k}, v{src}, v{vMk+k} row_newbcast:{lane} {DPPF}")
    def bar():
        A("s_waitcnt lgkmcnt(0)"); A("s_barrier")
    def ldsw(scale, off, reg):
        A(f"s_mul_i32 s{sTmp}, s3, {scale}")
        A(f"v_add_u32 v{vE1}, s{sTmp}, v{vLdsA}")
        A("s_mov_b32 exec_hi, 0")
        for o, r in zip(off, reg):
            A(f"ds_write_b128 v{vE1}, v[{r}:{r+3}] offset:{o}")
        A("s_mov_b32 exec_hi, -1")
    def wsld(key, n, dst, v, so, extra=""):
        w = {1: "dword", 2: "dwordx2", 4: "dwordx4"}[n]
        d = f"v{dst}" if n == 1 else f"v[{dst}:{dst+n-1}]"
        op(key, f"buffer_load_{w} {d}, v{v}, s[{sWS}:{sWS+3}], {so} offen {extra}sc1")
    def xB():
        xload(1)
        srd(sOUT, 24, 10240)
        setbase(sE, pWQ[1])
        A(f"s_mov_b32 s{sEo}, s{sWQo}")
    late = [(lambda n=n: kvload(1, n)) for n in range(4, 16)] + [xB,
            lambda: wsld(("old", 0), 4, vOldP[0], vPub, "0"),
            lambda: (A(f"s_mov_b32 s{sTmp}, {4*64*ROW}"), wsld(("old", 1), 4, vOldP[1], vPub, f"s{sTmp}")),
            lambda: wsld(("old", 2), 4, vOldC, vCon, f"s{sC0}"),
            lambda: wsld(("old", 3), 4, vOldC + 4, vCon, f"s{sC1}")]
    def q_chunks(br, per):
        xs = vX + 3 * br
        def head():
            need(("x", br, 2))
            for i in range(3):
                A(f"v_lshl_or_b32 v{xs+i}, v{xs+i}, 16, v{xs+i}")
            ands(vA0, xs, 0)
        def mm(t0, t1):
            def f():
                for t in range(t0, t1):
                    cur = vA0 if t % 2 == 0 else vA1; nxt = vA1 if t % 2 == 0 else vA0
                    if t < 39: ands(nxt, xs + (t + 1) // 16, (t + 1) % 16)
                    need(("wq", br, t))
                    c = "0" if t == 0 else f"v[{vAq}:{vAq+3}]"
                    A(f"v_mfma_f32_16x16x32_bf16 v[{vAq}:{vAq+3}], v[{cur}:{cur+3}], a[{4*t}:{4*t+3}], {c}")
                    if br == 0 and pro == 2:
                        if pi[0] < len(plist): pissue(widx[min(t + 1, 39)] + lead)
                        elif t % int(kper + 0.5) == 0: thr(W + 1); knext()
                    elif br == 0 and late: late.pop(0)()
            return f
        return [head] + [mm(t, min(40, t + per)) for t in range(0, 40, per)] + [lambda: ldsw(512, [QP if br == 0 else OUTP], [vAq])]
    def q_finish(br):
        dst = (vQA, vQB)[br]; base = (QP, OUTP)[br]
        A(f"v_lshlrev_b32 v{vE1}, 5, v{vC}")
        for w in range(4):
            for hf in range(2):
                r = vSc + 8 * w + 4 * hf
                A(f"ds_read_b128 v[{r}:{r+3}], v{vE1} offset:{base + 512*w + 16*hf}")
        for w in range(1, 4):
            A(f"s_waitcnt lgkmcnt({6-2*w})" if (br == 0 and not diag) else "s_waitcnt lgkmcnt(0)")
            for e in range(8):
                A(f"v_add_f32 v{vSc+e}, v{vSc+e}, v{vSc+8*w+e}")
        for k in range(4):
            A(f"v_cvt_pk_bf16_f32 v{dst+k}, v{vSc+2*k}, v{vSc+2*k+1}")
    if pro == 2: late0 = late[12:]; late = []
    for f in q_chunks(0, 40): f()
    assert not late
    if pro == 2:
        for _ in range(prb): knext()
        assert 16 <= km[0] <= 32, km
    stamp("qm")
    bar()
    q_finish(0)
    stamp("q")

    def linesetup():
        A(f"v_mul_u32_u24 v{vFo}, 9, v{vLane}")
        A(f"v_add_u32 v{vFo}, s2, v{vFo}")
        A(f"v_and_b32 v{vFo}, 255, v{vFo}")
        A(f"v_lshlrev_b32 v{vFo}, 7, v{vFo}")
        A(f"v_mov_b32 v{vTmp2}, 0x7fffffff")
        A(f"v_cmp_gt_u32 vcc, {npeer}, v0")
        A(f"v_mov_b32 v{vTmp}, {KK}")
        A(f"v_cndmask_b32 v{vFo}, v{vTmp2}, v{vFo}, vcc")
        A(f"ds_write_b32 v{vTmp}, v{vZero}")
        if smf:
            A(f"v_lshrrev_b32 v{vTmp}, 2, v{vC}")
            A(f"v_mov_b32 v{vTmp2}, 0xffff")
            for k in range(2):
                A(f"v_cmp_eq_u32 vcc, {k}, v{vTmp}")
                A(f"v_cndmask_b32 v{vSm+k}, 0, v{vTmp2}, vcc")
            A(f"v_and_b32 v{vTmp}, 3, v{vC}")
            A(f"v_mul_u32_u24 v{vSm+2}, 0x1111, v{vTmp}")
        if cps:
            A(f"s_mov_b32 s{sTmp}, {FLAGS}")
            wsld(("fold",), 4, vFold, vFo, f"s{sTmp}")
        wsld(("olds",), 4, vOldS, vZero, f"s{sPo}", "offset:16 ")
        A(f"s_xor_b32 s{sTmp}, s{sPo}, {32 << 7}" if (FLAGS & (32 << 7)) == 0 else "bad")
        wsld(("owns",), 4, vOwnS, vZero, f"s{sTmp}", "offset:16 ")
    def notold():
        need(("old", 1)); need(("owns",))
        for br in range(2):
            for e in range(4): A(f"v_not_b32 v{vOldP[br]+e}, v{vOldP[br]+e}")
        for e in range(4): A(f"v_and_b32 v{vOwnS+e}, 1, v{vOwnS+e}")
        A(f"v_lshl_or_b32 v{vOwnS}, v{vOwnS+1}, 1, v{vOwnS}")
        A(f"v_lshl_or_b32 v{vOwnS+2}, v{vOwnS+3}, 1, v{vOwnS+2}")
        A(f"v_lshl_or_b32 v{vOwnS}, v{vOwnS+2}, 2, v{vOwnS}")
        A(f"v_not_b32 v{vOwnS}, v{vOwnS}")
        A(f"v_readfirstlane_b32 s{sTg}, v{vOwnS}")

    def softmax_chunks(br):
        S = [vSs + t for t in range(8)]
        Mx, Lx = vStat[br], vStat[br] + 1
        def each(*ops):
            for o in ops:
                for s in S: A(o.format(s=s))
        def c_r1(): each("v_cvt_pk_bf16_f32 v{s}, v{s}, v{s}", "v_and_b32 v{s}, 0xffff0000, v{s}", "v_mul_f32 v{s}, " + hex(f2u(128 ** -0.5)) + ", v{s}")
        def c_max():
            each("v_cvt_pk_bf16_f32 v{s}, v{s}, v{s}", "v_and_b32 v{s}, 0xffff0000, v{s}")
            A(f"v_max3_f32 v{vT}, v{S[0]}, v{S[1]}, v{S[2]}")
            A(f"v_max3_f32 v{vF}, v{S[3]}, v{S[4]}, v{S[5]}")
            A(f"v_max3_f32 v{vT}, v{vT}, v{S[6]}, v{S[7]}")
            A(f"v_max_f32 v{vT}, v{vT}, v{vF}")
            for ctl in RED64: A(f"v_max_f32_dpp v{vT}, v{vT}, v{vT} {ctl}")
            A(f"v_readlane_b32 s{sM}, v{vT}, 63")
        def c_exp(): each("v_subrev_f32 v{s}, s" + str(sM) + ", v{s}", "v_mul_f32 v{s}, " + hex(f2u(LOG2E)) + ", v{s}", "v_exp_f32 v{s}, v{s}")
        def c_sum():
            A(f"v_mov_b32 v{vM}, s{sM}")
            A(f"v_add_f32 v{vL}, v{S[0]}, v{S[1]}")
            A(f"v_add_f32 v{vT}, v{S[2]}, v{S[3]}")
            A(f"v_add_f32 v{vF}, v{S[4]}, v{S[5]}")
            A(f"v_add_f32 v{vE1}, v{S[6]}, v{S[7]}")
            A(f"v_add_f32 v{vL}, v{vL}, v{vT}")
            A(f"v_add_f32 v{vF}, v{vF}, v{vE1}")
            A(f"v_add_f32 v{vL}, v{vL}, v{vF}")
            for ctl in RED64: A(f"v_add_f32_dpp v{vL}, v{vL}, v{vL} {ctl}")
            A(f"s_lshl_b32 s{sTmp}, s3, 3")
            A(f"v_mov_b32 v{vE1}, s{sTmp}")
            A("s_mov_b32 exec_lo, 0")
            A("s_mov_b32 exec_hi, 0x80000000")
            A(f"ds_write_b64 v{vE1}, v[{vM}:{vM+1}] offset:{ST}")
            A("s_mov_b64 exec, -1")
        def c_norm():
            bar()
            A(f"ds_read_b64 v[{vTA}:{vTA+1}], v{vLdsS} offset:{ST}")
            A("s_waitcnt lgkmcnt(0)")
            A(f"v_max_f32_dpp v{Mx}, v{vTA}, v{vTA} quad_perm:[1,0,3,2] {DPPF}")
            A(f"v_max_f32_dpp v{Mx}, v{Mx}, v{Mx} quad_perm:[2,3,0,1] {DPPF}")
            A(f"v_sub_f32 v{vTA}, v{vTA}, v{Mx}")
            A(f"v_sub_f32 v{vM}, v{vM}, v{Mx}")
            A(f"v_mul_f32 v{vTA}, {hex(f2u(LOG2E))}, v{vTA}")
            A(f"v_mul_f32 v{vM}, {hex(f2u(LOG2E))}, v{vM}")
            A(f"v_exp_f32 v{vTA}, v{vTA}")
            A(f"v_exp_f32 v{vM}, v{vM}")
            A(f"v_mul_f32 v{Lx}, v{vTA+1}, v{vTA}")
            A(f"v_add_f32_dpp v{Lx}, v{Lx}, v{Lx} quad_perm:[1,0,3,2] {DPPF}")
            A(f"v_add_f32_dpp v{Lx}, v{Lx}, v{Lx} quad_perm:[2,3,0,1] {DPPF}")
            A(f"v_rcp_f32 v{vF}, v{Lx}")
            A(f"v_mul_f32 v{vF}, v{vF}, v{vM}")
        def c_pack():
            each("v_mul_f32 v{s}, v{s}, v" + str(vF), "v_cvt_pk_bf16_f32 v{s}, v{s}, v{s}")
            if br == 0: q_finish(1)
            p = sSt[br]
            A(f"v_readfirstlane_b32 s{p}, v{Mx}")
            A(f"v_readfirstlane_b32 s{p+1}, v{Lx}")
            for e in range(2):
                A(f"s_bitcmp1_b32 s{sTg}, {2*br+e}")
                A(f"s_cselect_b32 s{sTmp}, 1, 0")
                A(f"s_and_b32 s{p+e}, s{p+e}, -2")
                A(f"s_or_b32 s{p+e}, s{p+e}, s{sTmp}")
            L = newlbl()
            A("s_cmp_lg_u32 s3, 0")
            A(f"s_cbranch_scc1 {L}")
            A(f"s_atomic_swap_x2 s[{p}:{p+1}], s[{sFl}:{sFl+1}], {hex(16 + 8*br)}")
            A(f"{L}:")
        return [c_r1, c_max, c_exp, c_sum, c_norm, c_pack]
    def partner(br):
        def ld(): wsld(("pst", br), 2, vPst, vZero, f"s{sPo}", f"offset:{16 + 8*br} ")
        def ev():
            need(("pst", br))
            L0, L1 = f"L_ps{br}", f"L_pd{br}"
            A(f"s_mov_b32 s{sSpin}, 0")
            A(f"{L0}:")
            A(f"v_xor_b32 v{vT}, v{vPst}, v{vOldS+2*br}")
            A(f"v_xor_b32 v{vF}, v{vPst+1}, v{vOldS+2*br+1}")
            A(f"v_and_b32 v{vT}, v{vT}, v{vF}")
            A(f"v_readfirstlane_b32 s{sTmp}, v{vT}")
            A(f"s_bitcmp1_b32 s{sTmp}, 0")
            A(f"s_cbranch_scc1 {L1}")
            A(f"s_add_u32 s{sSpin}, s{sSpin}, 1")
            A(f"s_cmp_ge_u32 s{sSpin}, 0x40000")
            A(f"s_cbranch_scc1 {L1}")
            A(f"buffer_load_dwordx2 v[{vPst}:{vPst+1}], v{vZero}, s[{sWS}:{sWS+3}], s{sPo} offen offset:{16 + 8*br} sc1")
            A("s_waitcnt vmcnt(0)")
            A(f"s_branch {L0}")
            A(f"{L1}:")
            Mx, Lx = vStat[br], vStat[br] + 1
            A(f"v_and_b32 v{vPst}, -2, v{vPst}")
            A(f"v_and_b32 v{vPst+1}, -2, v{vPst+1}")
            A(f"v_max_f32 v{vT}, v{Mx}, v{vPst}")
            A(f"v_sub_f32 v{vF}, v{Mx}, v{vT}")
            A(f"v_sub_f32 v{vT}, v{vPst}, v{vT}")
            A(f"v_mul_f32 v{vF}, {hex(f2u(LOG2E))}, v{vF}")
            A(f"v_mul_f32 v{vT}, {hex(f2u(LOG2E))}, v{vT}")
            A(f"v_exp_f32 v{vF}, v{vF}")
            A(f"v_exp_f32 v{vT}, v{vT}")
            A(f"v_mul_f32 v{vF}, v{vF}, v{Lx}")
            A(f"v_fma_f32 v{vT}, v{vT}, v{vPst+1}, v{vF}")
            A(f"v_rcp_f32 v{vT}, v{vT}")
            A(f"v_mul_f32 v{vFac+br}, v{vF}, v{vT}")
        return ld, ev
    def proj_chunks(br, res):
        def c_w(): ldsw(576, [OP], [vAcc])
        def c_r():
            bar()
            A(f"ds_read_b32 v{vU}, v{vLdsO} offset:{OP}")
            A(f"ds_read_b32 v{vU+1}, v{vE2} offset:{OP}")
            if br == 1: stamp('bar')
            A("s_waitcnt lgkmcnt(0)")
            for q in ("quad_perm:[1,0,3,2]", "quad_perm:[2,3,0,1]"):
                for r in (vU, vU + 1):
                    A(f"v_add_f32_dpp v{r}, v{r}, v{r} {q} {DPPF}")
            for r in (vU, vU + 1): A(f"v_mul_f32 v{r}, v{r}, v{vFac+br}")
            A(f"v_cvt_pk_bf16_f32 v{vU}, v{vU}, v{vU}")
            A(f"v_cvt_pk_bf16_f32 v{vU+1}, v{vU+1}, v{vU+1}")
            need(("wo", br, 39))
            ands(vA0, vU, 0)
        def mf(cb, tq, a):
            i = tq * 5 + cb
            c = "0" if tq == 0 else f"v[{vO+4*cb}:{vO+4*cb+3}]"
            A(f"v_mfma_f32_16x16x32_bf16 v[{vO+4*cb}:{vO+4*cb+3}], v[{a}:{a+3}], a[{4*i}:{4*i+3}], {c}")
        def mm(tq):
            def f():
                cur = vA0 if tq % 2 == 0 else vA1; nxt = vA1 if tq % 2 == 0 else vA0
                for cb in range(5):
                    mf(cb, tq, cur)
                    if cb == 0 and tq < 7: ands(nxt, vU + ((tq + 1) >> 2), 4 * ((tq + 1) & 3))
            return f
        def c_w2(): ldsw(2560, [OUTP + 512 * cb for cb in range(5)], [vO + 4 * cb for cb in range(5)])
        def mmcb():
            Aq = [vA0] + [vRing + 4 * q for q in range(1, 8)]
            def wr(cb):
                A("s_mov_b32 exec_hi, 0")
                A(f"ds_write_b128 v{vE1}, v[{vO+4*cb}:{vO+4*cb+3}] offset:{OUTP + 512*cb}")
                A("s_mov_b32 exec_hi, -1")
            for tq in range(8):
                mf(0, tq, Aq[tq])
                if tq < 7: ands(Aq[tq + 1], vU + ((tq + 1) >> 2), 4 * ((tq + 1) & 3))
                mf(1, tq, Aq[tq])
            A(f"s_mul_i32 s{sTmp}, s3, 2560")
            A(f"v_add_u32 v{vE1}, s{sTmp}, v{vLdsA}")
            for cb in (2, 3, 4):
                for tq in range(8): mf(cb, tq, Aq[tq])
                if cb == 2: wr(0)
                wr(cb - 1)
            wr(4)
        def c_sum():
            A(f"v_lshlrev_b32 v{vE1}, 4, v0")
            bar()
            for w in range(4):
                A(f"ds_read_b128 v[{vSc+4*w}:{vSc+4*w+3}], v{vE1} offset:{OUTP+2560*w}")
            for w in range(1, 4):
                A(f"s_waitcnt lgkmcnt({3-w})" if (br == 1 and not diag) else "s_waitcnt lgkmcnt(0)")
                for e in range(4):
                    A(f"v_add_f32 v{vSc+e}, v{vSc+e}, v{vSc+4*w+e}")
            for e in range(4):
                A(f"v_bfi_b32 v{res+e}, 1, v{vOldP[br]+e}, v{vSc+e}")
        def s_w():
            c_w()
            if br == 0:
                for k in range(20): A(f"v_mov_b32 v{vO+k}, 0")
        def sands(dst, u):
            for k in range(4):
                A(f"v_and_b32_dpp v{dst+k}, v{vU + (k >> 1)}, v{vSm + (k & 1)} row_newbcast:{4*u} {DPPF}")
        def s_r():
            bar()
            A(f"ds_read_b64 v[{vU}:{vU+1}], v{vLdsO} offset:{OP}")
            if br == 1: stamp('bar')
            A("s_waitcnt lgkmcnt(0)")
            for q in ("quad_perm:[1,0,3,2]", "quad_perm:[2,3,0,1]"):
                for r in (vU, vU + 1):
                    A(f"v_add_f32_dpp v{r}, v{r}, v{r} {q} {DPPF}")
            for r in (vU, vU + 1): A(f"v_mul_f32 v{r}, v{r}, v{vFac+br}")
            for r in (vU, vU + 1): A(f"v_cvt_pk_bf16_f32 v{r}, v{r}, v{r}")
            need(("wo", br, 39))
            sands(vA0, 0)
        def sf(cb, u, a):
            i = (u * 5 + cb) * 8
            A(f"v_smfmac_f32_16x16x64_bf16 v[{vO+4*cb}:{vO+4*cb+3}], v[{a}:{a+3}], a[{i}:{i+7}], v{vSm+2}")
        def sm(u):
            def f():
                cur = vA0 if u % 2 == 0 else vA1; nxt = vA1 if u % 2 == 0 else vA0
                for cb in range(5):
                    sf(cb, u, cur)
                    if cb == 0 and u < 3: sands(nxt, u + 1)
            return f
        def smcb():
            Aq = [vA0] + [vRing + 4 * q for q in range(1, 4)]
            def wr(cb):
                A("s_mov_b32 exec_hi, 0")
                A(f"ds_write_b128 v{vE1}, v[{vO+4*cb}:{vO+4*cb+3}] offset:{OUTP + 512*cb}")
                A("s_mov_b32 exec_hi, -1")
            for u in range(4):
                sf(0, u, Aq[u])
                if u < 3: sands(Aq[u + 1], u + 1)
                sf(1, u, Aq[u])
            A(f"s_mul_i32 s{sTmp}, s3, 2560")
            A(f"v_add_u32 v{vE1}, s{sTmp}, v{vLdsA}")
            for cb in (2, 3, 4):
                for u in range(4): sf(cb, u, Aq[u])
                if cb == 3: wr(0); wr(1)
                if cb == 4: wr(2); wr(3)
            wr(4)
        if smf and br == 1: return [s_w, s_r, smcb, c_sum]
        if smf: return [s_w, s_r] + [sm(u) for u in range(4)] + [c_w2, c_sum]
        if br == 1: return [c_w, c_r, mmcb, c_sum]
        return [c_w, c_r] + [mm(q) for q in range(8)] + [c_w2, c_sum]
    def poll(key):
        wsld((key, 0), 4, vD, vCon, f"s{sC0}")
        wsld((key, 1), 4, vD + 4, vCon, f"s{sC1}")

    def pretail():
        if smf:
            for k in range(20): A(f"v_mov_b32 v{vO+k}, 0")
        A(f"s_mov_b32 s{sTmp2}, {4*64*ROW}")
        A(f"s_mov_b32 s{sSpin}, 0")
        A(f"v_lshrrev_b32 v{vTmp}, 4, v0")
        A(f"v_mul_u32_u24 v{vTmp}, 144, v{vTmp}")
        A(f"v_and_b32 v{vTmp2}, 7, v0")
        A(f"v_lshl_add_u32 v{vTmp}, v{vTmp2}, 4, v{vTmp}")
        A(f"v_lshrrev_b32 v{vTmp2}, 4, v{vLane}")
        A(f"v_lshl_add_u32 v{vTmp2}, s3, 1, v{vTmp2}")
        A(f"v_lshlrev_b32 v{vTmp2}, 4, v{vTmp2}")
        A(f"v_mul_u32_u24 v{vT}, 144, v{vC}")
        A(f"v_add_u32 v{vTmp2}, v{vTmp2}, v{vT}")

    extras = {T: [] for T in range(32)}
    fills = {T: [] for T in range(32)}
    def spread(rng, fn):
        Ts = list(range(rng[0], rng[1])); n = len(Ts)
        for a, T in enumerate(Ts):
            extras[T] += [(lambda i=i: fn(i)) for i in range(40 * a // n, 40 * (a + 1) // n)]
    spread(wqB, lambda i: wqload(1, i))
    spread(woA, lambda i: woload(0, i))
    spread(woB, lambda i: woload(1, i))
    if pro == 2: extras[0] = late0
    fills[qB] = q_chunks(1, 3)
    pa = proj_chunks(0, vRes)
    fills[epA] = pa[:len(pa) // 2]
    fills[epA + 1] = pa[len(pa) // 2:]
    fills[3].append(notold)
    assert wqB[1] <= qB < 7 and woA[0] > qB and woA[1] <= epA and woB[0] > epA + 1 and 7 < stT[0] < 15 and 23 < stT[1] < 30
    dyn0 = (min(cps) + 1) if cps else 99
    stT = list(stT)

    def body(T):
        ph, t = T >> 3, T & 7
        br = ph >> 1; isK = (ph & 1) == 0
        issue = 0 < T < 31
        ex = list(extras[T]); nx = len(ex)
        fl = list(fills[T]); nf = len(fl); post = {}
        if issue:
            if t == 7:
                setbase(sS, (pV[br] if isK else pK[1]))
                A(f"s_mov_b32 s{sO0}, s{sBase}")
                A(f"s_add_u32 s{sO1}, s{sBase}, 0x40000")
            else:
                nexttask()
        if T == 1: linesetup()
        if T in stT:
            ld, ev = partner(stT.index(T)); ld(); post[12] = ev
        if T in cps:
            ci = list(cps).index(T)
            L = newlbl()
            A("s_cmp_lg_u32 s3, 0")
            A(f"s_cbranch_scc1 {L}")
            A(f"s_atomic_xor s{sOne}, s[{sFl}:{sFl+1}], {hex(4*ci)}")
            A(f"{L}:")
            A(f"s_mov_b32 s{sTmp2}, {FLAGS + 4*ci}")
            wsld(("fcur", ci), 1, vFcur, vFo, f"s{sTmp2}")
            def evalf():
                need(("fcur", ci))
                A(f"v_xor_b32 v{vFcur}, v{vFcur}, v{vFold+ci}")
                A(f"v_and_b32 v{vFcur}, 1, v{vFcur}")
                A(f"v_cmp_eq_u32 s[{sTmp}:{sTmp+1}], 1, v{vFcur}")
                A(f"s_and_b32 s{sTmp}, s{sTmp}, -2")
                A(f"s_bcnt1_i32_b32 s{sTmp}, s{sTmp}")
                A(f"s_mul_i32 s{sTmp}, s{sTmp}, {int(round(gp*64))}")
                A(f"s_sub_i32 s{sTmp}, s{sTmp}, {int(round(mid*gp*64)) - 32}")
                A(f"s_ashr_i32 s{sTmp}, s{sTmp}, 6")
                A(f"v_mov_b32 v{vKk}, s{sTmp}")
                A(f"v_mov_b32 v{vFcur}, {KK}")
                L2 = newlbl()
                A("s_cmp_lg_u32 s3, 0")
                A(f"s_cbranch_scc1 {L2}")
                A(f"ds_write_b32 v{vFcur}, v{vKk}")
                A(f"{L2}:")
            assert 9 not in post
            post[9] = evalf
        if T - 1 in cps:
            A(f"v_mov_b32 v{vFcur}, {KK}")
            A(f"ds_read_b32 v{vKk}, v{vFcur}")
            A("s_waitcnt lgkmcnt(0)")
            A(f"v_readfirstlane_b32 s{sKk}, v{vKk}")
        km0 = km[0]
        last = Wlast and T >= 31 - nlast
        dyn = T >= dyn0 and issue and not last
        if dyn:
            A(f"s_cmp_gt_i32 s{sKk}, 0")
            A(f"s_cselect_b64 vcc, -1, 0")
            A(f"s_sub_i32 s{sKk}, s{sKk}, 1")
        def iss(n):
            if T == 0 and pro == 2 and (km[0] < 32) and (n >= 16 - (32 - km0) or True):
                thr(W); knext()
            if issue:
                w = W + (1 if (xw and (nx or xall) and n % xw == xw - 1) else 0)
                if dyn: thrdyn(w)
                else: thr(Wlast if last else w)
                kvload(T + 1, n)
            for _ in range((n + 1) * nx // 16 - n * nx // 16): ex.pop(0)()
            for _ in range((n + 1) * nf // 16 - n * nf // 16): fl.pop(0)()
            if n in post: post[n]()
        if T == 31: pretail()
        if T == pubT:
            op(("pub", 0), f"buffer_store_dwordx4 v[{vRes}:{vRes+3}], v{vPub}, s[{sWS}:{sWS+3}], 0 offen {pubf}")
        if isK:
            vQ = vQA if br == 0 else vQB
            def dots(tr, base):
                need(("kv", T, base + 3))
                for k in range(4):
                    for j in range(4):
                        c = "0" if k == 0 else f"v{tr+j}"
                        A(f"v_dot2_f32_bf16 v{tr+j}, v{slot(T, base+j)+k}, v{vQ+k}, {c}")
            def red():
                for (d, s, ctl, bm) in ((0, 0, "row_ror:8", 3), (1, 1, "row_ror:8", 3), (0, 2, "row_ror:8", 12), (1, 3, "row_ror:8", 12),
                                        (0, 0, "row_half_mirror", 5), (0, 1, "row_half_mirror", 10),
                                        (0, 0, "quad_perm:[1,0,3,2]", 15), (0, 0, "quad_perm:[2,3,0,1]", 15)):
                    for tr in (vTA, vTB):
                        A(f"v_add_f32_dpp v{tr+d}, v{tr+s}, v{tr+s} {ctl} row_mask:0xf bank_mask:{hex(bm)}")
            S = vSs + t
            m1 = lambda: A(f"v_cndmask_b32 v{S}, v{vTA}, v{vTB}, s[{sM1}:{sM1+1}]")
            def m2():
                A(f"v_cndmask_b32 v{S}, v{S}, v{vTA}, s[{sM2}:{sM2+1}]")
                A(f"v_cndmask_b32 v{S}, v{S}, v{vTB}, s[{sM3}:{sM3+1}]")
            if t < 7:
                dots(vTA, 0); iss(0); iss(1)
                dots(vTB, 4); iss(2); iss(3)
                red(); iss(4); iss(5)
                m1(); iss(6); iss(7)
                dots(vTA, 8); iss(8); iss(9)
                dots(vTB, 12); iss(10); iss(11)
                red(); iss(12); iss(13)
                m2(); iss(14); iss(15)
            else:
                assert nf == 0
                dots(vTA, 0); iss(0); iss(1)
                dots(vTB, 4); iss(2); iss(3)
                red(); iss(4)
                m1()
                dots(vTA, 8); iss(5); iss(6)
                dots(vTB, 12); iss(7); iss(8)
                red(); iss(9)
                m2()
                for a, f in enumerate(softmax_chunks(br)):
                    f(); iss(10 + a)
        else:
            lane = lambda n: 4 * (n & 3) + (n >> 2)
            Pk = vSs + t
            ands(vA0, Pk, lane(0))
            for n in range(16):
                cur = vA0 if n % 2 == 0 else vA1; nxt = vA1 if n % 2 == 0 else vA0
                if n < 15: ands(nxt, Pk, lane(n + 1))
                need(("kv", T, n))
                r = vRing + 4 * n
                c = "0" if (t == 0 and n == 0) else f"v[{vAcc}:{vAcc+3}]"
                A(f"v_mfma_f32_16x16x32_bf16 v[{vAcc}:{vAcc+3}], v[{cur}:{cur+3}], v[{r}:{r+3}], {c}")
                iss(n)
        assert not ex and not fl and (pro != 2 or km[0] == 32)
    for T in range(32):
        A(f"; ---- task {T}")
        stamp(f"T{T}")
        body(T)
    stamp("end")
    pb = proj_chunks(1, vSc + 16)
    pb[0]()
    for f in pb[1:-1]: f()
    stamp("mm")
    pb[-1]()
    op(("pub", 1), f"buffer_store_dwordx4 v[{vSc+16}:{vSc+19}], v{vPub}, s[{sWS}:{sWS+3}], s{sTmp2} offen {pubf}")
    stamp("pub")
    A(f"s_cmp_ge_u32 s{sH}, 20")
    A("s_cbranch_scc1 L_fin")
    need(("old", 3))
    poll("p0")
    need(("p0", 1))
    def missing(r):
        for e in range(8):
            A(f"v_xor_b32 v{vSc+e}, v{r+e}, v{vOldC+e}")
        for (a, b) in ((0, 1), (2, 3), (4, 5), (6, 7), (0, 2), (4, 6), (0, 4)):
            A(f"v_and_b32 v{vSc+a}, v{vSc+a}, v{vSc+b}")
        A(f"v_and_b32 v{vSc}, 1, v{vSc}")
        A(f"v_cmp_eq_u32 vcc, 0, v{vSc}")
    def rawpoll(r):
        A(f"buffer_load_dwordx4 v[{r}:{r+3}], v{vCon}, s[{sWS}:{sWS+3}], s{sC0} offen sc1")
        A(f"buffer_load_dwordx4 v[{r+4}:{r+7}], v{vCon}, s[{sWS}:{sWS+3}], s{sC1} offen sc1")
    A("L_chk:")
    missing(vD)
    A("s_and_b64 exec, exec, vcc")
    A("s_cbranch_execz L_got")
    A(f"s_add_u32 s{sSpin}, s{sSpin}, 1")
    A(f"s_cmp_ge_u32 s{sSpin}, 0x40000")
    A("s_cbranch_scc1 L_got")
    if slA or slB or dbl:
        A(f"s_bcnt1_i32_b64 s{sTmp}, exec")
        A(f"s_cmp_le_u32 s{sTmp}, {nB}")
        A("s_cbranch_scc1 L_pc")
        A(f"s_cmp_le_u32 s{sTmp}, {nA}")
        A("s_cbranch_scc1 L_pb")
        if slA: A(f"s_sleep {slA}")
        A("L_pb:")
        if slB: A(f"s_sleep {slB}")
        if not dbl: A("L_pc:")
    rawpoll(vD)
    A("s_waitcnt vmcnt(0)")
    A("s_branch L_chk")
    if dbl:
        P0, P1 = vRing, vRing + 8
        A("L_pc:")
        rawpoll(P0)
        A(f"s_sleep {dly}")
        rawpoll(P1)
        A("L_f:")
        for a in (P0, P1):
            A("s_waitcnt vmcnt(2)")
            missing(a)
            A(f"s_mov_b64 s[{sM1}:{sM1+1}], vcc")
            A("s_andn2_b64 exec, exec, vcc")
            for e in range(8): A(f"v_mov_b32 v{vD+e}, v{a+e}")
            A(f"s_mov_b64 exec, s[{sM1}:{sM1+1}]")
            A("s_cbranch_execz L_got")
            rawpoll(a)
        A(f"s_add_u32 s{sSpin}, s{sSpin}, 1")
        A(f"s_cmp_lt_u32 s{sSpin}, 0x40000")
        A("s_cbranch_scc1 L_f")
    A("L_got:")
    stamp("got")
    A("s_mov_b64 exec, -1")
    for e in range(8): A(f"v_and_b32 v{vD+e}, -2, v{vD+e}" + ("                 ; drop the validity bit" if e == 0 else ""))
    for e in range(4): A(f"v_add_f32 v{vD+e}, v{vD+e}, v{vD+4+e}")
    for e in range(4): A(f"v_add_f32_dpp v{vD+e}, v{vD+e}, v{vD+e} row_ror:8 {DPPF}")
    A("s_mov_b32 exec_lo, 0x00ff00ff")
    A("s_mov_b32 exec_hi, 0x00ff00ff")
    A(f"ds_write_b128 v{vTmp}, v[{vD}:{vD+3}] offset:{QP}")
    A("s_mov_b64 exec, -1")
    bar()
    A(f"ds_read_b128 v[{vD}:{vD+3}], v{vTmp2} offset:{QP}")
    A("s_waitcnt lgkmcnt(0)")
    for ctl in RED64[:4]:
        for e in range(4):
            A(f"v_add_f32_dpp v{vD+e}, v{vD+e}, v{vD+e} {ctl}")
    A(f"v_cvt_pk_bf16_f32 v{vD}, v{vD}, v{vD+1}")
    A(f"v_cvt_pk_bf16_f32 v{vD+1}, v{vD+2}, v{vD+3}")
    A("s_mov_b32 exec_lo, 0x10001")
    A("s_mov_b32 exec_hi, 0")
    A(f"buffer_store_dwordx2 v[{vD}:{vD+1}], v{vOutO}, s[{sOUT}:{sOUT+3}], 0 offen {outf}")
    A("L_fin:")
    if diag == 3:
        stamp()
        A("s_waitcnt lgkmcnt(0)")
        A(f"s_sub_u32 s{sTmp}, s{sST+2*ampk}, s{sST+2*ampj}")
        A(f"s_mul_i32 s{sTmp}, s{sTmp}, {amp}")
        A(f"s_add_u32 s{sTmp}, s{sTmp}, {fix}")
        A("L_hold:")
        A(f"s_memrealtime s[{sM1}:{sM1+1}]")
        A("s_waitcnt lgkmcnt(0)")
        A(f"s_sub_u32 s{sTmp2}, s{sM1}, s{sST}")
        A(f"s_cmp_lt_u32 s{sTmp2}, s{sTmp}")
        A("s_cbranch_scc1 L_hold")
    if diag == 1:
        stamp()
        A("s_mov_b64 exec, -1")
        A(f"s_getreg_b32 s{sTmp}, hwreg(HW_REG_XCC_ID)")
        A("s_waitcnt lgkmcnt(0)")
        A(f"v_mov_b32 v{vStamp}, 0")
        for k in range(nstamp[0]):
            A(f"v_writelane_b32 v{vStamp}, s{sST+2*k}, {k}")
        A(f"v_writelane_b32 v{vStamp}, s{sTmp}, 14")
        A(f"v_writelane_b32 v{vStamp}, s{sSpin}, 15")
        A(f"s_add_u32 s{sE}, s28, {DIAG_OFF}")
        A(f"s_addc_u32 s{sE+1}, s29, 0")
        A(f"s_mov_b32 s{sE+2}, 0x10000")
        A(f"s_lshl_b32 s{sTmp}, s2, 2")
        A(f"s_add_u32 s{sTmp}, s{sTmp}, s3")
        A(f"s_lshl_b32 s{sTmp}, s{sTmp}, 6")
        A(f"v_lshlrev_b32 v{vTmp}, 2, v{vLane}")
        A("s_mov_b64 exec, 0xffff")
        A(f"buffer_store_dword v{vStamp}, v{vTmp}, s[{sE}:{sE+3}], s{sTmp} offen")
        A(f"; nstamp={nstamp[0]}")
    A("L_end:")
    A("s_endpgm")
    code = A.finish()
    txt = HEADER + "; Override launch geometry by editing the next line (default: block=256,\n; grid=ceil(out_elems/256), lds=0). Harness parses it; keep it on one line.\n"
    txt += "; @launch grid=(256,1,1) block=(256,1,1) lds=16384\n" + DOC
    txt += f""".amdgcn_target "amdgcn-amd-amdhsa--gfx950"
.text
.globl {name}
.p2align 8
.type {name},@function
""" + code + f""".section .rodata,"a"
.p2align 6
.amdhsa_kernel {name}
  .amdhsa_next_free_vgpr {424 if pref else 416}
  .amdhsa_next_free_sgpr 102
  .amdhsa_accum_offset 256
  .amdhsa_group_segment_fixed_size 0
  .amdhsa_kernarg_size 104
  .amdhsa_user_sgpr_count 2
  .amdhsa_user_sgpr_kernarg_segment_ptr 1
  .amdhsa_system_sgpr_workgroup_id_x 1
  .amdhsa_float_denorm_mode_32 3
.end_amdhsa_kernel
"""
    return txt

if __name__ == "__main__":
    import json
    kw = json.loads(sys.argv[1]) if len(sys.argv) > 1 else {}
    sys.stdout.write(gen(**kw))
```

```python
import sys, struct
from asmlib import Asm

NAME = "concat_heads__mha_block_cached__gqa_block_cached__decode_kernel"
HEADER = open("concat_heads__mha_block_cached__gqa_block_cached__decode.s.ref").read().split("; Override launch")[0]
NSTAMP = 10
DIAG_OFF = 0x200000
LOG2E = 1.4426950408889634
ROW = 2560
FLAGS = 8 * 64 * ROW

DOC = """;
; Structure
"""

def f2u(x): return struct.unpack("<I", struct.pack("<f", x))[0]

def gen(W=5, kvf="nt", wf="", pubf="sc1", diag=0, kper=2, swz=31,
        wqB=(1, 6), qB=6, woA=(7, 16), epA=16, woB=(18, 28), Wlast=8, nlast=1, pubT=31, stT=(10, 26),
        cps=(8, 17, 24), npeer=8, mid=2.5, gp=1.4, boost=1, smf=1, dbl=0, dly=8, xw=0, xall=0, pro=1, lead=18, k0=5, prb=2, fake=0, pref=0, outf='', delay=0,
        slA=8, slB=3, nA=32, nB=16, stl=('karg', 'issue', 'q', 'T8', 'T16', 'T24', 'end', 'bar'),
        amp=0, ampk=0, ampj=0, fix=15000, name=NAME):
    A = Asm()
    pX, pK, pV, pWQ, pWO = (4, 14), (6, 16), (8, 18), (10, 20), (12, 22)
    sS, sE, sWS, sOUT = 32, 36, 40, 44
    sB, sH, sHf, sO0, sO1, sBase, sTmp, sTmp2, sM, sSpin, sEo, sWQo, sWOo, sC0, sC1, sR = range(48, 64)
    sM1, sM2, sM3 = 64, 66, 68
    sTg = 70
    sJ, sK8, sK5, sW, sKk = 71, 72, 73, 74, 75
    sST = 76
    sFl, sOne, sPo = 96, 98, 99
    sSt = (100, 30)
    vLane, vWQo, vWOo, vXo, vPub, vCon, vOutO, vTmp, vTmp2, vC, vLdsA, vLdsO, vLdsS, vStamp, vZero = range(1, 16)
    vMk = 16; vQA = 20; vQB = 24; vA0 = 28; vA1 = 32; vAcc = 36; vAq = 40
    vTA, vTB = 44, 48
    vM, vL = 52, 53; vT, vF = 54, 55
    vX = 56
    vXo3 = (vXo, vQB, vQB + 1)
    vE1, vE2 = 62, 63
    vRing = 64
    vOff = 128
    vSs = 136
    vSc = 144
    vRing2 = 176
    vO = 176
    vPst = 196
    vFac = 198
    vOldS = 200
    vOwnS = 204
    vD = 212
    vRes = 220
    vStat = (224, 226)
    vU = 228
    vFo, vKk, vFold, vFcur = 230, 231, 232, 236
    vSm = 208
    vOldP = (240, 244)
    vOldC = 248
    QP, OP, ST, KK, OUTP = 0, 2048, 4352, 4400, 4608
    DPPF = "row_mask:0xf bank_mask:0xf"
    RED64 = ("row_ror:8 " + DPPF, "row_ror:4 " + DPPF, "row_ror:2 " + DPPF, "row_ror:1 " + DPPF,
             "row_bcast:15 row_mask:0xa bank_mask:0xf", "row_bcast:31 row_mask:0xc bank_mask:0xf")
    nstamp = [0]
    def stamp(kind=None):
        if kind is not None and kind not in stl: return
        if diag:
            A(f"s_memrealtime s[{sST+2*nstamp[0]}:{sST+2*nstamp[0]+1}]")
            nstamp[0] += 1
    class St: pass
    st = St(); st.issued = 0; st.landed = 0; st.pos = {}; st.kv = []
    lbl = [0]
    def newlbl():
        lbl[0] += 1; return f"L_t{lbl[0]}"
    def op(key, text):
        A(text); st.pos[key] = st.issued; st.issued += 1
        assert st.issued - st.landed <= 63
    def wait(n):
        A(f"s_waitcnt vmcnt({n})"); st.landed = max(st.landed, st.issued - n)
    def need(key):
        if st.landed <= st.pos[key]: wait(st.issued - st.pos[key] - 1)
    def thr(w):
        p = st.kv[len(st.kv) - w]
        if st.landed <= p: wait(st.issued - p - 1)
    def thrdyn(W):
        thr(W + boost)
        L = newlbl()
        A(f"s_cbranch_vccnz {L}")
        A(f"s_waitcnt vmcnt({st.issued - st.kv[len(st.kv) - W] - 1})")
        A(f"{L}:")
    def setbase(s, p): A(f"s_mov_b64 s[{s}:{s+1}], s[{p}:{p+1}]")
    def srd(s, p, n):
        setbase(s, p); A(f"s_mov_b32 s{s+2}, {n}"); A(f"s_mov_b32 s{s+3}, 0x20000")

    A(f"{name}:")
    stamp()
    A("s_cmp_ge_u32 s2, 256")
    A("s_cbranch_scc1 L_end")
    if delay:
        A("s_and_b32 s3, s2, 0x23")
        A("s_cmp_lg_u32 s3, 0x21")
        A("s_cbranch_scc1 L_nodelay")
        A(f"s_mov_b32 s3, {delay}")
        A("L_delay:")
        A("s_sleep 40")
        A("s_sub_u32 s3, s3, 1")
        A("s_cmp_lg_u32 s3, 0")
        A("s_cbranch_scc1 L_delay")
        A("L_nodelay:")
    A("s_load_dwordx16 s[4:19], s[0:1], 0")
    A("s_load_dwordx8 s[20:27], s[0:1], 64")
    A("s_load_dwordx2 s[28:29], s[0:1], 96")
    A(f"v_lshrrev_b32 v{vTmp}, 6, v0")
    A(f"v_and_b32 v{vLane}, 63, v0")
    A(f"v_readfirstlane_b32 s3, v{vTmp}                    ; wave")
    A(f"s_lshr_b32 s{sB}, s2, 6")
    A(f"s_and_b32 s{sH}, s2, 31")
    A(f"s_bfe_u32 s{sHf}, s2, 0x10005")
    A(f"v_and_b32 v{vC}, 15, v0                            ; c = lane & 15")
    A(f"v_lshrrev_b32 v{vTmp}, 4, v{vLane}                 ; g = lane >> 4")
    A(f"v_lshlrev_b32 v{vTmp2}, 4, v{vC}")
    A(f"v_lshl_add_u32 v{vWQo}, v{vTmp}, 13, v{vTmp2}      ; g*8192 + c*16")
    A(f"s_lshr_b32 s{sJ}, s2, 5")
    A(f"s_mul_i32 s{sWQo}, s3, {160*8192}")
    A(f"s_lshl_b32 s{sTmp}, s{sH}, 8")
    A(f"s_add_u32 s{sWQo}, s{sWQo}, s{sTmp}")
    A(f"s_mul_i32 s{sTmp}, s{sJ}, {5*32768}")
    A(f"s_add_u32 s{sWQo}, s{sWQo}, s{sTmp}")
    if fake:
        A(f"v_lshlrev_b32 v{vWQo}, 4, v{vLane}")
        A(f"s_lshl_b32 s{sWQo}, s{sH}, 2")
        A(f"s_add_u32 s{sWQo}, s{sWQo}, s3")
        A(f"s_lshl_b32 s{sWQo}, s{sWQo}, 3")
        A(f"s_add_u32 s{sWQo}, s{sWQo}, s{sJ}")
        A(f"s_mul_i32 s{sWQo}, s{sWQo}, 5120")
    A(f"s_mov_b32 s{sE+2}, 5242880")
    A(f"s_mov_b32 s{sE+3}, 0x20000")
    A(f"s_mov_b32 s{sEo}, s{sWQo}")
    A(f"s_lshr_b32 s{sM}, s2, 3")
    A(f"s_add_u32 s{sM}, s{sM}, s2")
    A(f"s_and_b32 s{sM}, s{sM}, {swz}")
    A(f"v_lshlrev_b32 v{vE1}, 4, v{vLane}")
    def voff(j):
        A(f"s_add_u32 s{sTmp}, s{sM}, {j}")
        A(f"s_and_b32 s{sTmp}, s{sTmp}, 7")
        A(f"v_lshl_add_u32 v{vOff+j}, s{sTmp}, 10, v{vE1}")
    voff(0)
    A(f"s_lshr_b32 s{sTmp}, s{sM}, 3")
    A(f"s_xor_b32 s{sTmp}, s{sTmp}, s3")
    A(f"s_lshl_b32 s{sTmp}, s{sTmp}, 13")
    A(f"s_lshl_b32 s{sBase}, s{sB}, 6")
    A(f"s_lshl_b32 s{sTmp2}, s{sH}, 1")
    A(f"s_add_u32 s{sBase}, s{sBase}, s{sTmp2}")
    A(f"s_add_u32 s{sBase}, s{sBase}, s{sHf}")
    A(f"s_mul_i32 s{sC0}, s{sBase}, {ROW}")
    A(f"s_lshl_b32 s{sBase}, s{sBase}, 19")
    A(f"s_add_u32 s{sBase}, s{sBase}, s{sTmp}")
    A(f"s_mov_b32 s{sO0}, s{sBase}")
    A(f"s_mov_b32 s{sS+2}, {128 << 20}")
    A(f"s_mov_b32 s{sS+3}, 0x20000")
    A("s_waitcnt lgkmcnt(0)")
    stamp("karg")
    setbase(sE, pWQ[0])
    setbase(sS, pK[0])
    def slot(T, n): return (vRing2 if T == 0 else vRing) + 4 * n
    def kvload(T, n):
        st.kv.append(st.issued); r = slot(T, n)
        op(("kv", T, n), f"buffer_load_dwordx4 v[{r}:{r+3}], v{vOff + n % 8}, s[{sS}:{sS+3}], s{sO0 if n < 8 else sO1} offen {kvf}")
    def step(i, wrap, k):
        A(f"s_cmp_eq_u32 s{sJ}, {8 - (i + 1) // 5}")
        A(f"s_cselect_b32 s{sR}, {hex(wrap & 0xffffffff)}, s{k}")
        A(f"s_add_u32 s{sEo}, s{sEo}, s{sR}")
    def wqload(br, t):
        op(("wq", br, t), f"buffer_load_dwordx4 a[{4*t}:{4*t+3}], v{vWQo}, s[{sE}:{sE+3}], s{sEo} offen {wf}")
        if t < 39:
            stp = 1024 if fake else 0x8000
            if t % 5 == 4: step(t, -39 * stp, sK8)
            else: A(f"s_add_u32 s{sEo}, s{sEo}, {stp}")
    def woload(br, i):
        if i == 0:
            setbase(sE, pWO[br]); A(f"s_mov_b32 s{sEo}, s{sWOo}")
        a = 4 * i if not smf else ((i // 5 & 3) * 5 + i % 5) * 8 + 4 * (i // 20)
        op(("wo", br, i), f"buffer_load_dwordx4 a[{a}:{a+3}], v{vWOo}, s[{sE}:{sE+3}], s{sEo} offen offset:{(i%5)*256} {wf}")
        if i % 5 == 4 and i < 39: step(i, -7 * 5120, sK5)
    def xload(br):
        srd(sOUT, pX[br], 5120)
        for i in range(3):
            op(("x", br, i), f"buffer_load_ushort v{vX+3*br+i}, v{vXo3[i]}, s[{sOUT}:{sOUT+3}], 0 offen")
    def xA():
        A(f"v_mul_u32_u24 v{vWOo}, 1280, v{vTmp}")
        A(f"v_add_u32 v{vWOo}, v{vWOo}, v{vTmp2}               ; g*1280 + c*16")
        A(f"s_mul_i32 s{sTmp}, s3, 320")
        A(f"s_mul_i32 s{sTmp2}, s{sB}, 1280")
        A(f"s_add_u32 s{sTmp}, s{sTmp}, s{sTmp2}")
        A(f"v_lshl_add_u32 v{vTmp2}, v{vTmp}, 1, s{sTmp}")
        A(f"s_mul_i32 s{sTmp}, s{sJ}, 5")
        for i in range(3):
            A(f"v_add_u32 v{vXo3[i]}, s{sTmp}, v{vC}")
            if i < 2: A(f"s_add_u32 s{sTmp}, s{sTmp}, 16")
        for i in range(3): A(f"v_subrev_u32 v{vTA+i}, 40, v{vXo3[i]}")
        for i in range(3): A(f"v_min_u32 v{vXo3[i]}, v{vXo3[i]}, v{vTA+i}")
        for i in range(3): A(f"v_lshl_add_u32 v{vXo3[i]}, v{vXo3[i]}, 3, v{vTmp2}")
        xload(0)
    def nexttask():
        A(f"s_add_u32 s{sO0}, s{sO0}, 0x8000")
        A(f"s_add_u32 s{sO1}, s{sO1}, 0x8000")
    def wooff():
        A(f"s_lshl_b32 s{sWOo}, s{sH}, 2")
        A(f"s_add_u32 s{sWOo}, s{sWOo}, s3")
        A(f"s_lshl_b32 s{sWOo}, s{sWOo}, 3")
        A(f"s_add_u32 s{sWOo}, s{sWOo}, s{sJ}")
        A(f"s_mul_i32 s{sWOo}, s{sWOo}, {4*1280}               ; (h*128 + 32w + 4j)*1280")
    km = [0]
    def knext():
        m = km[0]; km[0] += 1
        if m == 16: nexttask()
        kvload(m >> 4, m & 15)
        if m + 1 < 8: voff(m + 1)
    def wq0(t):
        wqload(0, t)
        if t == 0:
            A(f"s_mov_b32 s{sK8}, {1024 if fake else 0x8000}")
            A(f"s_movk_i32 s{sK5}, 5120")
            A(f"s_add_u32 s{sO1}, s{sBase}, 0x40000")
        if t == 4: xA()
    plist = []; widx = {}
    if pro == 2:
        nk = 0
        for t in range(40):
            widx[t] = len(plist); plist.append(lambda t=t: wq0(t))
            if pref and t == 4:
                def pf(kind, i):
                    if i == 0:
                        p = {"wqB": pWQ[1], "woA": pWO[0], "woB": pWO[1]}[kind]
                        if kind == "wqB":
                            srd(sWS, p, 5242880); A(f"s_mov_b32 s{sC1}, s{sWQo}"); wooff()
                        else: setbase(sWS, p)
                    if kind == "wqB":
                        op(("pf", kind, i), f"buffer_load_dwordx4 a[160:163], v{vWQo}, s[{sWS}:{sWS+3}], s{sC1} offen {wf}")
                        if i < 4: A(f"s_add_u32 s{sC1}, s{sC1}, 0x8000")
                    else:
                        op(("pf", kind, i), f"buffer_load_dwordx4 a[160:163], v{vWOo}, s[{sWS}:{sWS+3}], s{sWOo} offen offset:{i*256} {wf}")
                for kind in ("wqB", "woA", "woB")[:pref]:
                    for i in range(5): plist.append(lambda kind=kind, i=i: pf(kind, i))
            while t + 1 >= k0 and nk * kper <= t + 1 - k0:
                plist.append(knext); nk += 1
        pi = [0]
        def pissue(upto):
            while pi[0] < min(upto, len(plist)):
                plist[pi[0]](); pi[0] += 1
        pissue(lead)
        assert not pref or lead >= 5 + 5 * pref
    else:
        nkv = 0
        for t in range(40):
            wqload(0, t)
            if t == 0:
                A(f"s_mov_b32 s{sK8}, {1024 if fake else 0x8000}")
                A(f"s_movk_i32 s{sK5}, 5120")
                A(f"s_add_u32 s{sO1}, s{sBase}, 0x40000")
            while nkv < 16 and (nkv + 1) * kper <= t + 1:
                kvload(0, nkv); nkv += 1
                if nkv < 8: voff(nkv)
            if t == 4: xA()
        assert nkv >= 8
        for n in range(nkv, 16): kvload(0, n)
        nexttask()
        for n in range(4): kvload(1, n)
    stamp("issue")
    srd(sWS, 28, FLAGS + 256 * 128)
    for m, v in ((sM1, 0x22222222), (sM2, 0x44444444), (sM3, 0x88888888)):
        A(f"s_mov_b32 s{m}, {hex(v)}"); A(f"s_mov_b32 s{m+1}, {hex(v)}")
    if not pref: wooff()
    A(f"v_mov_b32 v{vTmp2}, 0x7fffffff")
    A(f"v_cmp_gt_u32 vcc, 160, v0")
    A(f"v_lshlrev_b32 v{vPub}, 4, v0")
    A(f"v_add_u32 v{vPub}, s{sC0}, v{vPub}")
    A(f"v_cndmask_b32 v{vPub}, v{vTmp2}, v{vPub}, vcc")
    A(f"s_lshl_b32 s{sTmp}, s{sHf}, 2")
    A(f"s_add_u32 s{sTmp}, s{sTmp}, s{sB}")
    A(f"s_lshl_b32 s{sTmp}, s{sTmp}, 2")
    A(f"s_add_u32 s{sTmp}, s{sTmp}, s3")
    A(f"s_mul_i32 s{sC0}, s{sTmp}, {16*ROW}")
    A(f"s_lshl_b32 s{sTmp}, s{sH}, 7")
    A(f"s_add_u32 s{sC0}, s{sC0}, s{sTmp}")
    A(f"s_cmp_lt_u32 s{sH}, 20")
    A(f"s_cselect_b32 s{sC0}, s{sC0}, 0x40000000")
    A(f"s_add_u32 s{sC1}, s{sC0}, {8*ROW}")
    A(f"v_lshrrev_b32 v{vCon}, 3, v{vLane}")
    A(f"v_mul_u32_u24 v{vCon}, {ROW}, v{vCon}")
    A(f"v_and_b32 v{vTmp}, 7, v{vLane}")
    A(f"v_lshl_add_u32 v{vCon}, v{vTmp}, 4, v{vCon}        ; lane = (row 16w + lane/8 (+8), piece lane%8)")
    A(f"s_mul_i32 s{sTmp}, s{sB}, 2560")
    A(f"s_mul_i32 s{sTmp2}, s{sHf}, 1280")
    A(f"s_add_u32 s{sTmp}, s{sTmp}, s{sTmp2}")
    A(f"s_lshl_b32 s{sTmp2}, s{sH}, 6")
    A(f"s_add_u32 s{sTmp}, s{sTmp}, s{sTmp2}")
    A(f"s_lshl_b32 s{sTmp2}, s3, 4")
    A(f"s_add_u32 s{sTmp}, s{sTmp}, s{sTmp2}")
    A(f"v_lshrrev_b32 v{vOutO}, 4, v{vLane}")
    A(f"v_lshl_add_u32 v{vOutO}, v{vOutO}, 3, s{sTmp}")
    A(f"v_and_b32 v{vTmp}, 1, v{vC}")
    A(f"v_lshlrev_b32 v{vTmp}, 4, v{vTmp}")
    A(f"v_mov_b32 v{vTmp2}, 0xffff")
    A(f"v_lshlrev_b32 v{vTmp2}, v{vTmp}, v{vTmp2}")
    A(f"v_lshrrev_b32 v{vTmp}, 1, v{vC}")
    for k in range(4):
        A(f"v_cmp_eq_u32 vcc, {k}, v{vTmp}")
        A(f"v_cndmask_b32 v{vMk+k}, 0, v{vTmp2}, vcc")
    A(f"v_lshrrev_b32 v{vTmp}, 4, v{vLane}")
    A(f"v_lshlrev_b32 v{vLdsA}, 5, v{vC}")
    A(f"v_lshl_add_u32 v{vLdsA}, v{vTmp}, 4, v{vLdsA}")
    A(f"v_and_b32 v{vTmp2}, 3, v{vC}")
    A(f"v_lshlrev_b32 v{vLdsS}, 3, v{vTmp2}")
    A(f"v_mul_u32_u24 v{vTmp2}, 576, v{vTmp2}")
    if not smf:
        A(f"v_lshl_add_u32 v{vTmp2}, v{vTmp}, 2, v{vTmp2}")
        A(f"s_lshl_b32 s{sTmp}, s3, 7")
        A(f"v_add_u32 v{vTmp2}, s{sTmp}, v{vTmp2}")
        A(f"v_lshrrev_b32 v{vTmp}, 2, v{vC}")
        A(f"v_add_u32 v{vTmp}, s{sJ}, v{vTmp}")
        A(f"v_and_b32 v{vTmp}, 7, v{vTmp}")
        A(f"v_lshl_add_u32 v{vLdsO}, v{vTmp}, 4, v{vTmp2}")
        A(f"v_xor_b32 v{vTmp}, 4, v{vTmp}")
        A(f"v_lshl_add_u32 v{vE2}, v{vTmp}, 4, v{vTmp2}")
    else:
        A(f"v_and_b32 v{vE2}, 1, v{vTmp}")
        A(f"v_lshl_add_u32 v{vTmp2}, v{vE2}, 3, v{vTmp2}")
        A(f"s_lshl_b32 s{sTmp}, s3, 7")
        A(f"v_add_u32 v{vTmp2}, s{sTmp}, v{vTmp2}              ; (c&3)*576 + (32w + 2(g&1))*4")
        A(f"v_lshlrev_b32 v{vTmp}, 1, v{vTmp}")
        A(f"v_and_b32 v{vTmp}, 4, v{vTmp}")
        A(f"v_lshrrev_b32 v{vE2}, 2, v{vC}")
        A(f"v_add3_u32 v{vTmp}, v{vTmp}, v{vE2}, s{sJ}")
        A(f"v_and_b32 v{vTmp}, 7, v{vTmp}")
        A(f"v_lshl_add_u32 v{vLdsO}, v{vTmp}, 4, v{vTmp2}")
    A(f"v_mov_b32 v{vZero}, 0")
    A(f"s_mov_b32 s{sKk}, 0")
    A(f"s_mov_b32 s{sOne}, 1")
    A(f"s_lshl_b32 s{sTmp}, s2, 7")
    A(f"s_add_u32 s{sTmp}, s{sTmp}, {FLAGS}")
    A(f"s_add_u32 s{sFl}, s28, s{sTmp}")
    A(f"s_addc_u32 s{sFl+1}, s29, 0")
    A(f"s_xor_b32 s{sPo}, s2, 32")
    A(f"s_lshl_b32 s{sPo}, s{sPo}, 7")
    A(f"s_add_u32 s{sPo}, s{sPo}, {FLAGS}")

    def ands(dst, src, lane):
        for k in range(4):
            A(f"v_and_b32_dpp v{dst+k}, v{src}, v{vMk+k} row_newbcast:{lane} {DPPF}")
    def bar():
        A("s_waitcnt lgkmcnt(0)"); A("s_barrier")
    def ldsw(scale, off, reg):
        A(f"s_mul_i32 s{sTmp}, s3, {scale}")
        A(f"v_add_u32 v{vE1}, s{sTmp}, v{vLdsA}")
        A("s_mov_b32 exec_hi, 0")
        for o, r in zip(off, reg):
            A(f"ds_write_b128 v{vE1}, v[{r}:{r+3}] offset:{o}")
        A("s_mov_b32 exec_hi, -1")
    def wsld(key, n, dst, v, so, extra=""):
        w = {1: "dword", 2: "dwordx2", 4: "dwordx4"}[n]
        d = f"v{dst}" if n == 1 else f"v[{dst}:{dst+n-1}]"
        op(key, f"buffer_load_{w} {d}, v{v}, s[{sWS}:{sWS+3}], {so} offen {extra}sc1")
    def xB():
        xload(1)
        srd(sOUT, 24, 10240)
        setbase(sE, pWQ[1])
        A(f"s_mov_b32 s{sEo}, s{sWQo}")
    late = [(lambda n=n: kvload(1, n)) for n in range(4, 16)] + [xB,
            lambda: wsld(("old", 0), 4, vOldP[0], vPub, "0"),
            lambda: (A(f"s_mov_b32 s{sTmp}, {4*64*ROW}"), wsld(("old", 1), 4, vOldP[1], vPub, f"s{sTmp}")),
            lambda: wsld(("old", 2), 4, vOldC, vCon, f"s{sC0}"),
            lambda: wsld(("old", 3), 4, vOldC + 4, vCon, f"s{sC1}")]
    def q_chunks(br, per):
        xs = vX + 3 * br
        def head():
            need(("x", br, 2))
            for i in range(3):
                A(f"v_lshl_or_b32 v{xs+i}, v{xs+i}, 16, v{xs+i}")
            ands(vA0, xs, 0)
        def mm(t0, t1):
            def f():
                for t in range(t0, t1):
                    cur = vA0 if t % 2 == 0 else vA1; nxt = vA1 if t % 2 == 0 else vA0
                    if t < 39: ands(nxt, xs + (t + 1) // 16, (t + 1) % 16)
                    need(("wq", br, t))
                    c = "0" if t == 0 else f"v[{vAq}:{vAq+3}]"
                    A(f"v_mfma_f32_16x16x32_bf16 v[{vAq}:{vAq+3}], v[{cur}:{cur+3}], a[{4*t}:{4*t+3}], {c}")
                    if br == 0 and pro == 2:
                        if pi[0] < len(plist): pissue(widx[min(t + 1, 39)] + lead)
                        elif t % int(kper + 0.5) == 0: thr(W + 1); knext()
                    elif br == 0 and late: late.pop(0)()
            return f
        return [head] + [mm(t, min(40, t + per)) for t in range(0, 40, per)] + [lambda: ldsw(512, [QP if br == 0 else OUTP], [vAq])]
    def q_finish(br):
        dst = (vQA, vQB)[br]; base = (QP, OUTP)[br]
        A(f"v_lshlrev_b32 v{vE1}, 5, v{vC}")
        for w in range(4):
            for hf in range(2):
                r = vSc + 8 * w + 4 * hf
                A(f"ds_read_b128 v[{r}:{r+3}], v{vE1} offset:{base + 512*w + 16*hf}")
        for w in range(1, 4):
            A(f"s_waitcnt lgkmcnt({6-2*w})" if (br == 0 and not diag) else "s_waitcnt lgkmcnt(0)")
            for e in range(8):
                A(f"v_add_f32 v{vSc+e}, v{vSc+e}, v{vSc+8*w+e}")
        for k in range(4):
            A(f"v_cvt_pk_bf16_f32 v{dst+k}, v{vSc+2*k}, v{vSc+2*k+1}")
    if pro == 2: late0 = late[12:]; late = []
    for f in q_chunks(0, 40): f()
    assert not late
    if pro == 2:
        for _ in range(prb): knext()
        assert 16 <= km[0] <= 32, km
    stamp("qm")
    bar()
    q_finish(0)
    stamp("q")

    def linesetup():
        A(f"v_mul_u32_u24 v{vFo}, 9, v{vLane}")
        A(f"v_add_u32 v{vFo}, s2, v{vFo}")
        A(f"v_and_b32 v{vFo}, 255, v{vFo}")
        A(f"v_lshlrev_b32 v{vFo}, 7, v{vFo}")
        A(f"v_mov_b32 v{vTmp2}, 0x7fffffff")
        A(f"v_cmp_gt_u32 vcc, {npeer}, v0")
        A(f"v_mov_b32 v{vTmp}, {KK}")
        A(f"v_cndmask_b32 v{vFo}, v{vTmp2}, v{vFo}, vcc")
        A(f"ds_write_b32 v{vTmp}, v{vZero}")
        if smf:
            A(f"v_lshrrev_b32 v{vTmp}, 2, v{vC}")
            A(f"v_mov_b32 v{vTmp2}, 0xffff")
            for k in range(2):
                A(f"v_cmp_eq_u32 vcc, {k}, v{vTmp}")
                A(f"v_cndmask_b32 v{vSm+k}, 0, v{vTmp2}, vcc")
            A(f"v_and_b32 v{vTmp}, 3, v{vC}")
            A(f"v_mul_u32_u24 v{vSm+2}, 0x1111, v{vTmp}")
        if cps:
            A(f"s_mov_b32 s{sTmp}, {FLAGS}")
            wsld(("fold",), 4, vFold, vFo, f"s{sTmp}")
        wsld(("olds",), 4, vOldS, vZero, f"s{sPo}", "offset:16 ")
        A(f"s_xor_b32 s{sTmp}, s{sPo}, {32 << 7}" if (FLAGS & (32 << 7)) == 0 else "bad")
        wsld(("owns",), 4, vOwnS, vZero, f"s{sTmp}", "offset:16 ")
    def notold():
        need(("old", 1)); need(("owns",))
        for br in range(2):
            for e in range(4): A(f"v_not_b32 v{vOldP[br]+e}, v{vOldP[br]+e}")
        for e in range(4): A(f"v_and_b32 v{vOwnS+e}, 1, v{vOwnS+e}")
        A(f"v_lshl_or_b32 v{vOwnS}, v{vOwnS+1}, 1, v{vOwnS}")
        A(f"v_lshl_or_b32 v{vOwnS+2}, v{vOwnS+3}, 1, v{vOwnS+2}")
        A(f"v_lshl_or_b32 v{vOwnS}, v{vOwnS+2}, 2, v{vOwnS}")
        A(f"v_not_b32 v{vOwnS}, v{vOwnS}")
        A(f"v_readfirstlane_b32 s{sTg}, v{vOwnS}")

    def softmax_chunks(br):
        S = [vSs + t for t in range(8)]
        Mx, Lx = vStat[br], vStat[br] + 1
        def each(*ops):
            for o in ops:
                for s in S: A(o.format(s=s))
        def c_r1(): A("; softmax over the workgroup's 2048 scores"); each("v_cvt_pk_bf16_f32 v{s}, v{s}, v{s}", "v_and_b32 v{s}, 0xffff0000, v{s}", "v_mul_f32 v{s}, " + hex(f2u(128 ** -0.5)) + ", v{s}")
        def c_max():
            each("v_cvt_pk_bf16_f32 v{s}, v{s}, v{s}", "v_and_b32 v{s}, 0xffff0000, v{s}")
            A(f"v_max3_f32 v{vT}, v{S[0]}, v{S[1]}, v{S[2]}")
            A(f"v_max3_f32 v{vF}, v{S[3]}, v{S[4]}, v{S[5]}")
            A(f"v_max3_f32 v{vT}, v{vT}, v{S[6]}, v{S[7]}")
            A(f"v_max_f32 v{vT}, v{vT}, v{vF}")
            for ctl in RED64: A(f"v_max_f32_dpp v{vT}, v{vT}, v{vT} {ctl}")
            A(f"v_readlane_b32 s{sM}, v{vT}, 63")
        def c_exp(): each("v_subrev_f32 v{s}, s" + str(sM) + ", v{s}", "v_mul_f32 v{s}, " + hex(f2u(LOG2E)) + ", v{s}", "v_exp_f32 v{s}, v{s}")
        def c_sum():
            A(f"v_mov_b32 v{vM}, s{sM}")
            A(f"v_add_f32 v{vL}, v{S[0]}, v{S[1]}")
            A(f"v_add_f32 v{vT}, v{S[2]}, v{S[3]}")
            A(f"v_add_f32 v{vF}, v{S[4]}, v{S[5]}")
            A(f"v_add_f32 v{vE1}, v{S[6]}, v{S[7]}")
            A(f"v_add_f32 v{vL}, v{vL}, v{vT}")
            A(f"v_add_f32 v{vF}, v{vF}, v{vE1}")
            A(f"v_add_f32 v{vL}, v{vL}, v{vF}")
            for ctl in RED64: A(f"v_add_f32_dpp v{vL}, v{vL}, v{vL} {ctl}")
            A(f"s_lshl_b32 s{sTmp}, s3, 3")
            A(f"v_mov_b32 v{vE1}, s{sTmp}")
            A("s_mov_b32 exec_lo, 0")
            A("s_mov_b32 exec_hi, 0x80000000")
            A(f"ds_write_b64 v{vE1}, v[{vM}:{vM+1}] offset:{ST}")
            A("s_mov_b64 exec, -1")
        def c_norm():
            bar()
            A(f"ds_read_b64 v[{vTA}:{vTA+1}], v{vLdsS} offset:{ST}")
            A("s_waitcnt lgkmcnt(0)")
            A(f"v_max_f32_dpp v{Mx}, v{vTA}, v{vTA} quad_perm:[1,0,3,2] {DPPF}")
            A(f"v_max_f32_dpp v{Mx}, v{Mx}, v{Mx} quad_perm:[2,3,0,1] {DPPF}")
            A(f"v_sub_f32 v{vTA}, v{vTA}, v{Mx}")
            A(f"v_sub_f32 v{vM}, v{vM}, v{Mx}")
            A(f"v_mul_f32 v{vTA}, {hex(f2u(LOG2E))}, v{vTA}")
            A(f"v_mul_f32 v{vM}, {hex(f2u(LOG2E))}, v{vM}")
            A(f"v_exp_f32 v{vTA}, v{vTA}")
            A(f"v_exp_f32 v{vM}, v{vM}")
            A(f"v_mul_f32 v{Lx}, v{vTA+1}, v{vTA}")
            A(f"v_add_f32_dpp v{Lx}, v{Lx}, v{Lx} quad_perm:[1,0,3,2] {DPPF}")
            A(f"v_add_f32_dpp v{Lx}, v{Lx}, v{Lx} quad_perm:[2,3,0,1] {DPPF}")
            A(f"v_rcp_f32 v{vF}, v{Lx}")
            A(f"v_mul_f32 v{vF}, v{vF}, v{vM}")
        def c_pack():
            each("v_mul_f32 v{s}, v{s}, v" + str(vF), "v_cvt_pk_bf16_f32 v{s}, v{s}, v{s}")
            if br == 0: q_finish(1)
            p = sSt[br]
            A(f"v_readfirstlane_b32 s{p}, v{Mx}")
            A(f"v_readfirstlane_b32 s{p+1}, v{Lx}")
            for e in range(2):
                A(f"s_bitcmp1_b32 s{sTg}, {2*br+e}")
                A(f"s_cselect_b32 s{sTmp}, 1, 0")
                A(f"s_and_b32 s{p+e}, s{p+e}, -2")
                A(f"s_or_b32 s{p+e}, s{p+e}, s{sTmp}")
            L = newlbl()
            A("s_cmp_lg_u32 s3, 0")
            A(f"s_cbranch_scc1 {L}")
            A(f"s_atomic_swap_x2 s[{p}:{p+1}], s[{sFl}:{sFl+1}], {hex(16 + 8*br)}")
            A(f"{L}:")
        return [c_r1, c_max, c_exp, c_sum, c_norm, c_pack]
    def partner(br):
        def ld(): wsld(("pst", br), 2, vPst, vZero, f"s{sPo}", f"offset:{16 + 8*br} ")
        def ev():
            A("; share of this half of the head from the partner's (max, sum)")
            need(("pst", br))
            L0, L1 = f"L_ps{br}", f"L_pd{br}"
            A(f"s_mov_b32 s{sSpin}, 0")
            A(f"{L0}:")
            A(f"v_xor_b32 v{vT}, v{vPst}, v{vOldS+2*br}")
            A(f"v_xor_b32 v{vF}, v{vPst+1}, v{vOldS+2*br+1}")
            A(f"v_and_b32 v{vT}, v{vT}, v{vF}")
            A(f"v_readfirstlane_b32 s{sTmp}, v{vT}")
            A(f"s_bitcmp1_b32 s{sTmp}, 0")
            A(f"s_cbranch_scc1 {L1}")
            A(f"s_add_u32 s{sSpin}, s{sSpin}, 1")
            A(f"s_cmp_ge_u32 s{sSpin}, {('0x400', '0x4000')[br]}")
            A(f"s_cbranch_scc1 {L1}")
            A(f"buffer_load_dwordx2 v[{vPst}:{vPst+1}], v{vZero}, s[{sWS}:{sWS+3}], s{sPo} offen offset:{16 + 8*br} sc1")
            A("s_waitcnt vmcnt(0)")
            A(f"s_branch {L0}")
            A(f"{L1}:")
            Mx, Lx = vStat[br], vStat[br] + 1
            A(f"v_and_b32 v{vPst}, -2, v{vPst}")
            A(f"v_and_b32 v{vPst+1}, -2, v{vPst+1}")
            A(f"v_max_f32 v{vT}, v{Mx}, v{vPst}")
            A(f"v_sub_f32 v{vF}, v{Mx}, v{vT}")
            A(f"v_sub_f32 v{vT}, v{vPst}, v{vT}")
            A(f"v_mul_f32 v{vF}, {hex(f2u(LOG2E))}, v{vF}")
            A(f"v_mul_f32 v{vT}, {hex(f2u(LOG2E))}, v{vT}")
            A(f"v_exp_f32 v{vF}, v{vF}")
            A(f"v_exp_f32 v{vT}, v{vT}")
            A(f"v_mul_f32 v{vF}, v{vF}, v{Lx}")
            A(f"v_fma_f32 v{vT}, v{vT}, v{vPst+1}, v{vF}")
            A(f"v_rcp_f32 v{vT}, v{vT}")
            A(f"v_mul_f32 v{vFac+br}, v{vF}, v{vT}")
        return ld, ev
    def proj_chunks(br, res):
        def c_w(): ldsw(576, [OP], [vAcc])
        def c_r():
            bar()
            A(f"ds_read_b32 v{vU}, v{vLdsO} offset:{OP}")
            A(f"ds_read_b32 v{vU+1}, v{vE2} offset:{OP}")
            if br == 1: stamp('bar')
            A("s_waitcnt lgkmcnt(0)")
            for q in ("quad_perm:[1,0,3,2]", "quad_perm:[2,3,0,1]"):
                for r in (vU, vU + 1):
                    A(f"v_add_f32_dpp v{r}, v{r}, v{r} {q} {DPPF}")
            for r in (vU, vU + 1): A(f"v_mul_f32 v{r}, v{r}, v{vFac+br}")
            A(f"v_cvt_pk_bf16_f32 v{vU}, v{vU}, v{vU}")
            A(f"v_cvt_pk_bf16_f32 v{vU+1}, v{vU+1}, v{vU+1}")
            need(("wo", br, 39))
            ands(vA0, vU, 0)
        def mf(cb, tq, a):
            i = tq * 5 + cb
            c = "0" if tq == 0 else f"v[{vO+4*cb}:{vO+4*cb+3}]"
            A(f"v_mfma_f32_16x16x32_bf16 v[{vO+4*cb}:{vO+4*cb+3}], v[{a}:{a+3}], a[{4*i}:{4*i+3}], {c}")
        def mm(tq):
            def f():
                cur = vA0 if tq % 2 == 0 else vA1; nxt = vA1 if tq % 2 == 0 else vA0
                for cb in range(5):
                    mf(cb, tq, cur)
                    if cb == 0 and tq < 7: ands(nxt, vU + ((tq + 1) >> 2), 4 * ((tq + 1) & 3))
            return f
        def c_w2(): ldsw(2560, [OUTP + 512 * cb for cb in range(5)], [vO + 4 * cb for cb in range(5)])
        def mmcb():
            Aq = [vA0] + [vRing + 4 * q for q in range(1, 8)]
            def wr(cb):
                A("s_mov_b32 exec_hi, 0")
                A(f"ds_write_b128 v{vE1}, v[{vO+4*cb}:{vO+4*cb+3}] offset:{OUTP + 512*cb}")
                A("s_mov_b32 exec_hi, -1")
            for tq in range(8):
                mf(0, tq, Aq[tq])
                if tq < 7: ands(Aq[tq + 1], vU + ((tq + 1) >> 2), 4 * ((tq + 1) & 3))
                mf(1, tq, Aq[tq])
            A(f"s_mul_i32 s{sTmp}, s3, 2560")
            A(f"v_add_u32 v{vE1}, s{sTmp}, v{vLdsA}")
            for cb in (2, 3, 4):
                for tq in range(8): mf(cb, tq, Aq[tq])
                if cb == 2: wr(0)
                wr(cb - 1)
            wr(4)
        def c_sum():
            A(f"v_lshlrev_b32 v{vE1}, 4, v0")
            bar()
            for w in range(4):
                A(f"ds_read_b128 v[{vSc+4*w}:{vSc+4*w+3}], v{vE1} offset:{OUTP+2560*w}")
            for w in range(1, 4):
                A(f"s_waitcnt lgkmcnt({3-w})" if (br == 1 and not diag) else "s_waitcnt lgkmcnt(0)")
                for e in range(4):
                    A(f"v_add_f32 v{vSc+e}, v{vSc+e}, v{vSc+4*w+e}")
            for e in range(4):
                A(f"v_bfi_b32 v{res+e}, 1, v{vOldP[br]+e}, v{vSc+e}")
        def s_w():
            A("; o @ wo (sparse MFMA: two row-quads per instruction) and in-workgroup sums")
            c_w()
            if br == 0:
                for k in range(20): A(f"v_mov_b32 v{vO+k}, 0")
        def sands(dst, u):
            for k in range(4):
                A(f"v_and_b32_dpp v{dst+k}, v{vU + (k >> 1)}, v{vSm + (k & 1)} row_newbcast:{4*u} {DPPF}")
        def s_r():
            bar()
            A(f"ds_read_b64 v[{vU}:{vU+1}], v{vLdsO} offset:{OP}")
            if br == 1: stamp('bar')
            A("s_waitcnt lgkmcnt(0)")
            for q in ("quad_perm:[1,0,3,2]", "quad_perm:[2,3,0,1]"):
                for r in (vU, vU + 1):
                    A(f"v_add_f32_dpp v{r}, v{r}, v{r} {q} {DPPF}")
            for r in (vU, vU + 1): A(f"v_mul_f32 v{r}, v{r}, v{vFac+br}")
            for r in (vU, vU + 1): A(f"v_cvt_pk_bf16_f32 v{r}, v{r}, v{r}")
            need(("wo", br, 39))
            sands(vA0, 0)
        def sf(cb, u, a):
            i = (u * 5 + cb) * 8
            A(f"v_smfmac_f32_16x16x64_bf16 v[{vO+4*cb}:{vO+4*cb+3}], v[{a}:{a+3}], a[{i}:{i+7}], v{vSm+2}")
        def sm(u):
            def f():
                cur = vA0 if u % 2 == 0 else vA1; nxt = vA1 if u % 2 == 0 else vA0
                for cb in range(5):
                    sf(cb, u, cur)
                    if cb == 0 and u < 3: sands(nxt, u + 1)
            return f
        def smcb():
            Aq = [vA0] + [vRing + 4 * q for q in range(1, 4)]
            def wr(cb):
                A("s_mov_b32 exec_hi, 0")
                A(f"ds_write_b128 v{vE1}, v[{vO+4*cb}:{vO+4*cb+3}] offset:{OUTP + 512*cb}")
                A("s_mov_b32 exec_hi, -1")
            for u in range(4):
                sf(0, u, Aq[u])
                if u < 3: sands(Aq[u + 1], u + 1)
                sf(1, u, Aq[u])
            A(f"s_mul_i32 s{sTmp}, s3, 2560")
            A(f"v_add_u32 v{vE1}, s{sTmp}, v{vLdsA}")
            for cb in (2, 3, 4):
                for u in range(4): sf(cb, u, Aq[u])
                if cb == 3: wr(0); wr(1)
                if cb == 4: wr(2); wr(3)
            wr(4)
        if smf and br == 1: return [s_w, s_r, smcb, c_sum]
        if smf: return [s_w, s_r] + [sm(u) for u in range(4)] + [c_w2, c_sum]
        if br == 1: return [c_w, c_r, mmcb, c_sum]
        return [c_w, c_r] + [mm(q) for q in range(8)] + [c_w2, c_sum]
    def poll(key):
        wsld((key, 0), 4, vD, vCon, f"s{sC0}")
        wsld((key, 1), 4, vD + 4, vCon, f"s{sC1}")

    def pretail():
        if smf:
            for k in range(20): A(f"v_mov_b32 v{vO+k}, 0")
        A(f"s_mov_b32 s{sTmp2}, {4*64*ROW}")
        A(f"s_mov_b32 s{sSpin}, 0")
        A(f"v_lshrrev_b32 v{vTmp}, 4, v0")
        A(f"v_mul_u32_u24 v{vTmp}, 144, v{vTmp}")
        A(f"v_and_b32 v{vTmp2}, 7, v0")
        A(f"v_lshl_add_u32 v{vTmp}, v{vTmp2}, 4, v{vTmp}")
        A(f"v_lshrrev_b32 v{vTmp2}, 4, v{vLane}")
        A(f"v_lshl_add_u32 v{vTmp2}, s3, 1, v{vTmp2}")
        A(f"v_lshlrev_b32 v{vTmp2}, 4, v{vTmp2}")
        A(f"v_mul_u32_u24 v{vT}, 144, v{vC}")
        A(f"v_add_u32 v{vTmp2}, v{vTmp2}, v{vT}")

    extras = {T: [] for T in range(32)}
    fills = {T: [] for T in range(32)}
    def spread(rng, fn):
        Ts = list(range(rng[0], rng[1])); n = len(Ts)
        for a, T in enumerate(Ts):
            extras[T] += [(lambda i=i: fn(i)) for i in range(40 * a // n, 40 * (a + 1) // n)]
    spread(wqB, lambda i: wqload(1, i))
    spread(woA, lambda i: woload(0, i))
    spread(woB, lambda i: woload(1, i))
    if pro == 2: extras[0] = late0
    fills[qB] = q_chunks(1, 3)
    pa = proj_chunks(0, vRes)
    fills[epA] = pa[:len(pa) // 2]
    fills[epA + 1] = pa[len(pa) // 2:]
    fills[3].append(notold)
    assert wqB[1] <= qB < 7 and woA[0] > qB and woA[1] <= epA and woB[0] > epA + 1 and 7 < stT[0] < 15 and 23 < stT[1] < 30
    dyn0 = (min(cps) + 1) if cps else 99
    stT = list(stT)

    def body(T):
        ph, t = T >> 3, T & 7
        br = ph >> 1; isK = (ph & 1) == 0
        issue = 0 < T < 31
        ex = list(extras[T]); nx = len(ex)
        fl = list(fills[T]); nf = len(fl); post = {}
        if issue:
            if t == 7:
                setbase(sS, (pV[br] if isK else pK[1]))
                A(f"s_mov_b32 s{sO0}, s{sBase}")
                A(f"s_add_u32 s{sO1}, s{sBase}, 0x40000")
            else:
                nexttask()
        if T == 1: linesetup()
        if T in stT:
            ld, ev = partner(stT.index(T)); ld(); post[12] = ev
        if T in cps:
            ci = list(cps).index(T)
            L = newlbl()
            A("s_cmp_lg_u32 s3, 0")
            A(f"s_cbranch_scc1 {L}")
            A(f"s_atomic_xor s{sOne}, s[{sFl}:{sFl+1}], {hex(4*ci)}")
            A(f"{L}:")
            A(f"s_mov_b32 s{sTmp2}, {FLAGS + 4*ci}")
            wsld(("fcur", ci), 1, vFcur, vFo, f"s{sTmp2}")
            def evalf():
                A("; count the peers that passed this checkpoint earlier")
                need(("fcur", ci))
                A(f"v_xor_b32 v{vFcur}, v{vFcur}, v{vFold+ci}")
                A(f"v_and_b32 v{vFcur}, 1, v{vFcur}")
                A(f"v_cmp_eq_u32 s[{sTmp}:{sTmp+1}], 1, v{vFcur}")
                A(f"s_and_b32 s{sTmp}, s{sTmp}, -2")
                A(f"s_bcnt1_i32_b32 s{sTmp}, s{sTmp}")
                A(f"s_mul_i32 s{sTmp}, s{sTmp}, {int(round(gp*64))}")
                A(f"s_sub_i32 s{sTmp}, s{sTmp}, {int(round(mid*gp*64)) - 32}")
                A(f"s_ashr_i32 s{sTmp}, s{sTmp}, 6")
                A(f"v_mov_b32 v{vKk}, s{sTmp}")
                A(f"v_mov_b32 v{vFcur}, {KK}")
                L2 = newlbl()
                A("s_cmp_lg_u32 s3, 0")
                A(f"s_cbranch_scc1 {L2}")
                A(f"ds_write_b32 v{vFcur}, v{vKk}")
                A(f"{L2}:")
            assert 9 not in post
            post[9] = evalf
        if T - 1 in cps:
            A(f"v_mov_b32 v{vFcur}, {KK}")
            A(f"ds_read_b32 v{vKk}, v{vFcur}")
            A("s_waitcnt lgkmcnt(0)")
            A(f"v_readfirstlane_b32 s{sKk}, v{vKk}")
        km0 = km[0]
        last = Wlast and T >= 31 - nlast
        dyn = T >= dyn0 and issue and not last
        if dyn:
            A(f"s_cmp_gt_i32 s{sKk}, 0")
            A(f"s_cselect_b64 vcc, -1, 0")
            A(f"s_sub_i32 s{sKk}, s{sKk}, 1")
        def iss(n):
            if T == 0 and pro == 2 and (km[0] < 32) and (n >= 16 - (32 - km0) or True):
                thr(W); knext()
            if issue:
                w = W + (1 if (xw and (nx or xall) and n % xw == xw - 1) else 0)
                if dyn: thrdyn(w)
                else: thr(Wlast if last else w)
                kvload(T + 1, n)
            for _ in range((n + 1) * nx // 16 - n * nx // 16): ex.pop(0)()
            for _ in range((n + 1) * nf // 16 - n * nf // 16): fl.pop(0)()
            if n in post: post[n]()
        if T == 31: pretail()
        if T == pubT:
            op(("pub", 0), f"buffer_store_dwordx4 v[{vRes}:{vRes+3}], v{vPub}, s[{sWS}:{sWS+3}], 0 offen {pubf}")
        if isK:
            vQ = vQA if br == 0 else vQB
            def dots(tr, base):
                need(("kv", T, base + 3))
                for k in range(4):
                    for j in range(4):
                        c = "0" if k == 0 else f"v{tr+j}"
                        A(f"v_dot2_f32_bf16 v{tr+j}, v{slot(T, base+j)+k}, v{vQ+k}, {c}")
            def red():
                for (d, s, ctl, bm) in ((0, 0, "row_ror:8", 3), (1, 1, "row_ror:8", 3), (0, 2, "row_ror:8", 12), (1, 3, "row_ror:8", 12),
                                        (0, 0, "row_half_mirror", 5), (0, 1, "row_half_mirror", 10),
                                        (0, 0, "quad_perm:[1,0,3,2]", 15), (0, 0, "quad_perm:[2,3,0,1]", 15)):
                    for tr in (vTA, vTB):
                        A(f"v_add_f32_dpp v{tr+d}, v{tr+s}, v{tr+s} {ctl} row_mask:0xf bank_mask:{hex(bm)}")
            S = vSs + t
            m1 = lambda: A(f"v_cndmask_b32 v{S}, v{vTA}, v{vTB}, s[{sM1}:{sM1+1}]")
            def m2():
                A(f"v_cndmask_b32 v{S}, v{S}, v{vTA}, s[{sM2}:{sM2+1}]")
                A(f"v_cndmask_b32 v{S}, v{S}, v{vTB}, s[{sM3}:{sM3+1}]")
            if t < 7:
                dots(vTA, 0); iss(0); iss(1)
                dots(vTB, 4); iss(2); iss(3)
                red(); iss(4); iss(5)
                m1(); iss(6); iss(7)
                dots(vTA, 8); iss(8); iss(9)
                dots(vTB, 12); iss(10); iss(11)
                red(); iss(12); iss(13)
                m2(); iss(14); iss(15)
            else:
                assert nf == 0
                dots(vTA, 0); iss(0); iss(1)
                dots(vTB, 4); iss(2); iss(3)
                red(); iss(4)
                m1()
                dots(vTA, 8); iss(5); iss(6)
                dots(vTB, 12); iss(7); iss(8)
                red(); iss(9)
                m2()
                for a, f in enumerate(softmax_chunks(br)):
                    f(); iss(10 + a)
        else:
            lane = lambda n: 4 * (n & 3) + (n >> 2)
            Pk = vSs + t
            ands(vA0, Pk, lane(0))
            for n in range(16):
                cur = vA0 if n % 2 == 0 else vA1; nxt = vA1 if n % 2 == 0 else vA0
                if n < 15: ands(nxt, Pk, lane(n + 1))
                need(("kv", T, n))
                r = vRing + 4 * n
                c = "0" if (t == 0 and n == 0) else f"v[{vAcc}:{vAcc+3}]"
                A(f"v_mfma_f32_16x16x32_bf16 v[{vAcc}:{vAcc+3}], v[{cur}:{cur+3}], v[{r}:{r+3}], {c}")
                iss(n)
        assert not ex and not fl and (pro != 2 or km[0] == 32)
    for T in range(32):
        A(f"; ---- task {T}")
        stamp(f"T{T}")
        body(T)
    stamp("end")
    pb = proj_chunks(1, vSc + 16)
    pb[0]()
    for f in pb[1:-1]: f()
    stamp("mm")
    pb[-1]()
    op(("pub", 1), f"buffer_store_dwordx4 v[{vSc+16}:{vSc+19}], v{vPub}, s[{sWS}:{sWS+3}], s{sTmp2} offen {pubf}")
    stamp("pub")
    A(f"s_cmp_ge_u32 s{sH}, 20")
    A("s_cbranch_scc1 L_fin")
    need(("old", 3))
    poll("p0")
    need(("p0", 1))
    def missing(r):
        for e in range(8):
            A(f"v_xor_b32 v{vSc+e}, v{r+e}, v{vOldC+e}")
        for (a, b) in ((0, 1), (2, 3), (4, 5), (6, 7), (0, 2), (4, 6), (0, 4)):
            A(f"v_and_b32 v{vSc+a}, v{vSc+a}, v{vSc+b}")
        A(f"v_and_b32 v{vSc}, 1, v{vSc}")
        A(f"v_cmp_eq_u32 vcc, 0, v{vSc}")
    def rawpoll(r):
        A(f"buffer_load_dwordx4 v[{r}:{r+3}], v{vCon}, s[{sWS}:{sWS+3}], s{sC0} offen sc1")
        A(f"buffer_load_dwordx4 v[{r+4}:{r+7}], v{vCon}, s[{sWS}:{sWS+3}], s{sC1} offen sc1")
    A("L_chk:")
    missing(vD)
    A("s_and_b64 exec, exec, vcc")
    A("s_cbranch_execz L_got")
    A(f"s_add_u32 s{sSpin}, s{sSpin}, 1")
    A(f"s_cmp_ge_u32 s{sSpin}, 0x60000")
    A("s_cbranch_scc1 L_got")
    if slA or slB or dbl:
        A(f"s_bcnt1_i32_b64 s{sTmp}, exec")
        A(f"s_cmp_le_u32 s{sTmp}, {nB}")
        A("s_cbranch_scc1 L_pc")
        A(f"s_cmp_le_u32 s{sTmp}, {nA}")
        A("s_cbranch_scc1 L_pb")
        if slA: A(f"s_sleep {slA}")
        A("L_pb:")
        if slB: A(f"s_sleep {slB}")
        if not dbl: A("L_pc:")
    rawpoll(vD)
    A("s_waitcnt vmcnt(0)")
    A("s_branch L_chk")
    if dbl:
        P0, P1 = vRing, vRing + 8
        A("L_pc:")
        rawpoll(P0)
        A(f"s_sleep {dly}")
        rawpoll(P1)
        A("L_f:")
        for a in (P0, P1):
            A("s_waitcnt vmcnt(2)")
            missing(a)
            A(f"s_mov_b64 s[{sM1}:{sM1+1}], vcc")
            A("s_andn2_b64 exec, exec, vcc")
            for e in range(8): A(f"v_mov_b32 v{vD+e}, v{a+e}")
            A(f"s_mov_b64 exec, s[{sM1}:{sM1+1}]")
            A("s_cbranch_execz L_got")
            rawpoll(a)
        A(f"s_add_u32 s{sSpin}, s{sSpin}, 1")
        A(f"s_cmp_lt_u32 s{sSpin}, 0x40000")
        A("s_cbranch_scc1 L_f")
    A("L_got:")
    stamp("got")
    A("s_mov_b64 exec, -1")
    for e in range(8): A(f"v_and_b32 v{vD+e}, -2, v{vD+e}" + ("                 ; drop the validity bit" if e == 0 else ""))
    for e in range(4): A(f"v_add_f32 v{vD+e}, v{vD+e}, v{vD+4+e}")
    for e in range(4): A(f"v_add_f32_dpp v{vD+e}, v{vD+e}, v{vD+e} row_ror:8 {DPPF}")
    A("s_mov_b32 exec_lo, 0x00ff00ff")
    A("s_mov_b32 exec_hi, 0x00ff00ff")
    A(f"ds_write_b128 v{vTmp}, v[{vD}:{vD+3}] offset:{QP}")
    A("s_mov_b64 exec, -1")
    bar()
    A(f"ds_read_b128 v[{vD}:{vD+3}], v{vTmp2} offset:{QP}")
    A("s_waitcnt lgkmcnt(0)")
    for ctl in RED64[:4]:
        for e in range(4):
            A(f"v_add_f32_dpp v{vD+e}, v{vD+e}, v{vD+e} {ctl}")
    A(f"v_cvt_pk_bf16_f32 v{vD}, v{vD}, v{vD+1}")
    A(f"v_cvt_pk_bf16_f32 v{vD+1}, v{vD+2}, v{vD+3}")
    A("s_mov_b32 exec_lo, 0x10001")
    A("s_mov_b32 exec_hi, 0")
    A(f"buffer_store_dwordx2 v[{vD}:{vD+1}], v{vOutO}, s[{sOUT}:{sOUT+3}], 0 offen {outf}")
    A("L_fin:")
    if diag == 3:
        stamp()
        A("s_waitcnt lgkmcnt(0)")
        A(f"s_sub_u32 s{sTmp}, s{sST+2*ampk}, s{sST+2*ampj}")
        A(f"s_mul_i32 s{sTmp}, s{sTmp}, {amp}")
        A(f"s_add_u32 s{sTmp}, s{sTmp}, {fix}")
        A("L_hold:")
        A(f"s_memrealtime s[{sM1}:{sM1+1}]")
        A("s_waitcnt lgkmcnt(0)")
        A(f"s_sub_u32 s{sTmp2}, s{sM1}, s{sST}")
        A(f"s_cmp_lt_u32 s{sTmp2}, s{sTmp}")
        A("s_cbranch_scc1 L_hold")
    if diag == 1:
        stamp()
        A("s_mov_b64 exec, -1")
        A(f"s_getreg_b32 s{sTmp}, hwreg(HW_REG_XCC_ID)")
        A("s_waitcnt lgkmcnt(0)")
        A(f"v_mov_b32 v{vStamp}, 0")
        for k in range(nstamp[0]):
            A(f"v_writelane_b32 v{vStamp}, s{sST+2*k}, {k}")
        A(f"v_writelane_b32 v{vStamp}, s{sTmp}, 14")
        A(f"v_writelane_b32 v{vStamp}, s{sSpin}, 15")
        A(f"s_add_u32 s{sE}, s28, {DIAG_OFF}")
        A(f"s_addc_u32 s{sE+1}, s29, 0")
        A(f"s_mov_b32 s{sE+2}, 0x10000")
        A(f"s_lshl_b32 s{sTmp}, s2, 2")
        A(f"s_add_u32 s{sTmp}, s{sTmp}, s3")
        A(f"s_lshl_b32 s{sTmp}, s{sTmp}, 6")
        A(f"v_lshlrev_b32 v{vTmp}, 2, v{vLane}")
        A("s_mov_b64 exec, 0xffff")
        A(f"buffer_store_dword v{vStamp}, v{vTmp}, s[{sE}:{sE+3}], s{sTmp} offen")
        A(f"; nstamp={nstamp[0]}")
    A("L_end:")
    A("s_endpgm")
    code = A.finish()
    txt = HEADER + "; Override launch geometry by editing the next line (default: block=256,\n; grid=ceil(out_elems/256), lds=0). Harness parses it; keep it on one line.\n"
    txt += "; @launch grid=(256,1,1) block=(256,1,1) lds=16384\n" + DOC
    txt += f""".amdgcn_target "amdgcn-amd-amdhsa--gfx950"
.text
.globl {name}
.p2align 8
.type {name},@function
""" + code + f""".section .rodata,"a"
.p2align 6
.amdhsa_kernel {name}
  .amdhsa_next_free_vgpr {424 if pref else 416}
  .amdhsa_next_free_sgpr 102
  .amdhsa_accum_offset 256
  .amdhsa_group_segment_fixed_size 0
  .amdhsa_kernarg_size 104
  .amdhsa_user_sgpr_count 2
  .amdhsa_user_sgpr_kernarg_segment_ptr 1
  .amdhsa_system_sgpr_workgroup_id_x 1
  .amdhsa_float_denorm_mode_32 3
.end_amdhsa_kernel
"""
    return txt

if __name__ == "__main__":
    import json
    kw = json.loads(sys.argv[1]) if len(sys.argv) > 1 else {}
    sys.stdout.write(gen(**kw))
```

```python
import sys, struct
from asmlib import Asm

NAME = "concat_heads__mha_block_cached__gqa_block_cached__decode_kernel"
HEADER = open("concat_heads__mha_block_cached__gqa_block_cached__decode.s.ref").read().split("; Override launch")[0]
NSTAMP = 10
DIAG_OFF = 0x200000
LOG2E = 1.4426950408889634
ROW = 2560
FLAGS = 8 * 64 * ROW

DOC = """;
; Structure
"""

def f2u(x): return struct.unpack("<I", struct.pack("<f", x))[0]

def gen(W=5, kvf="nt", wf="", pubf="sc1", diag=0, kper=2, swz=31,
        wqB=(1, 6), qB=6, woA=(7, 16), epA=16, woB=(18, 28), Wlast=8, nlast=1, pubT=31, stT=(10, 26),
        cps=(8, 17, 24), npeer=8, mid=3, gp=1.7, boost=1, boostl=None, gpl=None, midl=None, smf=1, dbl=0, dly=8, xw=0, xall=0, pro=1, lead=18, k0=5, prb=2, fake=0, pref=0, outf='', delay=0, nb=(11, 12, 10, 15), wb=(13, 14), t0=17, hb=16, duty=None, per=16, gn=0.0, oldf='sc1', touch=0, touchf='', pollf='sc1',
        slA=8, slB=3, nA=32, nB=16, stl=('karg', 'issue', 'q', 'T8', 'T16', 'T24', 'end', 'bar'),
        amp=0, ampk=0, ampj=0, fix=15000, name=NAME):
    A = Asm()
    pat = nb[3] < 12
    assert sorted(list(nb) + list(wb) + [t0, t0 + 1, t0 + 2, hb]) == list(range(10, 20))
    pX, pK, pV, pWQ, pWO = (4, 14), (6, 16), (8, 18), (10, 20), (12, 22)
    sS, sE, sWS, sOUT = 32, 36, 40, 44
    sB, sH, sHf, sO0, sO1, sBase, sTmp, sTmp2, sM, sSpin, sEo, sWQo, sWOo, sC0, sC1, sR = range(48, 64)
    sM1, sM2, sM3 = 64, 66, 68
    sTg = 70
    sJ, sK8, sK5, sW, sKk = 71, 72, 73, 74, 75
    sST = 76
    sFl, sOne, sPo = 96, 98, 99
    sSt = (100, 30)
    vLane, vWQo, vWOo, vXo, vPub, vCon, vOutO, vTmp, vTmp2, vC, vLdsA, vLdsO, vLdsS, vStamp, vZero = range(1, 16)
    vMk = 16; vQA = 20; vQB = 24; vA0 = 28; vA1 = 32; vAcc = 36; vAq = 40
    vTA, vTB = 44, 48
    vM, vL = 52, 53; vT, vF = 54, 55
    vX = 56
    vXo3 = (vXo, vQB, vQB + 1)
    vE1, vE2 = 62, 63
    vRing = 64
    vOff = 128
    vSs = 136
    vSc = 144
    vRing2 = 176
    vO = 176
    vPst = 196
    vFac = 198
    vOldS = 200
    vOwnS = 204
    vD = 212
    vRes = 220
    vStat = (224, 226)
    vU = 228
    vFo, vKk, vFold, vFcur = 230, 231, 232, 236
    vSm = 208
    vOldP = (240, 244)
    vOldC = 248
    QP, OP, ST, KK, OUTP = 0, 2048, 4352, 4400, 4608
    DPPF = "row_mask:0xf bank_mask:0xf"
    RED64 = ("row_ror:8 " + DPPF, "row_ror:4 " + DPPF, "row_ror:2 " + DPPF, "row_ror:1 " + DPPF,
             "row_bcast:15 row_mask:0xa bank_mask:0xf", "row_bcast:31 row_mask:0xc bank_mask:0xf")
    nstamp = [0]
    def stamp(kind=None):
        if kind is not None and kind not in stl: return
        if diag:
            A(f"s_memrealtime s[{sST+2*nstamp[0]}:{sST+2*nstamp[0]+1}]")
            nstamp[0] += 1
    class St: pass
    st = St(); st.issued = 0; st.landed = 0; st.pos = {}; st.kv = []
    lbl = [0]
    def newlbl():
        lbl[0] += 1; return f"L_t{lbl[0]}"
    def op(key, text):
        A(text); st.pos[key] = st.issued; st.issued += 1
        assert st.issued - st.landed <= 63
    def wait(n):
        A(f"s_waitcnt vmcnt({n})"); st.landed = max(st.landed, st.issued - n)
    def need(key):
        if st.landed <= st.pos[key]: wait(st.issued - st.pos[key] - 1)
    def thr(w):
        p = st.kv[len(st.kv) - w]
        if st.landed <= p: wait(st.issued - p - 1)
    def thrdyn(W, boost):
        thr(W + boost)
        L = newlbl()
        A(f"s_cbranch_vccnz {L}")
        A(f"s_waitcnt vmcnt({st.issued - st.kv[len(st.kv) - W] - 1})")
        A(f"{L}:")
    def setbase(s, p): A(f"s_mov_b64 s[{s}:{s+1}], s[{p}:{p+1}]")
    def srd(s, p, n):
        setbase(s, p); A(f"s_mov_b32 s{s+2}, {n}"); A(f"s_mov_b32 s{s+3}, 0x20000")

    A(f"{name}:")
    stamp()
    A("s_cmp_ge_u32 s2, 256")
    A("s_cbranch_scc1 L_end")
    if delay:
        A("s_and_b32 s3, s2, 0x23")
        A("s_cmp_lg_u32 s3, 0x21")
        A("s_cbranch_scc1 L_nodelay")
        A(f"s_mov_b32 s3, {delay}")
        A("L_delay:")
        A("s_sleep 40")
        A("s_sub_u32 s3, s3, 1")
        A("s_cmp_lg_u32 s3, 0")
        A("s_cbranch_scc1 L_delay")
        A("L_nodelay:")
    A("s_load_dwordx16 s[4:19], s[0:1], 0")
    A("s_load_dwordx8 s[20:27], s[0:1], 64")
    A("s_load_dwordx2 s[28:29], s[0:1], 96")
    A(f"v_lshrrev_b32 v{vTmp}, 6, v0")
    A(f"v_and_b32 v{vLane}, 63, v0")
    A(f"v_readfirstlane_b32 s3, v{vTmp}                    ; wave")
    A(f"s_lshr_b32 s{sB}, s2, 6")
    A(f"s_and_b32 s{sH}, s2, 31")
    A(f"s_bfe_u32 s{sHf}, s2, 0x10005")
    A(f"v_and_b32 v{vC}, 15, v0                            ; c = lane & 15")
    A(f"v_lshrrev_b32 v{vTmp}, 4, v{vLane}                 ; g = lane >> 4")
    A(f"v_lshlrev_b32 v{vTmp2}, 4, v{vC}")
    A(f"v_lshl_add_u32 v{vWQo}, v{vTmp}, 13, v{vTmp2}      ; g*8192 + c*16")
    A(f"s_lshr_b32 s{sJ}, s2, 5")
    A(f"s_mul_i32 s{sWQo}, s3, {160*8192}")
    A(f"s_lshl_b32 s{sTmp}, s{sH}, 8")
    A(f"s_add_u32 s{sWQo}, s{sWQo}, s{sTmp}")
    A(f"s_mul_i32 s{sTmp}, s{sJ}, {5*32768}")
    A(f"s_add_u32 s{sWQo}, s{sWQo}, s{sTmp}")
    if fake:
        A(f"v_lshlrev_b32 v{vWQo}, 4, v{vLane}")
        A(f"s_lshl_b32 s{sWQo}, s{sH}, 2")
        A(f"s_add_u32 s{sWQo}, s{sWQo}, s3")
        A(f"s_lshl_b32 s{sWQo}, s{sWQo}, 3")
        A(f"s_add_u32 s{sWQo}, s{sWQo}, s{sJ}")
        A(f"s_mul_i32 s{sWQo}, s{sWQo}, 5120")
    A(f"s_mov_b32 s{sE+2}, 5242880")
    A(f"s_mov_b32 s{sE+3}, 0x20000")
    A(f"s_mov_b32 s{sEo}, s{sWQo}")
    A(f"s_lshr_b32 s{sM}, s2, 3")
    A(f"s_add_u32 s{sM}, s{sM}, s2")
    A(f"s_and_b32 s{sM}, s{sM}, {swz}")
    A(f"v_lshlrev_b32 v{vE1}, 4, v{vLane}")
    def voff(j):
        A(f"s_add_u32 s{sTmp}, s{sM}, {j}")
        if nb[1] == nb[0] + 1 and nb[2] == nb[0] + 2:
            A(f"s_and_b32 s{sTmp}, s{sTmp}, 7")
            A(f"v_lshl_add_u32 v{vOff+j}, s{sTmp}, {nb[0]}, v{vE1}")
        else:
            for i in range(3):
                A(f"s_bfe_u32 s{sTmp2}, s{sTmp}, {hex(0x10000 | i)}")
                A(f"v_lshl_add_u32 v{vOff+j}, s{sTmp2}, {nb[i]}, v{vE1 if i == 0 else vOff+j}")
    voff(0)
    A(f"s_lshr_b32 s{sTmp}, s{sM}, 3")
    A(f"s_xor_b32 s{sTmp}, s{sTmp}, s3")
    if wb[1] == wb[0] + 1:
        A(f"s_lshl_b32 s{sTmp}, s{sTmp}, {wb[0]}")
    else:
        A(f"s_lshr_b32 s{sTmp2}, s{sTmp}, 1")
        A(f"s_lshl_b32 s{sTmp2}, s{sTmp2}, {wb[1]}")
        A(f"s_and_b32 s{sTmp}, s{sTmp}, 1")
        A(f"s_lshl_b32 s{sTmp}, s{sTmp}, {wb[0]}")
        A(f"s_or_b32 s{sTmp}, s{sTmp}, s{sTmp2}")
    A(f"s_lshl_b32 s{sBase}, s{sB}, 6")
    A(f"s_lshl_b32 s{sTmp2}, s{sH}, 1")
    A(f"s_add_u32 s{sBase}, s{sBase}, s{sTmp2}")
    A(f"s_add_u32 s{sBase}, s{sBase}, s{sHf}")
    A(f"s_mul_i32 s{sC0}, s{sBase}, {ROW}")
    if hb == 19:
        A(f"s_lshl_b32 s{sBase}, s{sBase}, 19")
    else:
        A(f"s_lshr_b32 s{sBase}, s{sBase}, 1")
        A(f"s_lshl_b32 s{sBase}, s{sBase}, 20")
        A(f"s_lshl_b32 s{sTmp2}, s{sHf}, {hb}")
        A(f"s_add_u32 s{sBase}, s{sBase}, s{sTmp2}")
    A(f"s_add_u32 s{sBase}, s{sBase}, s{sTmp}")
    A(f"s_mov_b32 s{sO0}, s{sBase}")
    A(f"s_mov_b32 s{sS+2}, {128 << 20}")
    A(f"s_mov_b32 s{sS+3}, 0x20000")
    A("s_waitcnt lgkmcnt(0)")
    stamp("karg")
    setbase(sE, pWQ[0])
    setbase(sS, pK[0])
    def slot(T, n): return (vRing2 if T == 0 else vRing) + 4 * n
    def kvload(T, n):
        st.kv.append(st.issued); r = slot(T, n)
        op(("kv", T, n), f"buffer_load_dwordx4 v[{r}:{r+3}], v{vOff + n % 8}, s[{sS}:{sS+3}], s{sO0 if (n < 8 or pat) else sO1} offen {f'offset:{1 << nb[3]} ' if (pat and n >= 8) else ''}{kvf}")
    def step(i, wrap, k):
        A(f"s_cmp_eq_u32 s{sJ}, {8 - (i + 1) // 5}")
        A(f"s_cselect_b32 s{sR}, {hex(wrap & 0xffffffff)}, s{k}")
        A(f"s_add_u32 s{sEo}, s{sEo}, s{sR}")
    def wqload(br, t):
        op(("wq", br, t), f"buffer_load_dwordx4 a[{4*t}:{4*t+3}], v{vWQo}, s[{sE}:{sE+3}], s{sEo} offen {wf}")
        if t < 39:
            stp = 1024 if fake else 0x8000
            if t % 5 == 4: step(t, -39 * stp, sK8)
            else: A(f"s_add_u32 s{sEo}, s{sEo}, {stp}")
    def woload(br, i):
        if i == 0:
            setbase(sE, pWO[br]); A(f"s_mov_b32 s{sEo}, s{sWOo}")
        a = 4 * i if not smf else ((i // 5 & 3) * 5 + i % 5) * 8 + 4 * (i // 20)
        op(("wo", br, i), f"buffer_load_dwordx4 a[{a}:{a+3}], v{vWOo}, s[{sE}:{sE+3}], s{sEo} offen offset:{(i%5)*256} {wf}")
        if i % 5 == 4 and i < 39: step(i, -7 * 5120, sK5)
    def xload(br):
        srd(sOUT, pX[br], 5120)
        for i in range(3):
            op(("x", br, i), f"buffer_load_ushort v{vX+3*br+i}, v{vXo3[i]}, s[{sOUT}:{sOUT+3}], 0 offen")
    def xA():
        A(f"v_mul_u32_u24 v{vWOo}, 1280, v{vTmp}")
        A(f"v_add_u32 v{vWOo}, v{vWOo}, v{vTmp2}               ; g*1280 + c*16")
        A(f"s_mul_i32 s{sTmp}, s3, 320")
        A(f"s_mul_i32 s{sTmp2}, s{sB}, 1280")
        A(f"s_add_u32 s{sTmp}, s{sTmp}, s{sTmp2}")
        A(f"v_lshl_add_u32 v{vTmp2}, v{vTmp}, 1, s{sTmp}")
        A(f"s_mul_i32 s{sTmp}, s{sJ}, 5")
        for i in range(3):
            A(f"v_add_u32 v{vXo3[i]}, s{sTmp}, v{vC}")
            if i < 2: A(f"s_add_u32 s{sTmp}, s{sTmp}, 16")
        for i in range(3): A(f"v_subrev_u32 v{vTA+i}, 40, v{vXo3[i]}")
        for i in range(3): A(f"v_min_u32 v{vXo3[i]}, v{vXo3[i]}, v{vTA+i}")
        for i in range(3): A(f"v_lshl_add_u32 v{vXo3[i]}, v{vXo3[i]}, 3, v{vTmp2}")
        xload(0)
    def nexttask():
        A(f"s_add_u32 s{sO0}, s{sO0}, {hex(1 << t0)}")
        if not pat: A(f"s_add_u32 s{sO1}, s{sO1}, {hex(1 << t0)}")
    def wooff():
        A(f"s_lshl_b32 s{sWOo}, s{sH}, 2")
        A(f"s_add_u32 s{sWOo}, s{sWOo}, s3")
        A(f"s_lshl_b32 s{sWOo}, s{sWOo}, 3")
        A(f"s_add_u32 s{sWOo}, s{sWOo}, s{sJ}")
        A(f"s_mul_i32 s{sWOo}, s{sWOo}, {4*1280}               ; (h*128 + 32w + 4j)*1280")
    km = [0]
    def knext():
        m = km[0]; km[0] += 1
        if m == 16: nexttask()
        kvload(m >> 4, m & 15)
        if m + 1 < 8: voff(m + 1)
    def wq0(t):
        wqload(0, t)
        if t == 0:
            A(f"s_mov_b32 s{sK8}, {1024 if fake else 0x8000}")
            A(f"s_movk_i32 s{sK5}, 5120")
            (None if pat else A(f"s_add_u32 s{sO1}, s{sBase}, {hex(1 << nb[3])}"))
        if t == 4: xA()
    plist = []; widx = {}
    if pro == 2:
        nk = 0
        for t in range(40):
            widx[t] = len(plist); plist.append(lambda t=t: wq0(t))
            if pref and t == 4:
                def pf(kind, i):
                    if i == 0:
                        p = {"wqB": pWQ[1], "woA": pWO[0], "woB": pWO[1]}[kind]
                        if kind == "wqB":
                            srd(sWS, p, 5242880); A(f"s_mov_b32 s{sC1}, s{sWQo}"); wooff()
                        else: setbase(sWS, p)
                    if kind == "wqB":
                        op(("pf", kind, i), f"buffer_load_dwordx4 a[160:163], v{vWQo}, s[{sWS}:{sWS+3}], s{sC1} offen {wf}")
                        if i < 4: A(f"s_add_u32 s{sC1}, s{sC1}, 0x8000")
                    else:
                        op(("pf", kind, i), f"buffer_load_dwordx4 a[160:163], v{vWOo}, s[{sWS}:{sWS+3}], s{sWOo} offen offset:{i*256} {wf}")
                for kind in ("wqB", "woA", "woB")[:pref]:
                    for i in range(5): plist.append(lambda kind=kind, i=i: pf(kind, i))
            while t + 1 >= k0 and nk * kper <= t + 1 - k0:
                plist.append(knext); nk += 1
        pi = [0]
        def pissue(upto):
            while pi[0] < min(upto, len(plist)):
                plist[pi[0]](); pi[0] += 1
        pissue(lead)
        assert not pref or lead >= 5 + 5 * pref
    else:
        nkv = 0
        for t in range(40):
            wqload(0, t)
            if t == 0:
                A(f"s_mov_b32 s{sK8}, {1024 if fake else 0x8000}")
                A(f"s_movk_i32 s{sK5}, 5120")
                (None if pat else A(f"s_add_u32 s{sO1}, s{sBase}, {hex(1 << nb[3])}"))
            while nkv < 16 and (nkv + 1) * kper <= t + 1:
                kvload(0, nkv); nkv += 1
                if nkv < 8: voff(nkv)
            if t == 4: xA()
        assert nkv >= 8
        for n in range(nkv, 16): kvload(0, n)
        nexttask()
        for n in range(4): kvload(1, n)
    stamp("issue")
    srd(sWS, 28, FLAGS + 256 * 128)
    for m, v in ((sM1, 0x22222222), (sM2, 0x44444444), (sM3, 0x88888888)):
        A(f"s_mov_b32 s{m}, {hex(v)}"); A(f"s_mov_b32 s{m+1}, {hex(v)}")
    if not pref: wooff()
    A(f"v_mov_b32 v{vTmp2}, 0x7fffffff")
    A(f"v_cmp_gt_u32 vcc, 160, v0")
    A(f"v_lshlrev_b32 v{vPub}, 4, v0")
    A(f"v_add_u32 v{vPub}, s{sC0}, v{vPub}")
    A(f"v_cndmask_b32 v{vPub}, v{vTmp2}, v{vPub}, vcc")
    A(f"s_lshl_b32 s{sTmp}, s{sHf}, 2")
    A(f"s_add_u32 s{sTmp}, s{sTmp}, s{sB}")
    A(f"s_lshl_b32 s{sTmp}, s{sTmp}, 2")
    A(f"s_add_u32 s{sTmp}, s{sTmp}, s3")
    A(f"s_mul_i32 s{sC0}, s{sTmp}, {16*ROW}")
    A(f"s_lshl_b32 s{sTmp}, s{sH}, 7")
    A(f"s_add_u32 s{sC0}, s{sC0}, s{sTmp}")
    A(f"s_cmp_lt_u32 s{sH}, 20")
    A(f"s_cselect_b32 s{sC0}, s{sC0}, 0x40000000")
    A(f"s_add_u32 s{sC1}, s{sC0}, {8*ROW}")
    A(f"v_lshrrev_b32 v{vCon}, 3, v{vLane}")
    A(f"v_mul_u32_u24 v{vCon}, {ROW}, v{vCon}")
    A(f"v_and_b32 v{vTmp}, 7, v{vLane}")
    A(f"v_lshl_add_u32 v{vCon}, v{vTmp}, 4, v{vCon}        ; lane = (row 16w + lane/8 (+8), piece lane%8)")
    A(f"s_mul_i32 s{sTmp}, s{sB}, 2560")
    A(f"s_mul_i32 s{sTmp2}, s{sHf}, 1280")
    A(f"s_add_u32 s{sTmp}, s{sTmp}, s{sTmp2}")
    A(f"s_lshl_b32 s{sTmp2}, s{sH}, 6")
    A(f"s_add_u32 s{sTmp}, s{sTmp}, s{sTmp2}")
    A(f"s_lshl_b32 s{sTmp2}, s3, 4")
    A(f"s_add_u32 s{sTmp}, s{sTmp}, s{sTmp2}")
    A(f"v_lshrrev_b32 v{vOutO}, 4, v{vLane}")
    A(f"v_lshl_add_u32 v{vOutO}, v{vOutO}, 3, s{sTmp}")
    A(f"v_and_b32 v{vTmp}, 1, v{vC}")
    A(f"v_lshlrev_b32 v{vTmp}, 4, v{vTmp}")
    A(f"v_mov_b32 v{vTmp2}, 0xffff")
    A(f"v_lshlrev_b32 v{vTmp2}, v{vTmp}, v{vTmp2}")
    A(f"v_lshrrev_b32 v{vTmp}, 1, v{vC}")
    for k in range(4):
        A(f"v_cmp_eq_u32 vcc, {k}, v{vTmp}")
        A(f"v_cndmask_b32 v{vMk+k}, 0, v{vTmp2}, vcc")
    A(f"v_lshrrev_b32 v{vTmp}, 4, v{vLane}")
    A(f"v_lshlrev_b32 v{vLdsA}, 5, v{vC}")
    A(f"v_lshl_add_u32 v{vLdsA}, v{vTmp}, 4, v{vLdsA}")
    A(f"v_and_b32 v{vTmp2}, 3, v{vC}")
    A(f"v_lshlrev_b32 v{vLdsS}, 3, v{vTmp2}")
    A(f"v_mul_u32_u24 v{vTmp2}, 576, v{vTmp2}")
    if not smf:
        A(f"v_lshl_add_u32 v{vTmp2}, v{vTmp}, 2, v{vTmp2}")
        A(f"s_lshl_b32 s{sTmp}, s3, 7")
        A(f"v_add_u32 v{vTmp2}, s{sTmp}, v{vTmp2}")
        A(f"v_lshrrev_b32 v{vTmp}, 2, v{vC}")
        A(f"v_add_u32 v{vTmp}, s{sJ}, v{vTmp}")
        A(f"v_and_b32 v{vTmp}, 7, v{vTmp}")
        A(f"v_lshl_add_u32 v{vLdsO}, v{vTmp}, 4, v{vTmp2}")
        A(f"v_xor_b32 v{vTmp}, 4, v{vTmp}")
        A(f"v_lshl_add_u32 v{vE2}, v{vTmp}, 4, v{vTmp2}")
    else:
        A(f"v_and_b32 v{vE2}, 1, v{vTmp}")
        A(f"v_lshl_add_u32 v{vTmp2}, v{vE2}, 3, v{vTmp2}")
        A(f"s_lshl_b32 s{sTmp}, s3, 7")
        A(f"v_add_u32 v{vTmp2}, s{sTmp}, v{vTmp2}              ; (c&3)*576 + (32w + 2(g&1))*4")
        A(f"v_lshlrev_b32 v{vTmp}, 1, v{vTmp}")
        A(f"v_and_b32 v{vTmp}, 4, v{vTmp}")
        A(f"v_lshrrev_b32 v{vE2}, 2, v{vC}")
        A(f"v_add3_u32 v{vTmp}, v{vTmp}, v{vE2}, s{sJ}")
        A(f"v_and_b32 v{vTmp}, 7, v{vTmp}")
        A(f"v_lshl_add_u32 v{vLdsO}, v{vTmp}, 4, v{vTmp2}")
    A(f"v_mov_b32 v{vZero}, 0")
    A(f"s_mov_b32 s{sKk}, 0")
    A(f"s_mov_b32 s{sOne}, 1")
    A(f"s_lshl_b32 s{sTmp}, s2, 7")
    A(f"s_add_u32 s{sTmp}, s{sTmp}, {FLAGS}")
    A(f"s_add_u32 s{sFl}, s28, s{sTmp}")
    A(f"s_addc_u32 s{sFl+1}, s29, 0")
    A(f"s_xor_b32 s{sPo}, s2, 32")
    A(f"s_lshl_b32 s{sPo}, s{sPo}, 7")
    A(f"s_add_u32 s{sPo}, s{sPo}, {FLAGS}")

    def ands(dst, src, lane):
        for k in range(4):
            A(f"v_and_b32_dpp v{dst+k}, v{src}, v{vMk+k} row_newbcast:{lane} {DPPF}")
    def bar():
        A("s_waitcnt lgkmcnt(0)"); A("s_barrier")
    def ldsw(scale, off, reg):
        A(f"s_mul_i32 s{sTmp}, s3, {scale}")
        A(f"v_add_u32 v{vE1}, s{sTmp}, v{vLdsA}")
        A("s_mov_b32 exec_hi, 0")
        for o, r in zip(off, reg):
            A(f"ds_write_b128 v{vE1}, v[{r}:{r+3}] offset:{o}")
        A("s_mov_b32 exec_hi, -1")
    def wsld(key, n, dst, v, so, extra="", fl="sc1"):
        w = {1: "dword", 2: "dwordx2", 4: "dwordx4"}[n]
        d = f"v{dst}" if n == 1 else f"v[{dst}:{dst+n-1}]"
        op(key, f"buffer_load_{w} {d}, v{v}, s[{sWS}:{sWS+3}], {so} offen {extra}{fl}")
    def xB():
        xload(1)
        srd(sOUT, 24, 10240)
        setbase(sE, pWQ[1])
        A(f"s_mov_b32 s{sEo}, s{sWQo}")
    late = [(lambda n=n: kvload(1, n)) for n in range(4, 16)] + [xB,
            lambda: wsld(("old", 0), 4, vOldP[0], vPub, "0", fl=oldf),
            lambda: (A(f"s_mov_b32 s{sTmp}, {4*64*ROW}"), wsld(("old", 1), 4, vOldP[1], vPub, f"s{sTmp}", fl=oldf)),
            lambda: wsld(("old", 2), 4, vOldC, vCon, f"s{sC0}"),
            lambda: wsld(("old", 3), 4, vOldC + 4, vCon, f"s{sC1}")]
    def q_chunks(br, per):
        xs = vX + 3 * br
        def head():
            need(("x", br, 2))
            for i in range(3):
                A(f"v_lshl_or_b32 v{xs+i}, v{xs+i}, 16, v{xs+i}")
            ands(vA0, xs, 0)
        def mm(t0, t1):
            def f():
                for t in range(t0, t1):
                    cur = vA0 if t % 2 == 0 else vA1; nxt = vA1 if t % 2 == 0 else vA0
                    if t < 39: ands(nxt, xs + (t + 1) // 16, (t + 1) % 16)
                    need(("wq", br, t))
                    c = "0" if t == 0 else f"v[{vAq}:{vAq+3}]"
                    A(f"v_mfma_f32_16x16x32_bf16 v[{vAq}:{vAq+3}], v[{cur}:{cur+3}], a[{4*t}:{4*t+3}], {c}")
                    if br == 0 and pro == 2:
                        if pi[0] < len(plist): pissue(widx[min(t + 1, 39)] + lead)
                        elif t % int(kper + 0.5) == 0: thr(W + 1); knext()
                    elif br == 0 and late: late.pop(0)()
            return f
        return [head] + [mm(t, min(40, t + per)) for t in range(0, 40, per)] + [lambda: ldsw(512, [QP if br == 0 else OUTP], [vAq])]
    def q_finish(br):
        dst = (vQA, vQB)[br]; base = (QP, OUTP)[br]
        A(f"v_lshlrev_b32 v{vE1}, 5, v{vC}")
        for w in range(4):
            for hf in range(2):
                r = vSc + 8 * w + 4 * hf
                A(f"ds_read_b128 v[{r}:{r+3}], v{vE1} offset:{base + 512*w + 16*hf}")
        for w in range(1, 4):
            A(f"s_waitcnt lgkmcnt({6-2*w})" if (br == 0 and not diag) else "s_waitcnt lgkmcnt(0)")
            for e in range(8):
                A(f"v_add_f32 v{vSc+e}, v{vSc+e}, v{vSc+8*w+e}")
        for k in range(4):
            A(f"v_cvt_pk_bf16_f32 v{dst+k}, v{vSc+2*k}, v{vSc+2*k+1}")
    if pro == 2: late0 = late[12:]; late = []
    for f in q_chunks(0, 40): f()
    assert not late
    if pro == 2:
        for _ in range(prb): knext()
        assert 16 <= km[0] <= 32, km
    stamp("qm")
    bar()
    q_finish(0)
    stamp("q")

    def linesetup():
        A(f"v_mul_u32_u24 v{vFo}, 9, v{vLane}")
        A(f"v_add_u32 v{vFo}, s2, v{vFo}")
        A(f"v_and_b32 v{vFo}, 255, v{vFo}")
        A(f"v_lshlrev_b32 v{vFo}, 7, v{vFo}")
        A(f"v_mov_b32 v{vTmp2}, 0x7fffffff")
        A(f"v_cmp_gt_u32 vcc, {npeer}, v0")
        A(f"v_mov_b32 v{vTmp}, {KK}")
        A(f"v_cndmask_b32 v{vFo}, v{vTmp2}, v{vFo}, vcc")
        A(f"ds_write_b32 v{vTmp}, v{vZero}")
        if smf:
            A(f"v_lshrrev_b32 v{vTmp}, 2, v{vC}")
            A(f"v_mov_b32 v{vTmp2}, 0xffff")
            for k in range(2):
                A(f"v_cmp_eq_u32 vcc, {k}, v{vTmp}")
                A(f"v_cndmask_b32 v{vSm+k}, 0, v{vTmp2}, vcc")
            A(f"v_and_b32 v{vTmp}, 3, v{vC}")
            A(f"v_mul_u32_u24 v{vSm+2}, 0x1111, v{vTmp}")
        if cps:
            A(f"s_mov_b32 s{sTmp}, {FLAGS}")
            wsld(("fold",), 4, vFold, vFo, f"s{sTmp}")
        wsld(("olds",), 4, vOldS, vZero, f"s{sPo}", "offset:16 ")
        A(f"s_xor_b32 s{sTmp}, s{sPo}, {32 << 7}" if (FLAGS & (32 << 7)) == 0 else "bad")
        wsld(("owns",), 4, vOwnS, vZero, f"s{sTmp}", "offset:16 ")
    def notold():
        need(("old", 1)); need(("owns",))
        for br in range(2):
            for e in range(4): A(f"v_not_b32 v{vOldP[br]+e}, v{vOldP[br]+e}")
        for e in range(4): A(f"v_and_b32 v{vOwnS+e}, 1, v{vOwnS+e}")
        A(f"v_lshl_or_b32 v{vOwnS}, v{vOwnS+1}, 1, v{vOwnS}")
        A(f"v_lshl_or_b32 v{vOwnS+2}, v{vOwnS+3}, 1, v{vOwnS+2}")
        A(f"v_lshl_or_b32 v{vOwnS}, v{vOwnS+2}, 2, v{vOwnS}")
        A(f"v_not_b32 v{vOwnS}, v{vOwnS}")
        A(f"v_readfirstlane_b32 s{sTg}, v{vOwnS}")

    def softmax_chunks(br):
        S = [vSs + t for t in range(8)]
        Mx, Lx = vStat[br], vStat[br] + 1
        def each(*ops):
            for o in ops:
                for s in S: A(o.format(s=s))
        def c_r1(): A("; softmax over the workgroup's 2048 scores"); each("v_cvt_pk_bf16_f32 v{s}, v{s}, v{s}", "v_and_b32 v{s}, 0xffff0000, v{s}", "v_mul_f32 v{s}, " + hex(f2u(128 ** -0.5)) + ", v{s}")
        def c_max():
            each("v_cvt_pk_bf16_f32 v{s}, v{s}, v{s}", "v_and_b32 v{s}, 0xffff0000, v{s}")
            A(f"v_max3_f32 v{vT}, v{S[0]}, v{S[1]}, v{S[2]}")
            A(f"v_max3_f32 v{vF}, v{S[3]}, v{S[4]}, v{S[5]}")
            A(f"v_max3_f32 v{vT}, v{vT}, v{S[6]}, v{S[7]}")
            A(f"v_max_f32 v{vT}, v{vT}, v{vF}")
            for ctl in RED64: A(f"v_max_f32_dpp v{vT}, v{vT}, v{vT} {ctl}")
            A(f"v_readlane_b32 s{sM}, v{vT}, 63")
        def c_exp(): each("v_subrev_f32 v{s}, s" + str(sM) + ", v{s}", "v_mul_f32 v{s}, " + hex(f2u(LOG2E)) + ", v{s}", "v_exp_f32 v{s}, v{s}")
        def c_sum():
            A(f"v_mov_b32 v{vM}, s{sM}")
            A(f"v_add_f32 v{vL}, v{S[0]}, v{S[1]}")
            A(f"v_add_f32 v{vT}, v{S[2]}, v{S[3]}")
            A(f"v_add_f32 v{vF}, v{S[4]}, v{S[5]}")
            A(f"v_add_f32 v{vE1}, v{S[6]}, v{S[7]}")
            A(f"v_add_f32 v{vL}, v{vL}, v{vT}")
            A(f"v_add_f32 v{vF}, v{vF}, v{vE1}")
            A(f"v_add_f32 v{vL}, v{vL}, v{vF}")
            for ctl in RED64: A(f"v_add_f32_dpp v{vL}, v{vL}, v{vL} {ctl}")
            A(f"s_lshl_b32 s{sTmp}, s3, 3")
            A(f"v_mov_b32 v{vE1}, s{sTmp}")
            A("s_mov_b32 exec_lo, 0")
            A("s_mov_b32 exec_hi, 0x80000000")
            A(f"ds_write_b64 v{vE1}, v[{vM}:{vM+1}] offset:{ST}")
            A("s_mov_b64 exec, -1")
        def c_norm():
            bar()
            A(f"ds_read_b64 v[{vTA}:{vTA+1}], v{vLdsS} offset:{ST}")
            A("s_waitcnt lgkmcnt(0)")
            A(f"v_max_f32_dpp v{Mx}, v{vTA}, v{vTA} quad_perm:[1,0,3,2] {DPPF}")
            A(f"v_max_f32_dpp v{Mx}, v{Mx}, v{Mx} quad_perm:[2,3,0,1] {DPPF}")
            A(f"v_sub_f32 v{vTA}, v{vTA}, v{Mx}")
            A(f"v_sub_f32 v{vM}, v{vM}, v{Mx}")
            A(f"v_mul_f32 v{vTA}, {hex(f2u(LOG2E))}, v{vTA}")
            A(f"v_mul_f32 v{vM}, {hex(f2u(LOG2E))}, v{vM}")
            A(f"v_exp_f32 v{vTA}, v{vTA}")
            A(f"v_exp_f32 v{vM}, v{vM}")
            A(f"v_mul_f32 v{Lx}, v{vTA+1}, v{vTA}")
            A(f"v_add_f32_dpp v{Lx}, v{Lx}, v{Lx} quad_perm:[1,0,3,2] {DPPF}")
            A(f"v_add_f32_dpp v{Lx}, v{Lx}, v{Lx} quad_perm:[2,3,0,1] {DPPF}")
            A(f"v_rcp_f32 v{vF}, v{Lx}")
            A(f"v_mul_f32 v{vF}, v{vF}, v{vM}")
        def c_pack():
            each("v_mul_f32 v{s}, v{s}, v" + str(vF), "v_cvt_pk_bf16_f32 v{s}, v{s}, v{s}")
            if br == 0: q_finish(1)
            p = sSt[br]
            A(f"v_readfirstlane_b32 s{p}, v{Mx}")
            A(f"v_readfirstlane_b32 s{p+1}, v{Lx}")
            for e in range(2):
                A(f"s_bitcmp1_b32 s{sTg}, {2*br+e}")
                A(f"s_cselect_b32 s{sTmp}, 1, 0")
                A(f"s_and_b32 s{p+e}, s{p+e}, -2")
                A(f"s_or_b32 s{p+e}, s{p+e}, s{sTmp}")
            L = newlbl()
            A("s_cmp_lg_u32 s3, 0")
            A(f"s_cbranch_scc1 {L}")
            A(f"s_atomic_swap_x2 s[{p}:{p+1}], s[{sFl}:{sFl+1}], {hex(16 + 8*br)}")
            A(f"{L}:")
        return [c_r1, c_max, c_exp, c_sum, c_norm, c_pack]
    def partner(br):
        def ld(): wsld(("pst", br), 2, vPst, vZero, f"s{sPo}", f"offset:{16 + 8*br} ")
        def ev():
            A("; share of this half of the head from the partner's (max, sum)")
            need(("pst", br))
            L0, L1 = f"L_ps{br}", f"L_pd{br}"
            A(f"s_mov_b32 s{sSpin}, 0")
            A(f"{L0}:")
            A(f"v_xor_b32 v{vT}, v{vPst}, v{vOldS+2*br}")
            A(f"v_xor_b32 v{vF}, v{vPst+1}, v{vOldS+2*br+1}")
            A(f"v_and_b32 v{vT}, v{vT}, v{vF}")
            A(f"v_readfirstlane_b32 s{sTmp}, v{vT}")
            A(f"s_bitcmp1_b32 s{sTmp}, 0")
            A(f"s_cbranch_scc1 {L1}")
            A(f"s_add_u32 s{sSpin}, s{sSpin}, 1")
            A(f"s_cmp_ge_u32 s{sSpin}, {('0x400', '0x4000')[br]}")
            A(f"s_cbranch_scc1 {L1}")
            A(f"buffer_load_dwordx2 v[{vPst}:{vPst+1}], v{vZero}, s[{sWS}:{sWS+3}], s{sPo} offen offset:{16 + 8*br} sc1")
            A("s_waitcnt vmcnt(0)")
            A(f"s_branch {L0}")
            A(f"{L1}:")
            Mx, Lx = vStat[br], vStat[br] + 1
            A(f"v_and_b32 v{vPst}, -2, v{vPst}")
            A(f"v_and_b32 v{vPst+1}, -2, v{vPst+1}")
            A(f"v_max_f32 v{vT}, v{Mx}, v{vPst}")
            A(f"v_sub_f32 v{vF}, v{Mx}, v{vT}")
            A(f"v_sub_f32 v{vT}, v{vPst}, v{vT}")
            A(f"v_mul_f32 v{vF}, {hex(f2u(LOG2E))}, v{vF}")
            A(f"v_mul_f32 v{vT}, {hex(f2u(LOG2E))}, v{vT}")
            A(f"v_exp_f32 v{vF}, v{vF}")
            A(f"v_exp_f32 v{vT}, v{vT}")
            A(f"v_mul_f32 v{vF}, v{vF}, v{Lx}")
            A(f"v_fma_f32 v{vT}, v{vT}, v{vPst+1}, v{vF}")
            A(f"v_rcp_f32 v{vT}, v{vT}")
            A(f"v_mul_f32 v{vFac+br}, v{vF}, v{vT}")
        return ld, ev
    def proj_chunks(br, res):
        def c_w(): ldsw(576, [OP], [vAcc])
        def c_r():
            bar()
            A(f"ds_read_b32 v{vU}, v{vLdsO} offset:{OP}")
            A(f"ds_read_b32 v{vU+1}, v{vE2} offset:{OP}")
            if br == 1: stamp('bar')
            A("s_waitcnt lgkmcnt(0)")
            for q in ("quad_perm:[1,0,3,2]", "quad_perm:[2,3,0,1]"):
                for r in (vU, vU + 1):
                    A(f"v_add_f32_dpp v{r}, v{r}, v{r} {q} {DPPF}")
            for r in (vU, vU + 1): A(f"v_mul_f32 v{r}, v{r}, v{vFac+br}")
            A(f"v_cvt_pk_bf16_f32 v{vU}, v{vU}, v{vU}")
            A(f"v_cvt_pk_bf16_f32 v{vU+1}, v{vU+1}, v{vU+1}")
            need(("wo", br, 39))
            ands(vA0, vU, 0)
        def mf(cb, tq, a):
            i = tq * 5 + cb
            c = "0" if tq == 0 else f"v[{vO+4*cb}:{vO+4*cb+3}]"
            A(f"v_mfma_f32_16x16x32_bf16 v[{vO+4*cb}:{vO+4*cb+3}], v[{a}:{a+3}], a[{4*i}:{4*i+3}], {c}")
        def mm(tq):
            def f():
                cur = vA0 if tq % 2 == 0 else vA1; nxt = vA1 if tq % 2 == 0 else vA0
                for cb in range(5):
                    mf(cb, tq, cur)
                    if cb == 0 and tq < 7: ands(nxt, vU + ((tq + 1) >> 2), 4 * ((tq + 1) & 3))
            return f
        def c_w2(): ldsw(2560, [OUTP + 512 * cb for cb in range(5)], [vO + 4 * cb for cb in range(5)])
        def mmcb():
            Aq = [vA0] + [vRing + 4 * q for q in range(1, 8)]
            def wr(cb):
                A("s_mov_b32 exec_hi, 0")
                A(f"ds_write_b128 v{vE1}, v[{vO+4*cb}:{vO+4*cb+3}] offset:{OUTP + 512*cb}")
                A("s_mov_b32 exec_hi, -1")
            for tq in range(8):
                mf(0, tq, Aq[tq])
                if tq < 7: ands(Aq[tq + 1], vU + ((tq + 1) >> 2), 4 * ((tq + 1) & 3))
                mf(1, tq, Aq[tq])
            A(f"s_mul_i32 s{sTmp}, s3, 2560")
            A(f"v_add_u32 v{vE1}, s{sTmp}, v{vLdsA}")
            for cb in (2, 3, 4):
                for tq in range(8): mf(cb, tq, Aq[tq])
                if cb == 2: wr(0)
                wr(cb - 1)
            wr(4)
        def c_sum():
            A(f"v_lshlrev_b32 v{vE1}, 4, v0")
            bar()
            for w in range(4):
                A(f"ds_read_b128 v[{vSc+4*w}:{vSc+4*w+3}], v{vE1} offset:{OUTP+2560*w}")
            for w in range(1, 4):
                A(f"s_waitcnt lgkmcnt({3-w})" if (br == 1 and not diag) else "s_waitcnt lgkmcnt(0)")
                for e in range(4):
                    A(f"v_add_f32 v{vSc+e}, v{vSc+e}, v{vSc+4*w+e}")
            for e in range(4):
                A(f"v_bfi_b32 v{res+e}, 1, v{vOldP[br]+e}, v{vSc+e}")
        def s_w():
            A("; o @ wo (sparse MFMA: two row-quads per instruction) and in-workgroup sums")
            c_w()
            if br == 0:
                for k in range(20): A(f"v_mov_b32 v{vO+k}, 0")
        def sands(dst, u):
            for k in range(4):
                A(f"v_and_b32_dpp v{dst+k}, v{vU + (k >> 1)}, v{vSm + (k & 1)} row_newbcast:{4*u} {DPPF}")
        def s_r():
            bar()
            A(f"ds_read_b64 v[{vU}:{vU+1}], v{vLdsO} offset:{OP}")
            if br == 1: stamp('bar')
            A("s_waitcnt lgkmcnt(0)")
            for q in ("quad_perm:[1,0,3,2]", "quad_perm:[2,3,0,1]"):
                for r in (vU, vU + 1):
                    A(f"v_add_f32_dpp v{r}, v{r}, v{r} {q} {DPPF}")
            for r in (vU, vU + 1): A(f"v_mul_f32 v{r}, v{r}, v{vFac+br}")
            for r in (vU, vU + 1): A(f"v_cvt_pk_bf16_f32 v{r}, v{r}, v{r}")
            need(("wo", br, 39))
            sands(vA0, 0)
        def sf(cb, u, a):
            i = (u * 5 + cb) * 8
            A(f"v_smfmac_f32_16x16x64_bf16 v[{vO+4*cb}:{vO+4*cb+3}], v[{a}:{a+3}], a[{i}:{i+7}], v{vSm+2}")
        def sm(u):
            def f():
                cur = vA0 if u % 2 == 0 else vA1; nxt = vA1 if u % 2 == 0 else vA0
                for cb in range(5):
                    sf(cb, u, cur)
                    if cb == 0 and u < 3: sands(nxt, u + 1)
            return f
        def smcb():
            Aq = [vA0] + [vRing + 4 * q for q in range(1, 4)]
            def wr(cb):
                A("s_mov_b32 exec_hi, 0")
                A(f"ds_write_b128 v{vE1}, v[{vO+4*cb}:{vO+4*cb+3}] offset:{OUTP + 512*cb}")
                A("s_mov_b32 exec_hi, -1")
            for u in range(4):
                sf(0, u, Aq[u])
                if u < 3: sands(Aq[u + 1], u + 1)
                sf(1, u, Aq[u])
            A(f"s_mul_i32 s{sTmp}, s3, 2560")
            A(f"v_add_u32 v{vE1}, s{sTmp}, v{vLdsA}")
            for cb in (2, 3, 4):
                for u in range(4): sf(cb, u, Aq[u])
                if cb == 3: wr(0); wr(1)
                if cb == 4: wr(2); wr(3)
            wr(4)
        if smf and br == 1: return [s_w, s_r, smcb, c_sum]
        if smf: return [s_w, s_r] + [sm(u) for u in range(4)] + [c_w2, c_sum]
        if br == 1: return [c_w, c_r, mmcb, c_sum]
        return [c_w, c_r] + [mm(q) for q in range(8)] + [c_w2, c_sum]
    def poll(key):
        wsld((key, 0), 4, vD, vCon, f"s{sC0}", fl=pollf)
        wsld((key, 1), 4, vD + 4, vCon, f"s{sC1}", fl=pollf)

    def pretail():
        if smf:
            for k in range(20): A(f"v_mov_b32 v{vO+k}, 0")
        A(f"s_mov_b32 s{sTmp2}, {4*64*ROW}")
        A(f"s_mov_b32 s{sSpin}, 0")
        A(f"v_lshrrev_b32 v{vTmp}, 4, v0")
        A(f"v_mul_u32_u24 v{vTmp}, 144, v{vTmp}")
        A(f"v_and_b32 v{vTmp2}, 7, v0")
        A(f"v_lshl_add_u32 v{vTmp}, v{vTmp2}, 4, v{vTmp}")
        A(f"v_lshrrev_b32 v{vTmp2}, 4, v{vLane}")
        A(f"v_lshl_add_u32 v{vTmp2}, s3, 1, v{vTmp2}")
        A(f"v_lshlrev_b32 v{vTmp2}, 4, v{vTmp2}")
        A(f"v_mul_u32_u24 v{vT}, 144, v{vC}")
        A(f"v_add_u32 v{vTmp2}, v{vTmp2}, v{vT}")

    extras = {T: [] for T in range(32)}
    fills = {T: [] for T in range(32)}
    def spread(rng, fn):
        Ts = list(range(rng[0], rng[1])); n = len(Ts)
        for a, T in enumerate(Ts):
            extras[T] += [(lambda i=i: fn(i)) for i in range(40 * a // n, 40 * (a + 1) // n)]
    spread(wqB, lambda i: wqload(1, i))
    spread(woA, lambda i: woload(0, i))
    spread(woB, lambda i: woload(1, i))
    if pro == 2: extras[0] = late0
    fills[qB] = q_chunks(1, 3)
    pa = proj_chunks(0, vRes)
    fills[epA] = pa[:len(pa) // 2]
    fills[epA + 1] = pa[len(pa) // 2:]
    fills[3].append(notold)
    if touch:
        extras[touch].append(lambda: (A(f"s_mov_b32 s{sTmp}, {4*64*ROW}"), wsld(("touch",), 4, vD, vPub, f"s{sTmp}", fl=touchf)))
    assert wqB[1] <= qB < 7 and woA[0] > qB and woA[1] <= epA and woB[0] > epA + 1 and 7 < stT[0] < 15 and 23 < stT[1] < 30
    dyn0 = 1 if duty is not None else ((min(cps) + 1) if cps else 99)
    stT = list(stT)

    def body(T):
        ph, t = T >> 3, T & 7
        br = ph >> 1; isK = (ph & 1) == 0
        issue = 0 < T < 31
        ex = list(extras[T]); nx = len(ex)
        fl = list(fills[T]); nf = len(fl); post = {}
        if issue:
            if t == 7:
                setbase(sS, (pV[br] if isK else pK[1]))
                A(f"s_mov_b32 s{sO0}, s{sBase}")
                (None if pat else A(f"s_add_u32 s{sO1}, s{sBase}, {hex(1 << nb[3])}"))
            else:
                nexttask()
        if T == 1: linesetup()
        if T in stT:
            ld, ev = partner(stT.index(T)); ld(); post[12] = ev
        if T in cps:
            ci = list(cps).index(T)
            L = newlbl()
            A("s_cmp_lg_u32 s3, 0")
            A(f"s_cbranch_scc1 {L}")
            A(f"s_atomic_xor s{sOne}, s[{sFl}:{sFl+1}], {hex(4*ci)}")
            A(f"{L}:")
            A(f"s_mov_b32 s{sTmp2}, {FLAGS + 4*ci}")
            wsld(("fcur", ci), 1, vFcur, vFo, f"s{sTmp2}")
            def evalf():
                A("; count the peers that passed this checkpoint earlier")
                need(("fcur", ci))
                A(f"v_xor_b32 v{vFcur}, v{vFcur}, v{vFold+ci}")
                A(f"v_and_b32 v{vFcur}, 1, v{vFcur}")
                A(f"v_cmp_eq_u32 s[{sTmp}:{sTmp+1}], 1, v{vFcur}")
                A(f"s_and_b32 s{sTmp}, s{sTmp}, -2")
                A(f"s_bcnt1_i32_b32 s{sTmp}, s{sTmp}")
                g_ = gpl if (gpl and T == cps[-1]) else gp
                m_ = midl if (midl and T == cps[-1]) else mid
                A(f"s_mul_i32 s{sTmp}, s{sTmp}, {int(round(g_*64))}")
                A(f"s_sub_i32 s{sTmp}, s{sTmp}, {int(round(m_*g_*64)) - 32}")
                if duty is not None:
                    A(f"s_mul_i32 s{sTmp2}, s{sTmp}, {int(round(gn / g_ * 64))}")
                    A(f"s_ashr_i32 s{sTmp2}, s{sTmp2}, 6")
                    A(f"s_add_i32 s{sTmp2}, s{sTmp2}, {32 - int(round(32 * gn / g_))}")
                    A(f"s_max_i32 s{sTmp}, s{sTmp}, s{sTmp2}")
                A(f"s_ashr_i32 s{sTmp}, s{sTmp}, 6")
                A(f"v_mov_b32 v{vKk}, s{sTmp}")
                A(f"v_mov_b32 v{vFcur}, {KK}")
                L2 = newlbl()
                A("s_cmp_lg_u32 s3, 0")
                A(f"s_cbranch_scc1 {L2}")
                A(f"ds_write_b32 v{vFcur}, v{vKk}")
                A(f"{L2}:")
            assert 9 not in post
            post[9] = evalf
        if T - 1 in cps:
            A(f"v_mov_b32 v{vFcur}, {KK}")
            A(f"ds_read_b32 v{vKk}, v{vFcur}")
            A("s_waitcnt lgkmcnt(0)")
            A(f"v_readfirstlane_b32 s{sKk}, v{vKk}")
        km0 = km[0]
        last = Wlast and T >= 31 - nlast
        dyn = T >= dyn0 and issue and not last
        if dyn:
            if duty is None:
                A(f"s_cmp_gt_i32 s{sKk}, 0")
                A(f"s_cselect_b64 vcc, -1, 0")
                A(f"s_sub_i32 s{sKk}, s{sKk}, 1")
            else:
                A(f"s_max_i32 s{sW}, s{sKk}, -1")
                A(f"s_min_i32 s{sW}, s{sW}, 1")
                A(f"s_sub_i32 s{sKk}, s{sKk}, s{sW}")
                A(f"s_lshl_b32 s{sW}, s{sW}, 2")
        def setv(n):
            ph_ = (T * (16 // per) + n // per) * (2 if (duty == 2 and per == 8) else 1)
            A(f"s_add_u32 s{sTmp}, s3, {ph_ & 3}")
            A(f"s_and_b32 s{sTmp}, s{sTmp}, 3")
            A(f"s_add_i32 s{sTmp}, s{sW}, s{sTmp}")
            A(f"s_cmp_ge_i32 s{sTmp}, {4 - duty}")
            A(f"s_cselect_b64 vcc, -1, 0")
        def iss(n):
            if dyn and duty is not None and n % per == 0: setv(n)
            if T == 0 and pro == 2 and (km[0] < 32) and (n >= 16 - (32 - km0) or True):
                thr(W); knext()
            if issue:
                w = W + (1 if (xw and (nx or xall) and n % xw == xw - 1) else 0)
                if dyn: thrdyn(w, boostl if (boostl and T > cps[-1]) else boost)
                else: thr(Wlast if last else w)
                kvload(T + 1, n)
            for _ in range((n + 1) * nx // 16 - n * nx // 16): ex.pop(0)()
            for _ in range((n + 1) * nf // 16 - n * nf // 16): fl.pop(0)()
            if n in post: post[n]()
        if T == 31: pretail()
        if T == pubT:
            op(("pub", 0), f"buffer_store_dwordx4 v[{vRes}:{vRes+3}], v{vPub}, s[{sWS}:{sWS+3}], 0 offen {pubf}")
        if isK:
            vQ = vQA if br == 0 else vQB
            def dots(tr, base):
                need(("kv", T, base + 3))
                for k in range(4):
                    for j in range(4):
                        c = "0" if k == 0 else f"v{tr+j}"
                        A(f"v_dot2_f32_bf16 v{tr+j}, v{slot(T, base+j)+k}, v{vQ+k}, {c}")
            def red():
                for (d, s, ctl, bm) in ((0, 0, "row_ror:8", 3), (1, 1, "row_ror:8", 3), (0, 2, "row_ror:8", 12), (1, 3, "row_ror:8", 12),
                                        (0, 0, "row_half_mirror", 5), (0, 1, "row_half_mirror", 10),
                                        (0, 0, "quad_perm:[1,0,3,2]", 15), (0, 0, "quad_perm:[2,3,0,1]", 15)):
                    for tr in (vTA, vTB):
                        A(f"v_add_f32_dpp v{tr+d}, v{tr+s}, v{tr+s} {ctl} row_mask:0xf bank_mask:{hex(bm)}")
            S = vSs + t
            m1 = lambda: A(f"v_cndmask_b32 v{S}, v{vTA}, v{vTB}, s[{sM1}:{sM1+1}]")
            def m2():
                A(f"v_cndmask_b32 v{S}, v{S}, v{vTA}, s[{sM2}:{sM2+1}]")
                A(f"v_cndmask_b32 v{S}, v{S}, v{vTB}, s[{sM3}:{sM3+1}]")
            if t < 7:
                dots(vTA, 0); iss(0); iss(1)
                dots(vTB, 4); iss(2); iss(3)
                red(); iss(4); iss(5)
                m1(); iss(6); iss(7)
                dots(vTA, 8); iss(8); iss(9)
                dots(vTB, 12); iss(10); iss(11)
                red(); iss(12); iss(13)
                m2(); iss(14); iss(15)
            else:
                assert nf == 0
                dots(vTA, 0); iss(0); iss(1)
                dots(vTB, 4); iss(2); iss(3)
                red(); iss(4)
                m1()
                dots(vTA, 8); iss(5); iss(6)
                dots(vTB, 12); iss(7); iss(8)
                red(); iss(9)
                m2()
                for a, f in enumerate(softmax_chunks(br)):
                    f(); iss(10 + a)
        else:
            lane = lambda n: 4 * (n & 3) + (n >> 2)
            Pk = vSs + t
            ands(vA0, Pk, lane(0))
            for n in range(16):
                cur = vA0 if n % 2 == 0 else vA1; nxt = vA1 if n % 2 == 0 else vA0
                if n < 15: ands(nxt, Pk, lane(n + 1))
                need(("kv", T, n))
                r = vRing + 4 * n
                c = "0" if (t == 0 and n == 0) else f"v[{vAcc}:{vAcc+3}]"
                A(f"v_mfma_f32_16x16x32_bf16 v[{vAcc}:{vAcc+3}], v[{cur}:{cur+3}], v[{r}:{r+3}], {c}")
                iss(n)
        assert not ex and not fl and (pro != 2 or km[0] == 32)
    for T in range(32):
        A(f"; ---- task {T}")
        stamp(f"T{T}")
        body(T)
    stamp("end")
    pb = proj_chunks(1, vSc + 16)
    pb[0]()
    for f in pb[1:-1]: f()
    stamp("mm")
    pb[-1]()
    op(("pub", 1), f"buffer_store_dwordx4 v[{vSc+16}:{vSc+19}], v{vPub}, s[{sWS}:{sWS+3}], s{sTmp2} offen {pubf}")
    stamp("pub")
    A(f"s_cmp_ge_u32 s{sH}, 20")
    A("s_cbranch_scc1 L_fin")
    need(("old", 3))
    poll("p0")
    need(("p0", 1))
    def missing(r):
        for e in range(8):
            A(f"v_xor_b32 v{vSc+e}, v{r+e}, v{vOldC+e}")
        for (a, b) in ((0, 1), (2, 3), (4, 5), (6, 7), (0, 2), (4, 6), (0, 4)):
            A(f"v_and_b32 v{vSc+a}, v{vSc+a}, v{vSc+b}")
        A(f"v_and_b32 v{vSc}, 1, v{vSc}")
        A(f"v_cmp_eq_u32 vcc, 0, v{vSc}")
    def rawpoll(r):
        A(f"buffer_load_dwordx4 v[{r}:{r+3}], v{vCon}, s[{sWS}:{sWS+3}], s{sC0} offen {pollf}")
        A(f"buffer_load_dwordx4 v[{r+4}:{r+7}], v{vCon}, s[{sWS}:{sWS+3}], s{sC1} offen {pollf}")
    A("L_chk:")
    missing(vD)
    A("s_and_b64 exec, exec, vcc")
    A("s_cbranch_execz L_got")
    A(f"s_add_u32 s{sSpin}, s{sSpin}, 1")
    A(f"s_cmp_ge_u32 s{sSpin}, 0x60000")
    A("s_cbranch_scc1 L_got")
    if slA or slB or dbl:
        A(f"s_bcnt1_i32_b64 s{sTmp}, exec")
        A(f"s_cmp_le_u32 s{sTmp}, {nB}")
        A("s_cbranch_scc1 L_pc")
        A(f"s_cmp_le_u32 s{sTmp}, {nA}")
        A("s_cbranch_scc1 L_pb")
        if slA: A(f"s_sleep {slA}")
        A("L_pb:")
        if slB: A(f"s_sleep {slB}")
        if not dbl: A("L_pc:")
    rawpoll(vD)
    A("s_waitcnt vmcnt(0)")
    A("s_branch L_chk")
    if dbl:
        P0, P1 = vRing, vRing + 8
        A("L_pc:")
        rawpoll(P0)
        A(f"s_sleep {dly}")
        rawpoll(P1)
        A("L_f:")
        for a in (P0, P1):
            A("s_waitcnt vmcnt(2)")
            missing(a)
            A(f"s_mov_b64 s[{sM1}:{sM1+1}], vcc")
            A("s_andn2_b64 exec, exec, vcc")
            for e in range(8): A(f"v_mov_b32 v{vD+e}, v{a+e}")
            A(f"s_mov_b64 exec, s[{sM1}:{sM1+1}]")
            A("s_cbranch_execz L_got")
            rawpoll(a)
        A(f"s_add_u32 s{sSpin}, s{sSpin}, 1")
        A(f"s_cmp_lt_u32 s{sSpin}, 0x40000")
        A("s_cbranch_scc1 L_f")
    A("L_got:")
    stamp("got")
    A("s_mov_b64 exec, -1")
    for e in range(8): A(f"v_and_b32 v{vD+e}, -2, v{vD+e}" + ("                 ; drop the validity bit" if e == 0 else ""))
    for e in range(4): A(f"v_add_f32 v{vD+e}, v{vD+e}, v{vD+4+e}")
    for e in range(4): A(f"v_add_f32_dpp v{vD+e}, v{vD+e}, v{vD+e} row_ror:8 {DPPF}")
    A("s_mov_b32 exec_lo, 0x00ff00ff")
    A("s_mov_b32 exec_hi, 0x00ff00ff")
    A(f"ds_write_b128 v{vTmp}, v[{vD}:{vD+3}] offset:{QP}")
    A("s_mov_b64 exec, -1")
    bar()
    A(f"ds_read_b128 v[{vD}:{vD+3}], v{vTmp2} offset:{QP}")
    A("s_waitcnt lgkmcnt(0)")
    for ctl in RED64[:4]:
        for e in range(4):
            A(f"v_add_f32_dpp v{vD+e}, v{vD+e}, v{vD+e} {ctl}")
    A(f"v_cvt_pk_bf16_f32 v{vD}, v{vD}, v{vD+1}")
    A(f"v_cvt_pk_bf16_f32 v{vD+1}, v{vD+2}, v{vD+3}")
    A("s_mov_b32 exec_lo, 0x10001")
    A("s_mov_b32 exec_hi, 0")
    A(f"buffer_store_dwordx2 v[{vD}:{vD+1}], v{vOutO}, s[{sOUT}:{sOUT+3}], 0 offen {outf}")
    A("L_fin:")
    if diag == 3:
        stamp()
        A("s_waitcnt lgkmcnt(0)")
        A(f"s_sub_u32 s{sTmp}, s{sST+2*ampk}, s{sST+2*ampj}")
        A(f"s_mul_i32 s{sTmp}, s{sTmp}, {amp}")
        A(f"s_add_u32 s{sTmp}, s{sTmp}, {fix}")
        A("L_hold:")
        A(f"s_memrealtime s[{sM1}:{sM1+1}]")
        A("s_waitcnt lgkmcnt(0)")
        A(f"s_sub_u32 s{sTmp2}, s{sM1}, s{sST}")
        A(f"s_cmp_lt_u32 s{sTmp2}, s{sTmp}")
        A("s_cbranch_scc1 L_hold")
    if diag == 1:
        stamp()
        A("s_mov_b64 exec, -1")
        A(f"s_getreg_b32 s{sTmp}, hwreg(HW_REG_XCC_ID)")
        A("s_waitcnt lgkmcnt(0)")
        A(f"v_mov_b32 v{vStamp}, 0")
        for k in range(nstamp[0]):
            A(f"v_writelane_b32 v{vStamp}, s{sST+2*k}, {k}")
        A(f"v_writelane_b32 v{vStamp}, s{sTmp}, 14")
        A(f"v_writelane_b32 v{vStamp}, s{sSpin}, 15")
        A(f"s_add_u32 s{sE}, s28, {DIAG_OFF}")
        A(f"s_addc_u32 s{sE+1}, s29, 0")
        A(f"s_mov_b32 s{sE+2}, 0x10000")
        A(f"s_lshl_b32 s{sTmp}, s2, 2")
        A(f"s_add_u32 s{sTmp}, s{sTmp}, s3")
        A(f"s_lshl_b32 s{sTmp}, s{sTmp}, 6")
        A(f"v_lshlrev_b32 v{vTmp}, 2, v{vLane}")
        A("s_mov_b64 exec, 0xffff")
        A(f"buffer_store_dword v{vStamp}, v{vTmp}, s[{sE}:{sE+3}], s{sTmp} offen")
        A(f"; nstamp={nstamp[0]}")
    A("L_end:")
    A("s_endpgm")
    code = A.finish()
    txt = HEADER + "; Override launch geometry by editing the next line (default: block=256,\n; grid=ceil(out_elems/256), lds=0). Harness parses it; keep it on one line.\n"
    txt += "; @launch grid=(256,1,1) block=(256,1,1) lds=16384\n" + DOC
    txt += f""".amdgcn_target "amdgcn-amd-amdhsa--gfx950"
.text
.globl {name}
.p2align 8
.type {name},@function
""" + code + f""".section .rodata,"a"
.p2align 6
.amdhsa_kernel {name}
  .amdhsa_next_free_vgpr {424 if pref else 416}
  .amdhsa_next_free_sgpr 102
  .amdhsa_accum_offset 256
  .amdhsa_group_segment_fixed_size 0
  .amdhsa_kernarg_size 104
  .amdhsa_user_sgpr_count 2
  .amdhsa_user_sgpr_kernarg_segment_ptr 1
  .amdhsa_system_sgpr_workgroup_id_x 1
  .amdhsa_float_denorm_mode_32 3
.end_amdhsa_kernel
"""
    return txt

if __name__ == "__main__":
    import json
    kw = json.loads(sys.argv[1]) if len(sys.argv) > 1 else {}
    sys.stdout.write(gen(**kw))
```

```python
import sys, struct
from asmlib import Asm

NAME = "concat_heads__mha_block_cached__gqa_block_cached__decode_kernel"
HEADER = open("concat_heads__mha_block_cached__gqa_block_cached__decode.s.ref").read().split("; Override launch")[0]
NSTAMP = 10
DIAG_OFF = 0x200000
LOG2E = 1.4426950408889634
ROW = 2560
FLAGS = 8 * 64 * ROW

DOC = """;
; Structure
"""

def f2u(x): return struct.unpack("<I", struct.pack("<f", x))[0]

def gen(W=5, kvf="nt", wf="", pubf="sc1", diag=0, kper=1.3, swz=31,
        wqB=(1, 6), qB=6, woA=(7, 16), epA=16, woB=(18, 28), Wlast=8, nlast=1, pubT=31, stT=(10, 26),
        cps=(8, 17, 24), npeer=8, mid=3, gp=1.7, boost=1, boostl=None, gpl=None, midl=None, smf=1, dbl=0, dly=8, xw=0, xall=0, pro=2, lead=16, k0=4, prb=2, fake=0, pref=0, outf='', delay=0, nb=(11, 12, 10, 15), wb=(13, 14), t0=17, hb=16, pvn=12, lvl3=0, duty=None, per=16, gn=0.0, oldf='sc1', touch=0, touchf='', pollf='sc1',
        slA=8, slB=3, nA=32, nB=16, stl=('karg', 'issue', 'q', 'T8', 'T16', 'T24', 'end', 'bar'),
        amp=0, ampk=0, ampj=0, fix=15000, name=NAME):
    A = Asm()
    pat = nb[3] < 12
    assert sorted(list(nb) + list(wb) + [t0, t0 + 1, t0 + 2, hb]) == list(range(10, 20))
    pX, pK, pV, pWQ, pWO = (4, 14), (6, 16), (8, 18), (10, 20), (12, 22)
    sS, sE, sWS, sOUT = 32, 36, 40, 44
    sB, sH, sHf, sO0, sO1, sBase, sTmp, sTmp2, sM, sSpin, sEo, sWQo, sWOo, sC0, sC1, sR = range(48, 64)
    sM1, sM2, sM3 = 64, 66, 68
    sTg = 70
    sJ, sK8, sK5, sW, sKk = 71, 72, 73, 74, 75
    sST = 76
    sFl, sOne, sPo = 96, 98, 99
    sSt = (100, 30)
    vLane, vWQo, vWOo, vXo, vPub, vCon, vOutO, vTmp, vTmp2, vC, vLdsA, vLdsO, vLdsS, vStamp, vZero = range(1, 16)
    vMk = 16; vQA = 20; vQB = 24; vA0 = 28; vA1 = 32; vAcc = 36; vAq = 40
    vTA, vTB = 44, 48
    vM, vL = 52, 53; vT, vF = 54, 55
    vX = 56
    vXo3 = (vXo, vQB, vQB + 1)
    vE1, vE2 = 62, 63
    vRing = 64
    vOff = 128
    vSs = 136
    vSc = 144
    vRing2 = 176
    vO = 176
    vPst = 196
    vFac = 198
    vOldS = 200
    vOwnS = 204
    vD = 212
    vRes = 220
    vStat = (224, 226)
    vU = 228
    vFo, vKk, vFold, vFcur = 230, 231, 232, 236
    vSm = 208
    vOldP = (240, 244)
    vOldC = 248
    QP, OP, ST, KK, OUTP = 0, 2048, 4352, 4400, 4608
    DPPF = "row_mask:0xf bank_mask:0xf"
    RED64 = ("row_ror:8 " + DPPF, "row_ror:4 " + DPPF, "row_ror:2 " + DPPF, "row_ror:1 " + DPPF,
             "row_bcast:15 row_mask:0xa bank_mask:0xf", "row_bcast:31 row_mask:0xc bank_mask:0xf")
    nstamp = [0]
    def stamp(kind=None):
        if kind is not None and kind not in stl: return
        if diag:
            A(f"s_memrealtime s[{sST+2*nstamp[0]}:{sST+2*nstamp[0]+1}]")
            nstamp[0] += 1
    class St: pass
    st = St(); st.issued = 0; st.landed = 0; st.pos = {}; st.kv = []
    lbl = [0]
    def newlbl():
        lbl[0] += 1; return f"L_t{lbl[0]}"
    def op(key, text):
        A(text); st.pos[key] = st.issued; st.issued += 1
        assert st.issued - st.landed <= 63
    def wait(n):
        A(f"s_waitcnt vmcnt({n})"); st.landed = max(st.landed, st.issued - n)
    def need(key):
        if st.landed <= st.pos[key]: wait(st.issued - st.pos[key] - 1)
    def thr(w):
        p = st.kv[len(st.kv) - w]
        if st.landed <= p: wait(st.issued - p - 1)
    def thrdyn(W, boost):
        thr(W + boost)
        L = newlbl()
        A(f"s_cbranch_vccnz {L}")
        A(f"s_waitcnt vmcnt({st.issued - st.kv[len(st.kv) - W] - 1})")
        if lvl3:
            A(f"s_cmp_eq_u32 s{sW}, 0")
            A(f"s_cbranch_scc1 {L}")
            A(f"s_waitcnt vmcnt({st.issued - st.kv[len(st.kv) - W + 1] - 1})")
        A(f"{L}:")
    def setbase(s, p): A(f"s_mov_b64 s[{s}:{s+1}], s[{p}:{p+1}]")
    def srd(s, p, n):
        setbase(s, p); A(f"s_mov_b32 s{s+2}, {n}"); A(f"s_mov_b32 s{s+3}, 0x20000")

    A(f"{name}:")
    stamp()
    A("s_cmp_ge_u32 s2, 256")
    A("s_cbranch_scc1 L_end")
    if delay:
        A("s_and_b32 s3, s2, 0x23")
        A("s_cmp_lg_u32 s3, 0x21")
        A("s_cbranch_scc1 L_nodelay")
        A(f"s_mov_b32 s3, {delay}")
        A("L_delay:")
        A("s_sleep 40")
        A("s_sub_u32 s3, s3, 1")
        A("s_cmp_lg_u32 s3, 0")
        A("s_cbranch_scc1 L_delay")
        A("L_nodelay:")
    A("s_load_dwordx16 s[4:19], s[0:1], 0")
    A("s_load_dwordx8 s[20:27], s[0:1], 64")
    A("s_load_dwordx2 s[28:29], s[0:1], 96")
    A(f"v_lshrrev_b32 v{vTmp}, 6, v0")
    A(f"v_and_b32 v{vLane}, 63, v0")
    A(f"v_readfirstlane_b32 s3, v{vTmp}                    ; wave")
    A(f"s_lshr_b32 s{sB}, s2, 6")
    A(f"s_and_b32 s{sH}, s2, 31")
    A(f"s_bfe_u32 s{sHf}, s2, 0x10005")
    A(f"v_and_b32 v{vC}, 15, v0                            ; c = lane & 15")
    A(f"v_lshrrev_b32 v{vTmp}, 4, v{vLane}                 ; g = lane >> 4")
    A(f"v_lshlrev_b32 v{vTmp2}, 4, v{vC}")
    A(f"v_lshl_add_u32 v{vWQo}, v{vTmp}, 13, v{vTmp2}      ; g*8192 + c*16")
    A(f"s_lshr_b32 s{sJ}, s2, 5")
    A(f"s_mul_i32 s{sWQo}, s3, {160*8192}")
    A(f"s_lshl_b32 s{sTmp}, s{sH}, 8")
    A(f"s_add_u32 s{sWQo}, s{sWQo}, s{sTmp}")
    A(f"s_mul_i32 s{sTmp}, s{sJ}, {5*32768}")
    A(f"s_add_u32 s{sWQo}, s{sWQo}, s{sTmp}")
    if fake:
        A(f"v_lshlrev_b32 v{vWQo}, 4, v{vLane}")
        A(f"s_lshl_b32 s{sWQo}, s{sH}, 2")
        A(f"s_add_u32 s{sWQo}, s{sWQo}, s3")
        A(f"s_lshl_b32 s{sWQo}, s{sWQo}, 3")
        A(f"s_add_u32 s{sWQo}, s{sWQo}, s{sJ}")
        A(f"s_mul_i32 s{sWQo}, s{sWQo}, 5120")
    A(f"s_mov_b32 s{sE+2}, 5242880")
    A(f"s_mov_b32 s{sE+3}, 0x20000")
    A(f"s_mov_b32 s{sEo}, s{sWQo}")
    A(f"s_lshr_b32 s{sM}, s2, 3")
    A(f"s_add_u32 s{sM}, s{sM}, s2")
    A(f"s_and_b32 s{sM}, s{sM}, {swz}")
    A(f"v_lshlrev_b32 v{vE1}, 4, v{vLane}")
    def voff(j):
        A(f"s_add_u32 s{sTmp}, s{sM}, {j}")
        if nb[1] == nb[0] + 1 and nb[2] == nb[0] + 2:
            A(f"s_and_b32 s{sTmp}, s{sTmp}, 7")
            A(f"v_lshl_add_u32 v{vOff+j}, s{sTmp}, {nb[0]}, v{vE1}")
        else:
            for i in range(3):
                A(f"s_bfe_u32 s{sTmp2}, s{sTmp}, {hex(0x10000 | i)}")
                A(f"v_lshl_add_u32 v{vOff+j}, s{sTmp2}, {nb[i]}, v{vE1 if i == 0 else vOff+j}")
    voff(0)
    A(f"s_lshr_b32 s{sTmp}, s{sM}, 3")
    A(f"s_xor_b32 s{sTmp}, s{sTmp}, s3")
    if wb[1] == wb[0] + 1:
        A(f"s_lshl_b32 s{sTmp}, s{sTmp}, {wb[0]}")
    else:
        A(f"s_lshr_b32 s{sTmp2}, s{sTmp}, 1")
        A(f"s_lshl_b32 s{sTmp2}, s{sTmp2}, {wb[1]}")
        A(f"s_and_b32 s{sTmp}, s{sTmp}, 1")
        A(f"s_lshl_b32 s{sTmp}, s{sTmp}, {wb[0]}")
        A(f"s_or_b32 s{sTmp}, s{sTmp}, s{sTmp2}")
    A(f"s_lshl_b32 s{sBase}, s{sB}, 6")
    A(f"s_lshl_b32 s{sTmp2}, s{sH}, 1")
    A(f"s_add_u32 s{sBase}, s{sBase}, s{sTmp2}")
    A(f"s_add_u32 s{sBase}, s{sBase}, s{sHf}")
    A(f"s_mul_i32 s{sC0}, s{sBase}, {ROW}")
    if hb == 19:
        A(f"s_lshl_b32 s{sBase}, s{sBase}, 19")
    else:
        A(f"s_lshr_b32 s{sBase}, s{sBase}, 1")
        A(f"s_lshl_b32 s{sBase}, s{sBase}, 20")
        A(f"s_lshl_b32 s{sTmp2}, s{sHf}, {hb}")
        A(f"s_add_u32 s{sBase}, s{sBase}, s{sTmp2}")
    A(f"s_add_u32 s{sBase}, s{sBase}, s{sTmp}")
    A(f"s_mov_b32 s{sO0}, s{sBase}")
    A(f"s_mov_b32 s{sS+2}, {128 << 20}")
    A(f"s_mov_b32 s{sS+3}, 0x20000")
    A("s_waitcnt lgkmcnt(0)")
    stamp("karg")
    setbase(sE, pWQ[0])
    setbase(sS, pK[0])
    def slot(T, n): return (vRing2 if T == 0 else vRing) + 4 * n
    def kvload(T, n):
        st.kv.append(st.issued); r = slot(T, n)
        op(("kv", T, n), f"buffer_load_dwordx4 v[{r}:{r+3}], v{vOff + n % 8}, s[{sS}:{sS+3}], s{sO0 if (n < 8 or pat) else sO1} offen {f'offset:{1 << nb[3]} ' if (pat and n >= 8) else ''}{kvf}")
    def step(i, wrap, k):
        A(f"s_cmp_eq_u32 s{sJ}, {8 - (i + 1) // 5}")
        A(f"s_cselect_b32 s{sR}, {hex(wrap & 0xffffffff)}, s{k}")
        A(f"s_add_u32 s{sEo}, s{sEo}, s{sR}")
    def wqload(br, t):
        op(("wq", br, t), f"buffer_load_dwordx4 a[{4*t}:{4*t+3}], v{vWQo}, s[{sE}:{sE+3}], s{sEo} offen {wf}")
        if t < 39:
            stp = 1024 if fake else 0x8000
            if t % 5 == 4: step(t, -39 * stp, sK8)
            else: A(f"s_add_u32 s{sEo}, s{sEo}, {stp}")
    def woload(br, i):
        if i == 0:
            setbase(sE, pWO[br]); A(f"s_mov_b32 s{sEo}, s{sWOo}")
        a = 4 * i if not smf else ((i // 5 & 3) * 5 + i % 5) * 8 + 4 * (i // 20)
        op(("wo", br, i), f"buffer_load_dwordx4 a[{a}:{a+3}], v{vWOo}, s[{sE}:{sE+3}], s{sEo} offen offset:{(i%5)*256} {wf}")
        if i % 5 == 4 and i < 39: step(i, -7 * 5120, sK5)
    def xload(br):
        srd(sOUT, pX[br], 5120)
        for i in range(3):
            op(("x", br, i), f"buffer_load_ushort v{vX+3*br+i}, v{vXo3[i]}, s[{sOUT}:{sOUT+3}], 0 offen")
    def xA():
        A(f"v_mul_u32_u24 v{vWOo}, 1280, v{vTmp}")
        A(f"v_add_u32 v{vWOo}, v{vWOo}, v{vTmp2}               ; g*1280 + c*16")
        A(f"s_mul_i32 s{sTmp}, s3, 320")
        A(f"s_mul_i32 s{sTmp2}, s{sB}, 1280")
        A(f"s_add_u32 s{sTmp}, s{sTmp}, s{sTmp2}")
        A(f"v_lshl_add_u32 v{vTmp2}, v{vTmp}, 1, s{sTmp}")
        A(f"s_mul_i32 s{sTmp}, s{sJ}, 5")
        for i in range(3):
            A(f"v_add_u32 v{vXo3[i]}, s{sTmp}, v{vC}")
            if i < 2: A(f"s_add_u32 s{sTmp}, s{sTmp}, 16")
        for i in range(3): A(f"v_subrev_u32 v{vTA+i}, 40, v{vXo3[i]}")
        for i in range(3): A(f"v_min_u32 v{vXo3[i]}, v{vXo3[i]}, v{vTA+i}")
        for i in range(3): A(f"v_lshl_add_u32 v{vXo3[i]}, v{vXo3[i]}, 3, v{vTmp2}")
        xload(0)
    def nexttask():
        A(f"s_add_u32 s{sO0}, s{sO0}, {hex(1 << t0)}")
        if not pat: A(f"s_add_u32 s{sO1}, s{sO1}, {hex(1 << t0)}")
    def wooff():
        A(f"s_lshl_b32 s{sWOo}, s{sH}, 2")
        A(f"s_add_u32 s{sWOo}, s{sWOo}, s3")
        A(f"s_lshl_b32 s{sWOo}, s{sWOo}, 3")
        A(f"s_add_u32 s{sWOo}, s{sWOo}, s{sJ}")
        A(f"s_mul_i32 s{sWOo}, s{sWOo}, {4*1280}               ; (h*128 + 32w + 4j)*1280")
    km = [0]
    def knext():
        if km[0] >= 32 + pvn: return
        m = km[0]; km[0] += 1
        if m >= 32:
            n = m - 32
            if n == 0:
                srd(sOUT, pV[0], 128 << 20); A(f"s_add_u32 s{sC1 if False else sSpin}, s{sBase}, {hex(1 << nb[3])}")
            st.kv.append(st.issued)
            op(("kv", 8, n), f"buffer_load_dwordx4 a[{160+4*n}:{163+4*n}], v{vOff + n % 8}, s[{sOUT}:{sOUT+3}], s{sBase if n < 8 else sSpin} offen {kvf}")
            return
        if m == 16: nexttask()
        kvload(m >> 4, m & 15)
        if m + 1 < 8: voff(m + 1)
    def wq0(t):
        wqload(0, t)
        if t == 0:
            A(f"s_mov_b32 s{sK8}, {1024 if fake else 0x8000}")
            A(f"s_movk_i32 s{sK5}, 5120")
            (None if pat else A(f"s_add_u32 s{sO1}, s{sBase}, {hex(1 << nb[3])}"))
        if t == 4: xA()
    plist = []; widx = {}
    if pro == 2:
        nk = 0
        for t in range(40):
            widx[t] = len(plist); plist.append(lambda t=t: wq0(t))
            if pref and t == 4:
                def pf(kind, i):
                    if i == 0:
                        p = {"wqB": pWQ[1], "woA": pWO[0], "woB": pWO[1]}[kind]
                        if kind == "wqB":
                            srd(sWS, p, 5242880); A(f"s_mov_b32 s{sC1}, s{sWQo}"); wooff()
                        else: setbase(sWS, p)
                    if kind == "wqB":
                        op(("pf", kind, i), f"buffer_load_dwordx4 a[160:163], v{vWQo}, s[{sWS}:{sWS+3}], s{sC1} offen {wf}")
                        if i < 4: A(f"s_add_u32 s{sC1}, s{sC1}, 0x8000")
                    else:
                        op(("pf", kind, i), f"buffer_load_dwordx4 a[160:163], v{vWOo}, s[{sWS}:{sWS+3}], s{sWOo} offen offset:{i*256} {wf}")
                for kind in ("wqB", "woA", "woB")[:pref]:
                    for i in range(5): plist.append(lambda kind=kind, i=i: pf(kind, i))
            while t + 1 >= k0 and nk * kper <= t + 1 - k0:
                plist.append(knext); nk += 1
        pi = [0]
        def pissue(upto):
            while pi[0] < min(upto, len(plist)):
                plist[pi[0]](); pi[0] += 1
        pissue(lead)
        assert not pref or lead >= 5 + 5 * pref
    else:
        nkv = 0
        for t in range(40):
            wqload(0, t)
            if t == 0:
                A(f"s_mov_b32 s{sK8}, {1024 if fake else 0x8000}")
                A(f"s_movk_i32 s{sK5}, 5120")
                (None if pat else A(f"s_add_u32 s{sO1}, s{sBase}, {hex(1 << nb[3])}"))
            while nkv < 16 and (nkv + 1) * kper <= t + 1:
                kvload(0, nkv); nkv += 1
                if nkv < 8: voff(nkv)
            if t == 4: xA()
        assert nkv >= 8
        for n in range(nkv, 16): kvload(0, n)
        nexttask()
        for n in range(4): kvload(1, n)
    stamp("issue")
    srd(sWS, 28, FLAGS + 256 * 128)
    for m, v in ((sM1, 0x22222222), (sM2, 0x44444444), (sM3, 0x88888888)):
        A(f"s_mov_b32 s{m}, {hex(v)}"); A(f"s_mov_b32 s{m+1}, {hex(v)}")
    if not pref: wooff()
    A(f"v_mov_b32 v{vTmp2}, 0x7fffffff")
    A(f"v_cmp_gt_u32 vcc, 160, v0")
    A(f"v_lshlrev_b32 v{vPub}, 4, v0")
    A(f"v_add_u32 v{vPub}, s{sC0}, v{vPub}")
    A(f"v_cndmask_b32 v{vPub}, v{vTmp2}, v{vPub}, vcc")
    A(f"s_lshl_b32 s{sTmp}, s{sHf}, 2")
    A(f"s_add_u32 s{sTmp}, s{sTmp}, s{sB}")
    A(f"s_lshl_b32 s{sTmp}, s{sTmp}, 2")
    A(f"s_add_u32 s{sTmp}, s{sTmp}, s3")
    A(f"s_mul_i32 s{sC0}, s{sTmp}, {16*ROW}")
    A(f"s_lshl_b32 s{sTmp}, s{sH}, 7")
    A(f"s_add_u32 s{sC0}, s{sC0}, s{sTmp}")
    A(f"s_cmp_lt_u32 s{sH}, 20")
    A(f"s_cselect_b32 s{sC0}, s{sC0}, 0x40000000")
    A(f"s_add_u32 s{sC1}, s{sC0}, {8*ROW}")
    A(f"v_lshrrev_b32 v{vCon}, 3, v{vLane}")
    A(f"v_mul_u32_u24 v{vCon}, {ROW}, v{vCon}")
    A(f"v_and_b32 v{vTmp}, 7, v{vLane}")
    A(f"v_lshl_add_u32 v{vCon}, v{vTmp}, 4, v{vCon}        ; lane = (row 16w + lane/8 (+8), piece lane%8)")
    A(f"s_mul_i32 s{sTmp}, s{sB}, 2560")
    A(f"s_mul_i32 s{sTmp2}, s{sHf}, 1280")
    A(f"s_add_u32 s{sTmp}, s{sTmp}, s{sTmp2}")
    A(f"s_lshl_b32 s{sTmp2}, s{sH}, 6")
    A(f"s_add_u32 s{sTmp}, s{sTmp}, s{sTmp2}")
    A(f"s_lshl_b32 s{sTmp2}, s3, 4")
    A(f"s_add_u32 s{sTmp}, s{sTmp}, s{sTmp2}")
    A(f"v_lshrrev_b32 v{vOutO}, 4, v{vLane}")
    A(f"v_lshl_add_u32 v{vOutO}, v{vOutO}, 3, s{sTmp}")
    A(f"v_and_b32 v{vTmp}, 1, v{vC}")
    A(f"v_lshlrev_b32 v{vTmp}, 4, v{vTmp}")
    A(f"v_mov_b32 v{vTmp2}, 0xffff")
    A(f"v_lshlrev_b32 v{vTmp2}, v{vTmp}, v{vTmp2}")
    A(f"v_lshrrev_b32 v{vTmp}, 1, v{vC}")
    for k in range(4):
        A(f"v_cmp_eq_u32 vcc, {k}, v{vTmp}")
        A(f"v_cndmask_b32 v{vMk+k}, 0, v{vTmp2}, vcc")
    A(f"v_lshrrev_b32 v{vTmp}, 4, v{vLane}")
    A(f"v_lshlrev_b32 v{vLdsA}, 5, v{vC}")
    A(f"v_lshl_add_u32 v{vLdsA}, v{vTmp}, 4, v{vLdsA}")
    A(f"v_and_b32 v{vTmp2}, 3, v{vC}")
    A(f"v_lshlrev_b32 v{vLdsS}, 3, v{vTmp2}")
    A(f"v_mul_u32_u24 v{vTmp2}, 576, v{vTmp2}")
    if not smf:
        A(f"v_lshl_add_u32 v{vTmp2}, v{vTmp}, 2, v{vTmp2}")
        A(f"s_lshl_b32 s{sTmp}, s3, 7")
        A(f"v_add_u32 v{vTmp2}, s{sTmp}, v{vTmp2}")
        A(f"v_lshrrev_b32 v{vTmp}, 2, v{vC}")
        A(f"v_add_u32 v{vTmp}, s{sJ}, v{vTmp}")
        A(f"v_and_b32 v{vTmp}, 7, v{vTmp}")
        A(f"v_lshl_add_u32 v{vLdsO}, v{vTmp}, 4, v{vTmp2}")
        A(f"v_xor_b32 v{vTmp}, 4, v{vTmp}")
        A(f"v_lshl_add_u32 v{vE2}, v{vTmp}, 4, v{vTmp2}")
    else:
        A(f"v_and_b32 v{vE2}, 1, v{vTmp}")
        A(f"v_lshl_add_u32 v{vTmp2}, v{vE2}, 3, v{vTmp2}")
        A(f"s_lshl_b32 s{sTmp}, s3, 7")
        A(f"v_add_u32 v{vTmp2}, s{sTmp}, v{vTmp2}              ; (c&3)*576 + (32w + 2(g&1))*4")
        A(f"v_lshlrev_b32 v{vTmp}, 1, v{vTmp}")
        A(f"v_and_b32 v{vTmp}, 4, v{vTmp}")
        A(f"v_lshrrev_b32 v{vE2}, 2, v{vC}")
        A(f"v_add3_u32 v{vTmp}, v{vTmp}, v{vE2}, s{sJ}")
        A(f"v_and_b32 v{vTmp}, 7, v{vTmp}")
        A(f"v_lshl_add_u32 v{vLdsO}, v{vTmp}, 4, v{vTmp2}")
    A(f"v_mov_b32 v{vZero}, 0")
    A(f"s_mov_b32 s{sKk}, 0")
    A(f"s_mov_b32 s{sOne}, 1")
    A(f"s_lshl_b32 s{sTmp}, s2, 7")
    A(f"s_add_u32 s{sTmp}, s{sTmp}, {FLAGS}")
    A(f"s_add_u32 s{sFl}, s28, s{sTmp}")
    A(f"s_addc_u32 s{sFl+1}, s29, 0")
    A(f"s_xor_b32 s{sPo}, s2, 32")
    A(f"s_lshl_b32 s{sPo}, s{sPo}, 7")
    A(f"s_add_u32 s{sPo}, s{sPo}, {FLAGS}")

    def ands(dst, src, lane):
        for k in range(4):
            A(f"v_and_b32_dpp v{dst+k}, v{src}, v{vMk+k} row_newbcast:{lane} {DPPF}")
    def bar():
        A("s_waitcnt lgkmcnt(0)"); A("s_barrier")
    def ldsw(scale, off, reg):
        A(f"s_mul_i32 s{sTmp}, s3, {scale}")
        A(f"v_add_u32 v{vE1}, s{sTmp}, v{vLdsA}")
        A("s_mov_b32 exec_hi, 0")
        for o, r in zip(off, reg):
            A(f"ds_write_b128 v{vE1}, v[{r}:{r+3}] offset:{o}")
        A("s_mov_b32 exec_hi, -1")
    def wsld(key, n, dst, v, so, extra="", fl="sc1"):
        w = {1: "dword", 2: "dwordx2", 4: "dwordx4"}[n]
        d = f"v{dst}" if n == 1 else f"v[{dst}:{dst+n-1}]"
        op(key, f"buffer_load_{w} {d}, v{v}, s[{sWS}:{sWS+3}], {so} offen {extra}{fl}")
    def xB():
        xload(1)
        srd(sOUT, 24, 10240)
        setbase(sE, pWQ[1])
        A(f"s_mov_b32 s{sEo}, s{sWQo}")
    late = [(lambda n=n: kvload(1, n)) for n in range(4, 16)] + [xB,
            lambda: wsld(("old", 0), 4, vOldP[0], vPub, "0", fl=oldf),
            lambda: (A(f"s_mov_b32 s{sTmp}, {4*64*ROW}"), wsld(("old", 1), 4, vOldP[1], vPub, f"s{sTmp}", fl=oldf)),
            lambda: wsld(("old", 2), 4, vOldC, vCon, f"s{sC0}"),
            lambda: wsld(("old", 3), 4, vOldC + 4, vCon, f"s{sC1}")]
    def q_chunks(br, per):
        xs = vX + 3 * br
        def head():
            need(("x", br, 2))
            for i in range(3):
                A(f"v_lshl_or_b32 v{xs+i}, v{xs+i}, 16, v{xs+i}")
            ands(vA0, xs, 0)
        def mm(t0, t1):
            def f():
                for t in range(t0, t1):
                    cur = vA0 if t % 2 == 0 else vA1; nxt = vA1 if t % 2 == 0 else vA0
                    if t < 39: ands(nxt, xs + (t + 1) // 16, (t + 1) % 16)
                    need(("wq", br, t))
                    c = "0" if t == 0 else f"v[{vAq}:{vAq+3}]"
                    A(f"v_mfma_f32_16x16x32_bf16 v[{vAq}:{vAq+3}], v[{cur}:{cur+3}], a[{4*t}:{4*t+3}], {c}")
                    if br == 0 and pro == 2:
                        if pi[0] < len(plist): pissue(widx[min(t + 1, 39)] + lead)
                        elif t % int(kper + 0.5) == 0 and km[0] < 32 + pvn: thr(W + 1); knext()
                    elif br == 0 and late: late.pop(0)()
            return f
        return [head] + [mm(t, min(40, t + per)) for t in range(0, 40, per)] + [lambda: ldsw(512, [QP if br == 0 else OUTP], [vAq])]
    def q_finish(br):
        dst = (vQA, vQB)[br]; base = (QP, OUTP)[br]
        A(f"v_lshlrev_b32 v{vE1}, 5, v{vC}")
        for w in range(4):
            for hf in range(2):
                r = vSc + 8 * w + 4 * hf
                A(f"ds_read_b128 v[{r}:{r+3}], v{vE1} offset:{base + 512*w + 16*hf}")
        for w in range(1, 4):
            A(f"s_waitcnt lgkmcnt({6-2*w})" if (br == 0 and not diag) else "s_waitcnt lgkmcnt(0)")
            for e in range(8):
                A(f"v_add_f32 v{vSc+e}, v{vSc+e}, v{vSc+8*w+e}")
        for k in range(4):
            A(f"v_cvt_pk_bf16_f32 v{dst+k}, v{vSc+2*k}, v{vSc+2*k+1}")
    if pro == 2: late0 = late[12:]; late = []
    for f in q_chunks(0, 40): f()
    assert not late
    if pro == 2:
        for _ in range(prb): knext()
        assert 16 <= km[0] <= 32 + pvn, km
    stamp("qm")
    bar()
    q_finish(0)
    stamp("q")

    def linesetup():
        A(f"v_mul_u32_u24 v{vFo}, 9, v{vLane}")
        A(f"v_add_u32 v{vFo}, s2, v{vFo}")
        A(f"v_and_b32 v{vFo}, 255, v{vFo}")
        A(f"v_lshlrev_b32 v{vFo}, 7, v{vFo}")
        A(f"v_mov_b32 v{vTmp2}, 0x7fffffff")
        A(f"v_cmp_gt_u32 vcc, {npeer}, v0")
        A(f"v_mov_b32 v{vTmp}, {KK}")
        A(f"v_cndmask_b32 v{vFo}, v{vTmp2}, v{vFo}, vcc")
        A(f"ds_write_b32 v{vTmp}, v{vZero}")
        if smf:
            A(f"v_lshrrev_b32 v{vTmp}, 2, v{vC}")
            A(f"v_mov_b32 v{vTmp2}, 0xffff")
            for k in range(2):
                A(f"v_cmp_eq_u32 vcc, {k}, v{vTmp}")
                A(f"v_cndmask_b32 v{vSm+k}, 0, v{vTmp2}, vcc")
            A(f"v_and_b32 v{vTmp}, 3, v{vC}")
            A(f"v_mul_u32_u24 v{vSm+2}, 0x1111, v{vTmp}")
        if cps:
            A(f"s_mov_b32 s{sTmp}, {FLAGS}")
            wsld(("fold",), 4, vFold, vFo, f"s{sTmp}")
        wsld(("olds",), 4, vOldS, vZero, f"s{sPo}", "offset:16 ")
        A(f"s_xor_b32 s{sTmp}, s{sPo}, {32 << 7}" if (FLAGS & (32 << 7)) == 0 else "bad")
        wsld(("owns",), 4, vOwnS, vZero, f"s{sTmp}", "offset:16 ")
    def notold():
        need(("old", 1)); need(("owns",))
        for br in range(2):
            for e in range(4): A(f"v_not_b32 v{vOldP[br]+e}, v{vOldP[br]+e}")
        for e in range(4): A(f"v_and_b32 v{vOwnS+e}, 1, v{vOwnS+e}")
        A(f"v_lshl_or_b32 v{vOwnS}, v{vOwnS+1}, 1, v{vOwnS}")
        A(f"v_lshl_or_b32 v{vOwnS+2}, v{vOwnS+3}, 1, v{vOwnS+2}")
        A(f"v_lshl_or_b32 v{vOwnS}, v{vOwnS+2}, 2, v{vOwnS}")
        A(f"v_not_b32 v{vOwnS}, v{vOwnS}")
        A(f"v_readfirstlane_b32 s{sTg}, v{vOwnS}")

    def softmax_chunks(br):
        S = [vSs + t for t in range(8)]
        Mx, Lx = vStat[br], vStat[br] + 1
        def each(*ops):
            for o in ops:
                for s in S: A(o.format(s=s))
        def c_r1(): A("; softmax over the workgroup's 2048 scores"); each("v_cvt_pk_bf16_f32 v{s}, v{s}, v{s}", "v_and_b32 v{s}, 0xffff0000, v{s}", "v_mul_f32 v{s}, " + hex(f2u(128 ** -0.5)) + ", v{s}")
        def c_max():
            each("v_cvt_pk_bf16_f32 v{s}, v{s}, v{s}", "v_and_b32 v{s}, 0xffff0000, v{s}")
            A(f"v_max3_f32 v{vT}, v{S[0]}, v{S[1]}, v{S[2]}")
            A(f"v_max3_f32 v{vF}, v{S[3]}, v{S[4]}, v{S[5]}")
            A(f"v_max3_f32 v{vT}, v{vT}, v{S[6]}, v{S[7]}")
            A(f"v_max_f32 v{vT}, v{vT}, v{vF}")
            for ctl in RED64: A(f"v_max_f32_dpp v{vT}, v{vT}, v{vT} {ctl}")
            A(f"v_readlane_b32 s{sM}, v{vT}, 63")
        def c_exp(): each("v_subrev_f32 v{s}, s" + str(sM) + ", v{s}", "v_mul_f32 v{s}, " + hex(f2u(LOG2E)) + ", v{s}", "v_exp_f32 v{s}, v{s}")
        def c_sum():
            A(f"v_mov_b32 v{vM}, s{sM}")
            A(f"v_add_f32 v{vL}, v{S[0]}, v{S[1]}")
            A(f"v_add_f32 v{vT}, v{S[2]}, v{S[3]}")
            A(f"v_add_f32 v{vF}, v{S[4]}, v{S[5]}")
            A(f"v_add_f32 v{vE1}, v{S[6]}, v{S[7]}")
            A(f"v_add_f32 v{vL}, v{vL}, v{vT}")
            A(f"v_add_f32 v{vF}, v{vF}, v{vE1}")
            A(f"v_add_f32 v{vL}, v{vL}, v{vF}")
            for ctl in RED64: A(f"v_add_f32_dpp v{vL}, v{vL}, v{vL} {ctl}")
            A(f"s_lshl_b32 s{sTmp}, s3, 3")
            A(f"v_mov_b32 v{vE1}, s{sTmp}")
            A("s_mov_b32 exec_lo, 0")
            A("s_mov_b32 exec_hi, 0x80000000")
            A(f"ds_write_b64 v{vE1}, v[{vM}:{vM+1}] offset:{ST}")
            A("s_mov_b64 exec, -1")
        def c_norm():
            bar()
            A(f"ds_read_b64 v[{vTA}:{vTA+1}], v{vLdsS} offset:{ST}")
            A("s_waitcnt lgkmcnt(0)")
            A(f"v_max_f32_dpp v{Mx}, v{vTA}, v{vTA} quad_perm:[1,0,3,2] {DPPF}")
            A(f"v_max_f32_dpp v{Mx}, v{Mx}, v{Mx} quad_perm:[2,3,0,1] {DPPF}")
            A(f"v_sub_f32 v{vTA}, v{vTA}, v{Mx}")
            A(f"v_sub_f32 v{vM}, v{vM}, v{Mx}")
            A(f"v_mul_f32 v{vTA}, {hex(f2u(LOG2E))}, v{vTA}")
            A(f"v_mul_f32 v{vM}, {hex(f2u(LOG2E))}, v{vM}")
            A(f"v_exp_f32 v{vTA}, v{vTA}")
            A(f"v_exp_f32 v{vM}, v{vM}")
            A(f"v_mul_f32 v{Lx}, v{vTA+1}, v{vTA}")
            A(f"v_add_f32_dpp v{Lx}, v{Lx}, v{Lx} quad_perm:[1,0,3,2] {DPPF}")
            A(f"v_add_f32_dpp v{Lx}, v{Lx}, v{Lx} quad_perm:[2,3,0,1] {DPPF}")
            A(f"v_rcp_f32 v{vF}, v{Lx}")
            A(f"v_mul_f32 v{vF}, v{vF}, v{vM}")
        def c_pack():
            each("v_mul_f32 v{s}, v{s}, v" + str(vF), "v_cvt_pk_bf16_f32 v{s}, v{s}, v{s}")
            if br == 0: q_finish(1)
            p = sSt[br]
            A(f"v_readfirstlane_b32 s{p}, v{Mx}")
            A(f"v_readfirstlane_b32 s{p+1}, v{Lx}")
            for e in range(2):
                A(f"s_bitcmp1_b32 s{sTg}, {2*br+e}")
                A(f"s_cselect_b32 s{sTmp}, 1, 0")
                A(f"s_and_b32 s{p+e}, s{p+e}, -2")
                A(f"s_or_b32 s{p+e}, s{p+e}, s{sTmp}")
            L = newlbl()
            A("s_cmp_lg_u32 s3, 0")
            A(f"s_cbranch_scc1 {L}")
            A(f"s_atomic_swap_x2 s[{p}:{p+1}], s[{sFl}:{sFl+1}], {hex(16 + 8*br)}")
            A(f"{L}:")
        return [c_r1, c_max, c_exp, c_sum, c_norm, c_pack]
    def partner(br):
        def ld(): wsld(("pst", br), 2, vPst, vZero, f"s{sPo}", f"offset:{16 + 8*br} ")
        def ev():
            A("; share of this half of the head from the partner's (max, sum)")
            need(("pst", br))
            L0, L1 = f"L_ps{br}", f"L_pd{br}"
            A(f"s_mov_b32 s{sSpin}, 0")
            A(f"{L0}:")
            A(f"v_xor_b32 v{vT}, v{vPst}, v{vOldS+2*br}")
            A(f"v_xor_b32 v{vF}, v{vPst+1}, v{vOldS+2*br+1}")
            A(f"v_and_b32 v{vT}, v{vT}, v{vF}")
            A(f"v_readfirstlane_b32 s{sTmp}, v{vT}")
            A(f"s_bitcmp1_b32 s{sTmp}, 0")
            A(f"s_cbranch_scc1 {L1}")
            A(f"s_add_u32 s{sSpin}, s{sSpin}, 1")
            A(f"s_cmp_ge_u32 s{sSpin}, {('0x400', '0x4000')[br]}")
            A(f"s_cbranch_scc1 {L1}")
            A(f"buffer_load_dwordx2 v[{vPst}:{vPst+1}], v{vZero}, s[{sWS}:{sWS+3}], s{sPo} offen offset:{16 + 8*br} sc1")
            A("s_waitcnt vmcnt(0)")
            A(f"s_branch {L0}")
            A(f"{L1}:")
            Mx, Lx = vStat[br], vStat[br] + 1
            A(f"v_and_b32 v{vPst}, -2, v{vPst}")
            A(f"v_and_b32 v{vPst+1}, -2, v{vPst+1}")
            A(f"v_max_f32 v{vT}, v{Mx}, v{vPst}")
            A(f"v_sub_f32 v{vF}, v{Mx}, v{vT}")
            A(f"v_sub_f32 v{vT}, v{vPst}, v{vT}")
            A(f"v_mul_f32 v{vF}, {hex(f2u(LOG2E))}, v{vF}")
            A(f"v_mul_f32 v{vT}, {hex(f2u(LOG2E))}, v{vT}")
            A(f"v_exp_f32 v{vF}, v{vF}")
            A(f"v_exp_f32 v{vT}, v{vT}")
            A(f"v_mul_f32 v{vF}, v{vF}, v{Lx}")
            A(f"v_fma_f32 v{vT}, v{vT}, v{vPst+1}, v{vF}")
            A(f"v_rcp_f32 v{vT}, v{vT}")
            A(f"v_mul_f32 v{vFac+br}, v{vF}, v{vT}")
        return ld, ev
    def proj_chunks(br, res):
        def c_w(): ldsw(576, [OP], [vAcc])
        def c_r():
            bar()
            A(f"ds_read_b32 v{vU}, v{vLdsO} offset:{OP}")
            A(f"ds_read_b32 v{vU+1}, v{vE2} offset:{OP}")
            if br == 1: stamp('bar')
            A("s_waitcnt lgkmcnt(0)")
            for q in ("quad_perm:[1,0,3,2]", "quad_perm:[2,3,0,1]"):
                for r in (vU, vU + 1):
                    A(f"v_add_f32_dpp v{r}, v{r}, v{r} {q} {DPPF}")
            for r in (vU, vU + 1): A(f"v_mul_f32 v{r}, v{r}, v{vFac+br}")
            A(f"v_cvt_pk_bf16_f32 v{vU}, v{vU}, v{vU}")
            A(f"v_cvt_pk_bf16_f32 v{vU+1}, v{vU+1}, v{vU+1}")
            need(("wo", br, 39))
            ands(vA0, vU, 0)
        def mf(cb, tq, a):
            i = tq * 5 + cb
            c = "0" if tq == 0 else f"v[{vO+4*cb}:{vO+4*cb+3}]"
            A(f"v_mfma_f32_16x16x32_bf16 v[{vO+4*cb}:{vO+4*cb+3}], v[{a}:{a+3}], a[{4*i}:{4*i+3}], {c}")
        def mm(tq):
            def f():
                cur = vA0 if tq % 2 == 0 else vA1; nxt = vA1 if tq % 2 == 0 else vA0
                for cb in range(5):
                    mf(cb, tq, cur)
                    if cb == 0 and tq < 7: ands(nxt, vU + ((tq + 1) >> 2), 4 * ((tq + 1) & 3))
            return f
        def c_w2(): ldsw(2560, [OUTP + 512 * cb for cb in range(5)], [vO + 4 * cb for cb in range(5)])
        def mmcb():
            Aq = [vA0] + [vRing + 4 * q for q in range(1, 8)]
            def wr(cb):
                A("s_mov_b32 exec_hi, 0")
                A(f"ds_write_b128 v{vE1}, v[{vO+4*cb}:{vO+4*cb+3}] offset:{OUTP + 512*cb}")
                A("s_mov_b32 exec_hi, -1")
            for tq in range(8):
                mf(0, tq, Aq[tq])
                if tq < 7: ands(Aq[tq + 1], vU + ((tq + 1) >> 2), 4 * ((tq + 1) & 3))
                mf(1, tq, Aq[tq])
            A(f"s_mul_i32 s{sTmp}, s3, 2560")
            A(f"v_add_u32 v{vE1}, s{sTmp}, v{vLdsA}")
            for cb in (2, 3, 4):
                for tq in range(8): mf(cb, tq, Aq[tq])
                if cb == 2: wr(0)
                wr(cb - 1)
            wr(4)
        def c_sum():
            A(f"v_lshlrev_b32 v{vE1}, 4, v0")
            bar()
            for w in range(4):
                A(f"ds_read_b128 v[{vSc+4*w}:{vSc+4*w+3}], v{vE1} offset:{OUTP+2560*w}")
            for w in range(1, 4):
                A(f"s_waitcnt lgkmcnt({3-w})" if (br == 1 and not diag) else "s_waitcnt lgkmcnt(0)")
                for e in range(4):
                    A(f"v_add_f32 v{vSc+e}, v{vSc+e}, v{vSc+4*w+e}")
            for e in range(4):
                A(f"v_bfi_b32 v{res+e}, 1, v{vOldP[br]+e}, v{vSc+e}")
        def s_w():
            A("; o @ wo (sparse MFMA: two row-quads per instruction) and in-workgroup sums")
            c_w()
            if br == 0:
                for k in range(20): A(f"v_mov_b32 v{vO+k}, 0")
        def sands(dst, u):
            for k in range(4):
                A(f"v_and_b32_dpp v{dst+k}, v{vU + (k >> 1)}, v{vSm + (k & 1)} row_newbcast:{4*u} {DPPF}")
        def s_r():
            bar()
            A(f"ds_read_b64 v[{vU}:{vU+1}], v{vLdsO} offset:{OP}")
            if br == 1: stamp('bar')
            A("s_waitcnt lgkmcnt(0)")
            for q in ("quad_perm:[1,0,3,2]", "quad_perm:[2,3,0,1]"):
                for r in (vU, vU + 1):
                    A(f"v_add_f32_dpp v{r}, v{r}, v{r} {q} {DPPF}")
            for r in (vU, vU + 1): A(f"v_mul_f32 v{r}, v{r}, v{vFac+br}")
            for r in (vU, vU + 1): A(f"v_cvt_pk_bf16_f32 v{r}, v{r}, v{r}")
            need(("wo", br, 39))
            sands(vA0, 0)
        def sf(cb, u, a):
            i = (u * 5 + cb) * 8
            A(f"v_smfmac_f32_16x16x64_bf16 v[{vO+4*cb}:{vO+4*cb+3}], v[{a}:{a+3}], a[{i}:{i+7}], v{vSm+2}")
        def sm(u):
            def f():
                cur = vA0 if u % 2 == 0 else vA1; nxt = vA1 if u % 2 == 0 else vA0
                for cb in range(5):
                    sf(cb, u, cur)
                    if cb == 0 and u < 3: sands(nxt, u + 1)
            return f
        def smcb():
            Aq = [vA0] + [vRing + 4 * q for q in range(1, 4)]
            def wr(cb):
                A("s_mov_b32 exec_hi, 0")
                A(f"ds_write_b128 v{vE1}, v[{vO+4*cb}:{vO+4*cb+3}] offset:{OUTP + 512*cb}")
                A("s_mov_b32 exec_hi, -1")
            for u in range(4):
                sf(0, u, Aq[u])
                if u < 3: sands(Aq[u + 1], u + 1)
                sf(1, u, Aq[u])
            A(f"s_mul_i32 s{sTmp}, s3, 2560")
            A(f"v_add_u32 v{vE1}, s{sTmp}, v{vLdsA}")
            for cb in (2, 3, 4):
                for u in range(4): sf(cb, u, Aq[u])
                if cb == 3: wr(0); wr(1)
                if cb == 4: wr(2); wr(3)
            wr(4)
        if smf and br == 1: return [s_w, s_r, smcb, c_sum]
        if smf: return [s_w, s_r] + [sm(u) for u in range(4)] + [c_w2, c_sum]
        if br == 1: return [c_w, c_r, mmcb, c_sum]
        return [c_w, c_r] + [mm(q) for q in range(8)] + [c_w2, c_sum]
    def poll(key):
        wsld((key, 0), 4, vD, vCon, f"s{sC0}", fl=pollf)
        wsld((key, 1), 4, vD + 4, vCon, f"s{sC1}", fl=pollf)

    def pretail():
        if smf:
            for k in range(20): A(f"v_mov_b32 v{vO+k}, 0")
        A(f"s_mov_b32 s{sTmp2}, {4*64*ROW}")
        A(f"s_mov_b32 s{sSpin}, 0")
        A(f"v_lshrrev_b32 v{vTmp}, 4, v0")
        A(f"v_mul_u32_u24 v{vTmp}, 144, v{vTmp}")
        A(f"v_and_b32 v{vTmp2}, 7, v0")
        A(f"v_lshl_add_u32 v{vTmp}, v{vTmp2}, 4, v{vTmp}")
        A(f"v_lshrrev_b32 v{vTmp2}, 4, v{vLane}")
        A(f"v_lshl_add_u32 v{vTmp2}, s3, 1, v{vTmp2}")
        A(f"v_lshlrev_b32 v{vTmp2}, 4, v{vTmp2}")
        A(f"v_mul_u32_u24 v{vT}, 144, v{vC}")
        A(f"v_add_u32 v{vTmp2}, v{vTmp2}, v{vT}")

    extras = {T: [] for T in range(32)}
    fills = {T: [] for T in range(32)}
    def spread(rng, fn):
        Ts = list(range(rng[0], rng[1])); n = len(Ts)
        for a, T in enumerate(Ts):
            extras[T] += [(lambda i=i: fn(i)) for i in range(40 * a // n, 40 * (a + 1) // n)]
    spread(wqB, lambda i: wqload(1, i))
    spread(woA, lambda i: woload(0, i))
    spread(woB, lambda i: woload(1, i))
    if pro == 2 and not pvn: extras[0] = late0
    if pvn: extras[1] = late0 + extras[1]
    fills[qB] = q_chunks(1, 3)
    pa = proj_chunks(0, vRes)
    fills[epA] = pa[:len(pa) // 2]
    fills[epA + 1] = pa[len(pa) // 2:]
    fills[3].append(notold)
    if touch:
        extras[touch].append(lambda: (A(f"s_mov_b32 s{sTmp}, {4*64*ROW}"), wsld(("touch",), 4, vD, vPub, f"s{sTmp}", fl=touchf)))
    assert wqB[1] <= qB < 7 and woA[0] > qB and woA[1] <= epA and woB[0] > epA + 1 and 7 < stT[0] < 15 and 23 < stT[1] < 30
    dyn0 = 1 if duty is not None else ((min(cps) + 1) if cps else 99)
    stT = list(stT)

    def body(T):
        ph, t = T >> 3, T & 7
        br = ph >> 1; isK = (ph & 1) == 0
        issue = 0 < T < 31
        ex = list(extras[T]); nx = len(ex)
        fl = list(fills[T]); nf = len(fl); post = {}
        if issue:
            if t == 7:
                setbase(sS, (pV[br] if isK else pK[1]))
                A(f"s_mov_b32 s{sO0}, s{sBase}")
                (None if pat else A(f"s_add_u32 s{sO1}, s{sBase}, {hex(1 << nb[3])}"))
            else:
                nexttask()
        if T == 1: linesetup()
        if T in stT:
            ld, ev = partner(stT.index(T)); ld(); post[12] = ev
        if T in cps:
            ci = list(cps).index(T)
            L = newlbl()
            A("s_cmp_lg_u32 s3, 0")
            A(f"s_cbranch_scc1 {L}")
            A(f"s_atomic_xor s{sOne}, s[{sFl}:{sFl+1}], {hex(4*ci)}")
            A(f"{L}:")
            A(f"s_mov_b32 s{sTmp2}, {FLAGS + 4*ci}")
            wsld(("fcur", ci), 1, vFcur, vFo, f"s{sTmp2}")
            def evalf():
                A("; count the peers that passed this checkpoint earlier")
                need(("fcur", ci))
                A(f"v_xor_b32 v{vFcur}, v{vFcur}, v{vFold+ci}")
                A(f"v_and_b32 v{vFcur}, 1, v{vFcur}")
                A(f"v_cmp_eq_u32 s[{sTmp}:{sTmp+1}], 1, v{vFcur}")
                A(f"s_and_b32 s{sTmp}, s{sTmp}, -2")
                A(f"s_bcnt1_i32_b32 s{sTmp}, s{sTmp}")
                g_ = gpl if (gpl and T == cps[-1]) else gp
                m_ = midl if (midl and T == cps[-1]) else mid
                A(f"s_mul_i32 s{sTmp}, s{sTmp}, {int(round(g_*64))}")
                A(f"s_sub_i32 s{sTmp}, s{sTmp}, {int(round(m_*g_*64)) - 32}")
                if duty is not None or lvl3:
                    A(f"s_mul_i32 s{sTmp2}, s{sTmp}, {int(round(gn / g_ * 64))}")
                    A(f"s_ashr_i32 s{sTmp2}, s{sTmp2}, 6")
                    A(f"s_add_i32 s{sTmp2}, s{sTmp2}, {32 - int(round(32 * gn / g_))}")
                    A(f"s_max_i32 s{sTmp}, s{sTmp}, s{sTmp2}")
                A(f"s_ashr_i32 s{sTmp}, s{sTmp}, 6")
                A(f"v_mov_b32 v{vKk}, s{sTmp}")
                A(f"v_mov_b32 v{vFcur}, {KK}")
                L2 = newlbl()
                A("s_cmp_lg_u32 s3, 0")
                A(f"s_cbranch_scc1 {L2}")
                A(f"ds_write_b32 v{vFcur}, v{vKk}")
                A(f"{L2}:")
            assert 9 not in post
            post[9] = evalf
        if T - 1 in cps:
            A(f"v_mov_b32 v{vFcur}, {KK}")
            A(f"ds_read_b32 v{vKk}, v{vFcur}")
            A("s_waitcnt lgkmcnt(0)")
            A(f"v_readfirstlane_b32 s{sKk}, v{vKk}")
        km0 = km[0]
        last = Wlast and T >= 31 - nlast
        dyn = T >= dyn0 and issue and not last
        if dyn:
            if lvl3:
                A(f"s_cmp_gt_i32 s{sKk}, 0")
                A(f"s_cselect_b64 vcc, -1, 0")
                A(f"s_max_i32 s{sW}, s{sKk}, -1")
                A(f"s_min_i32 s{sW}, s{sW}, 1")
                A(f"s_sub_i32 s{sKk}, s{sKk}, s{sW}")
            elif duty is None:
                A(f"s_cmp_gt_i32 s{sKk}, 0")
                A(f"s_cselect_b64 vcc, -1, 0")
                A(f"s_sub_i32 s{sKk}, s{sKk}, 1")
            else:
                A(f"s_max_i32 s{sW}, s{sKk}, -1")
                A(f"s_min_i32 s{sW}, s{sW}, 1")
                A(f"s_sub_i32 s{sKk}, s{sKk}, s{sW}")
                A(f"s_lshl_b32 s{sW}, s{sW}, 2")
        def setv(n):
            ph_ = (T * (16 // per) + n // per) * (2 if (duty == 2 and per == 8) else 1)
            A(f"s_add_u32 s{sTmp}, s3, {ph_ & 3}")
            A(f"s_and_b32 s{sTmp}, s{sTmp}, 3")
            A(f"s_add_i32 s{sTmp}, s{sW}, s{sTmp}")
            A(f"s_cmp_ge_i32 s{sTmp}, {4 - duty}")
            A(f"s_cselect_b64 vcc, -1, 0")
        def iss(n):
            if dyn and duty is not None and n % per == 0: setv(n)
            if T == 0 and pro == 2 and (km[0] < 32 + pvn):
                thr(W); knext()
            if issue and not (T == 7 and n < pvn):
                w = W + (1 if (xw and (nx or xall) and n % xw == xw - 1) else 0)
                if dyn: thrdyn(w, boostl if (boostl and T > cps[-1]) else boost)
                else: thr(Wlast if last else w)
                kvload(T + 1, n)
            for _ in range((n + 1) * nx // 16 - n * nx // 16): ex.pop(0)()
            for _ in range((n + 1) * nf // 16 - n * nf // 16): fl.pop(0)()
            if n in post: post[n]()
        if T == 31: pretail()
        if T == pubT:
            op(("pub", 0), f"buffer_store_dwordx4 v[{vRes}:{vRes+3}], v{vPub}, s[{sWS}:{sWS+3}], 0 offen {pubf}")
        if isK:
            vQ = vQA if br == 0 else vQB
            def dots(tr, base):
                need(("kv", T, base + 3))
                for k in range(4):
                    for j in range(4):
                        c = "0" if k == 0 else f"v{tr+j}"
                        A(f"v_dot2_f32_bf16 v{tr+j}, v{slot(T, base+j)+k}, v{vQ+k}, {c}")
            def red():
                for (d, s, ctl, bm) in ((0, 0, "row_ror:8", 3), (1, 1, "row_ror:8", 3), (0, 2, "row_ror:8", 12), (1, 3, "row_ror:8", 12),
                                        (0, 0, "row_half_mirror", 5), (0, 1, "row_half_mirror", 10),
                                        (0, 0, "quad_perm:[1,0,3,2]", 15), (0, 0, "quad_perm:[2,3,0,1]", 15)):
                    for tr in (vTA, vTB):
                        A(f"v_add_f32_dpp v{tr+d}, v{tr+s}, v{tr+s} {ctl} row_mask:0xf bank_mask:{hex(bm)}")
            S = vSs + t
            m1 = lambda: A(f"v_cndmask_b32 v{S}, v{vTA}, v{vTB}, s[{sM1}:{sM1+1}]")
            def m2():
                A(f"v_cndmask_b32 v{S}, v{S}, v{vTA}, s[{sM2}:{sM2+1}]")
                A(f"v_cndmask_b32 v{S}, v{S}, v{vTB}, s[{sM3}:{sM3+1}]")
            if t < 7:
                dots(vTA, 0); iss(0); iss(1)
                dots(vTB, 4); iss(2); iss(3)
                red(); iss(4); iss(5)
                m1(); iss(6); iss(7)
                dots(vTA, 8); iss(8); iss(9)
                dots(vTB, 12); iss(10); iss(11)
                red(); iss(12); iss(13)
                m2(); iss(14); iss(15)
            else:
                assert nf == 0
                dots(vTA, 0); iss(0); iss(1)
                dots(vTB, 4); iss(2); iss(3)
                red(); iss(4)
                m1()
                dots(vTA, 8); iss(5); iss(6)
                dots(vTB, 12); iss(7); iss(8)
                red(); iss(9)
                m2()
                for a, f in enumerate(softmax_chunks(br)):
                    f(); iss(10 + a)
        else:
            lane = lambda n: 4 * (n & 3) + (n >> 2)
            Pk = vSs + t
            ands(vA0, Pk, lane(0))
            for n in range(16):
                cur = vA0 if n % 2 == 0 else vA1; nxt = vA1 if n % 2 == 0 else vA0
                if n < 15: ands(nxt, Pk, lane(n + 1))
                need(("kv", T, n))
                r = vRing + 4 * n
                c = "0" if (t == 0 and n == 0) else f"v[{vAcc}:{vAcc+3}]"
                bsrc = f"a[{160+4*n}:{163+4*n}]" if (T == 8 and n < pvn) else f"v[{r}:{r+3}]"
                A(f"v_mfma_f32_16x16x32_bf16 v[{vAcc}:{vAcc+3}], v[{cur}:{cur+3}], {bsrc}, {c}")
                iss(n)
        assert not ex and not fl and (pro != 2 or km[0] == 32 + pvn)
    for T in range(32):
        A(f"; ---- task {T}")
        stamp(f"T{T}")
        body(T)
    stamp("end")
    pb = proj_chunks(1, vSc + 16)
    pb[0]()
    for f in pb[1:-1]: f()
    stamp("mm")
    pb[-1]()
    op(("pub", 1), f"buffer_store_dwordx4 v[{vSc+16}:{vSc+19}], v{vPub}, s[{sWS}:{sWS+3}], s{sTmp2} offen {pubf}")
    stamp("pub")
    A(f"s_cmp_ge_u32 s{sH}, 20")
    A("s_cbranch_scc1 L_fin")
    need(("old", 3))
    poll("p0")
    need(("p0", 1))
    def missing(r):
        for e in range(8):
            A(f"v_xor_b32 v{vSc+e}, v{r+e}, v{vOldC+e}")
        for (a, b) in ((0, 1), (2, 3), (4, 5), (6, 7), (0, 2), (4, 6), (0, 4)):
            A(f"v_and_b32 v{vSc+a}, v{vSc+a}, v{vSc+b}")
        A(f"v_and_b32 v{vSc}, 1, v{vSc}")
        A(f"v_cmp_eq_u32 vcc, 0, v{vSc}")
    def rawpoll(r):
        A(f"buffer_load_dwordx4 v[{r}:{r+3}], v{vCon}, s[{sWS}:{sWS+3}], s{sC0} offen {pollf}")
        A(f"buffer_load_dwordx4 v[{r+4}:{r+7}], v{vCon}, s[{sWS}:{sWS+3}], s{sC1} offen {pollf}")
    A("L_chk:")
    missing(vD)
    A("s_and_b64 exec, exec, vcc")
    A("s_cbranch_execz L_got")
    A(f"s_add_u32 s{sSpin}, s{sSpin}, 1")
    A(f"s_cmp_ge_u32 s{sSpin}, 0x60000")
    A("s_cbranch_scc1 L_got")
    if slA or slB or dbl:
        A(f"s_bcnt1_i32_b64 s{sTmp}, exec")
        A(f"s_cmp_le_u32 s{sTmp}, {nB}")
        A("s_cbranch_scc1 L_pc")
        A(f"s_cmp_le_u32 s{sTmp}, {nA}")
        A("s_cbranch_scc1 L_pb")
        if slA: A(f"s_sleep {slA}")
        A("L_pb:")
        if slB: A(f"s_sleep {slB}")
        if not dbl: A("L_pc:")
    rawpoll(vD)
    A("s_waitcnt vmcnt(0)")
    A("s_branch L_chk")
    if dbl:
        P0, P1 = vRing, vRing + 8
        A("L_pc:")
        rawpoll(P0)
        A(f"s_sleep {dly}")
        rawpoll(P1)
        A("L_f:")
        for a in (P0, P1):
            A("s_waitcnt vmcnt(2)")
            missing(a)
            A(f"s_mov_b64 s[{sM1}:{sM1+1}], vcc")
            A("s_andn2_b64 exec, exec, vcc")
            for e in range(8): A(f"v_mov_b32 v{vD+e}, v{a+e}")
            A(f"s_mov_b64 exec, s[{sM1}:{sM1+1}]")
            A("s_cbranch_execz L_got")
            rawpoll(a)
        A(f"s_add_u32 s{sSpin}, s{sSpin}, 1")
        A(f"s_cmp_lt_u32 s{sSpin}, 0x40000")
        A("s_cbranch_scc1 L_f")
    A("L_got:")
    stamp("got")
    A("s_mov_b64 exec, -1")
    for e in range(8): A(f"v_and_b32 v{vD+e}, -2, v{vD+e}" + ("                 ; drop the validity bit" if e == 0 else ""))
    for e in range(4): A(f"v_add_f32 v{vD+e}, v{vD+e}, v{vD+4+e}")
    for e in range(4): A(f"v_add_f32_dpp v{vD+e}, v{vD+e}, v{vD+e} row_ror:8 {DPPF}")
    A("s_mov_b32 exec_lo, 0x00ff00ff")
    A("s_mov_b32 exec_hi, 0x00ff00ff")
    A(f"ds_write_b128 v{vTmp}, v[{vD}:{vD+3}] offset:{QP}")
    A("s_mov_b64 exec, -1")
    bar()
    A(f"ds_read_b128 v[{vD}:{vD+3}], v{vTmp2} offset:{QP}")
    A("s_waitcnt lgkmcnt(0)")
    for ctl in RED64[:4]:
        for e in range(4):
            A(f"v_add_f32_dpp v{vD+e}, v{vD+e}, v{vD+e} {ctl}")
    A(f"v_cvt_pk_bf16_f32 v{vD}, v{vD}, v{vD+1}")
    A(f"v_cvt_pk_bf16_f32 v{vD+1}, v{vD+2}, v{vD+3}")
    A("s_mov_b32 exec_lo, 0x10001")
    A("s_mov_b32 exec_hi, 0")
    A(f"buffer_store_dwordx2 v[{vD}:{vD+1}], v{vOutO}, s[{sOUT}:{sOUT+3}], 0 offen {outf}")
    A("L_fin:")
    if diag == 3:
        stamp()
        A("s_waitcnt lgkmcnt(0)")
        A(f"s_sub_u32 s{sTmp}, s{sST+2*ampk}, s{sST+2*ampj}")
        A(f"s_mul_i32 s{sTmp}, s{sTmp}, {amp}")
        A(f"s_add_u32 s{sTmp}, s{sTmp}, {fix}")
        A("L_hold:")
        A(f"s_memrealtime s[{sM1}:{sM1+1}]")
        A("s_waitcnt lgkmcnt(0)")
        A(f"s_sub_u32 s{sTmp2}, s{sM1}, s{sST}")
        A(f"s_cmp_lt_u32 s{sTmp2}, s{sTmp}")
        A("s_cbranch_scc1 L_hold")
    if diag == 1:
        stamp()
        A("s_mov_b64 exec, -1")
        A(f"s_getreg_b32 s{sTmp}, hwreg(HW_REG_XCC_ID)")
        A("s_waitcnt lgkmcnt(0)")
        A(f"v_mov_b32 v{vStamp}, 0")
        for k in range(nstamp[0]):
            A(f"v_writelane_b32 v{vStamp}, s{sST+2*k}, {k}")
        A(f"v_writelane_b32 v{vStamp}, s{sTmp}, 14")
        A(f"v_writelane_b32 v{vStamp}, s{sSpin}, 15")
        A(f"s_add_u32 s{sE}, s28, {DIAG_OFF}")
        A(f"s_addc_u32 s{sE+1}, s29, 0")
        A(f"s_mov_b32 s{sE+2}, 0x10000")
        A(f"s_lshl_b32 s{sTmp}, s2, 2")
        A(f"s_add_u32 s{sTmp}, s{sTmp}, s3")
        A(f"s_lshl_b32 s{sTmp}, s{sTmp}, 6")
        A(f"v_lshlrev_b32 v{vTmp}, 2, v{vLane}")
        A("s_mov_b64 exec, 0xffff")
        A(f"buffer_store_dword v{vStamp}, v{vTmp}, s[{sE}:{sE+3}], s{sTmp} offen")
        A(f"; nstamp={nstamp[0]}")
    A("L_end:")
    A("s_endpgm")
    code = A.finish()
    txt = HEADER + "; Override launch geometry by editing the next line (default: block=256,\n; grid=ceil(out_elems/256), lds=0). Harness parses it; keep it on one line.\n"
    txt += "; @launch grid=(256,1,1) block=(256,1,1) lds=16384\n" + DOC
    txt += f""".amdgcn_target "amdgcn-amd-amdhsa--gfx950"
.text
.globl {name}
.p2align 8
.type {name},@function
""" + code + f""".section .rodata,"a"
.p2align 6
.amdhsa_kernel {name}
  .amdhsa_next_free_vgpr {480 if pvn else (424 if pref else 416)}
  .amdhsa_next_free_sgpr 102
  .amdhsa_accum_offset 256
  .amdhsa_group_segment_fixed_size 0
  .amdhsa_kernarg_size 104
  .amdhsa_user_sgpr_count 2
  .amdhsa_user_sgpr_kernarg_segment_ptr 1
  .amdhsa_system_sgpr_workgroup_id_x 1
  .amdhsa_float_denorm_mode_32 3
.end_amdhsa_kernel
"""
    return txt

if __name__ == "__main__":
    import json
    kw = json.loads(sys.argv[1]) if len(sys.argv) > 1 else {}
    sys.stdout.write(gen(**kw))
```
